```python
import torch

def _softmax(x, axis=-1):
    return torch.softmax(x, dim=axis)
def _gelu(x):
    return torch.nn.functional.gelu(x, approximate="tanh")
def _silu(x):
    return torch.nn.functional.silu(x)
def _sigmoid(x):
    return torch.sigmoid(x)
def _layernorm(x, axis=-1, eps=1e-5):
    m = x.mean(dim=axis, keepdim=True)
    v = x.var(dim=axis, keepdim=True, unbiased=False)
    return (x - m) / torch.sqrt(v + eps)
def _scatter_add(tgt, idx, src, axis=0):
    return tgt.clone().index_add_(axis, idx, src)
def _segment_sum(src, seg, n):
    out = torch.zeros((n,) + src.shape[1:], dtype=src.dtype)
    return out.index_add_(0, seg, src)
def _pad(x, pw):
    flat = tuple(v for pair in reversed(pw) for v in pair)
    return torch.nn.functional.pad(x, flat)

kernel_name = 'recurrent_scan__linear_attn_block__glu_gated_swiglu__prompt'

def setup_inputs():

    _w = (lambda a: (lambda t: t.to(torch.bfloat16) if t.is_floating_point() else t)(torch.as_tensor(a)))
    def _A_setup():
        B, S, D = 1, 2048, 1024
        return {
            "x": _w((lambda *s: torch.randn(*s, dtype=torch.bfloat16) * 0.05)(B, S, D)),
            "wqkv": _w((lambda *s: torch.randn(*s, dtype=torch.bfloat16) * 0.8)(D, 3 * D)),
            "wo": _w((lambda *s: torch.randn(*s, dtype=torch.bfloat16) * 0.8)(D, D)),
        }
    _A_in = _A_setup()

    def _B_setup():
        B, S, D, F = 1, 2048, 1024, 3584
        return {
            "x": _w((lambda *s: torch.randn(*s, dtype=torch.bfloat16) * 0.05)(B, S, D)),
            "w1": _w((lambda *s: torch.randn(*s, dtype=torch.bfloat16) * 0.2)(D, F) * (2.0 / D) ** 0.5),
            "w3": _w((lambda *s: torch.randn(*s, dtype=torch.bfloat16) * 0.2)(D, F) * (2.0 / D) ** 0.5),
            "w2": _w((lambda *s: torch.randn(*s, dtype=torch.bfloat16) * 0.2)(F, D) * (2.0 / F) ** 0.5),
        }
    _B_in = _B_setup()

    return {
        "A_x": _A_in["x"],
        "A_wqkv": _A_in["wqkv"],
        "A_wo": _A_in["wo"],
        "B_x": _B_in["x"],
        "B_w1": _B_in["w1"],
        "B_w3": _B_in["w3"],
        "B_w2": _B_in["w2"],
    }

def reference(A_x, A_wqkv, A_wo, B_x, B_w1, B_w3, B_w2):
    def _A_ref(x, wqkv, wo):
        B, S, D = x.shape
        H = 32; Dh = D // H
        qkv = (lambda x, *d: x.permute(*d))((x @ wqkv).reshape(B, S, 3, H, Dh), 2, 0, 3, 1, 4)
        q, k, v = qkv[0], qkv[1], qkv[2]
        phi = lambda t: torch.where(t > 0, t + 1, torch.exp(t)) + 1e-6
        pq, pk = phi(q), phi(k)
        kv = torch.einsum("bhsd,bhse->bhde", pk, v)
        z = torch.einsum("bhsd->bhd", pk)
        num = torch.einsum("bhqd,bhde->bhqe", pq, kv)
        den = torch.einsum("bhqd,bhd->bhq", pq, z)[..., None] + 1e-6
        o = num / den
        return (lambda x, *d: x.permute(*d))(o, 0, 2, 1, 3).reshape(B, S, D) @ wo

    def _B_ref(x, w1, w3, w2):
        gate = torch.einsum("bsd,df->bsf", x, w1)
        up = torch.einsum("bsd,df->bsf", x, w3)
        h = _silu(gate) * up
        out = torch.einsum("bsf,fd->bsd", h, w2)
        return out

    x = A_x
    xn = _layernorm(x, axis=-1)
    s = _A_ref(xn, A_wqkv, A_wo)
    g = _silu(_B_ref(xn, B_w1, B_w3, B_w2))
    return x + s * g
```

```python
import re

TRANS = ("v_exp_f32", "v_log_f32", "v_rcp_f32", "v_rsq_f32", "v_sqrt_f32", "v_sin_f32", "v_cos_f32")
REG = re.compile(r"(?<![\w.])([vas])(\d+)(?![\w\[])|(?<![\w.])([vas])\[(\d+):(\d+)\]|(?<![\w.])(vcc|exec|m0|scc)(?![\w])")

def regs_of(op):
    out = set()
    for m in REG.finditer(op):
        if m.group(1):
            out.add((m.group(1), int(m.group(2))))
        elif m.group(3):
            for i in range(int(m.group(4)), int(m.group(5)) + 1):
                out.add((m.group(3), i))
        else:
            out.add((m.group(6), 0))
    return out

def split_ops(s):
    ops, depth, cur = [], 0, ""
    for ch in s:
        if ch in "[(":
            depth += 1
        if ch in "])":
            depth -= 1
        if ch == "," and depth == 0:
            ops.append(cur.strip()); cur = ""
        else:
            cur += ch
    if cur.strip():
        ops.append(cur.strip())
    return ops

class Ins:
    def __init__(self, text):
        self.text = text
        t = text.split(";")[0].strip()
        self.op = t.split()[0]
        rest = t[len(self.op):].strip()
        ops = split_ops(rest)
        self.ops = ops
        op = self.op
        self.kind = "other"
        self.w, self.r = set(), set()
        self.cset = set(); self.abset = set()
        self.states = 1
        self.passes = 0
        self.dpp = ("_dpp" in op) or any(k in rest for k in ("row_shr", "row_shl", "row_ror", "quad_perm", "row_mirror", "row_half_mirror", "row_bcast", "row_newbcast"))
        if op == "s_nop":
            self.states = int(ops[0], 0) + 1
            self.kind = "salu"
        elif op.startswith("v_mfma"):
            self.kind = "mfma"
            self.passes = 8 if "32x32" in op else 4
            self.w = regs_of(ops[0])
            self.abset = regs_of(ops[1]) | regs_of(ops[2])
            self.cset = regs_of(ops[3])
            self.r = self.abset | self.cset
        elif op.startswith("v_"):
            self.kind = "valu"
            if op.startswith("v_cmp"):
                self.w = regs_of(ops[0])
                for o in ops[1:]: self.r |= regs_of(o)
                if op.startswith("v_cmpx"): self.w.add(("exec", 0))
            elif "_co_" in op:
                self.w = regs_of(ops[0]) | regs_of(ops[1])
                for o in ops[2:]: self.r |= regs_of(o)
            elif "permlane" in op and "swap" in op:
                self.w = regs_of(ops[0]) | regs_of(ops[1]); self.r = set(self.w)
            else:
                self.w = regs_of(ops[0])
                for o in ops[1:]: self.r |= regs_of(o)
                if op.startswith(("v_fmac", "v_dot2c", "v_pk_fmac", "v_mac")) or self.dpp or op.startswith("v_writelane"):
                    self.r |= self.w
                if op.startswith("v_cndmask") and len(ops) == 3:
                    self.r.add(("vcc", 0))
        elif op.startswith("ds_"):
            self.kind = "ds"
            if op.startswith(("ds_read", "ds_swizzle", "ds_bpermute", "ds_permute")):
                self.w = regs_of(ops[0])
                for o in ops[1:]: self.r |= regs_of(o)
            else:
                for o in ops: self.r |= regs_of(o)
        elif op.startswith(("buffer_", "global_", "flat_")):
            self.kind = "vmem"
            self.lds = (" lds" in (" " + rest)) or ("load_lds" in op)
            isload = "load" in op and not self.lds
            ret_atomic = "atomic" in op and " sc0" in rest
            if isload or (ret_atomic and op.startswith("global_")):
                self.w = regs_of(ops[0])
                for o in ops[1:]: self.r |= regs_of(o)
            else:
                for o in ops: self.r |= regs_of(o)
                if ret_atomic: self.w = regs_of(ops[0])
            if self.lds: self.r.add(("m0", 0))
            self.wide = ("store" in op) and ("x4" in op or "x3" in op)
            if self.wide:
                self.data = regs_of(ops[0]) if op.startswith("buffer_") else regs_of(ops[1])
        elif op.startswith("s_"):
            self.kind = "salu"
            if op.startswith(("s_cmp", "s_cbranch", "s_branch", "s_waitcnt", "s_barrier", "s_endpgm", "s_sleep", "s_setprio", "s_bitcmp")):
                for o in ops: self.r |= regs_of(o)
            else:
                if ops: self.w = regs_of(ops[0])
                for o in ops[1:]: self.r |= regs_of(o)
                if "saveexec" in op: self.w.add(("exec", 0))
        self.trans = op.split("_e")[0] in TRANS or op in TRANS

def need(p, c):
    n = 0
    vw = {x for x in p.w if x[0] in "va"}
    sw = {x for x in p.w if x[0] in ("s", "vcc")}
    if p.kind == "valu":
        if c.kind == "mfma" and vw & c.r: n = max(n, 2)
        if c.kind == "valu":
            if p.trans and not c.trans and (vw & c.r): n = max(n, 1)
            if p.trans and c.trans and (vw & c.r): n = max(n, 1)
            if vw & c.r:
                if c.op.startswith(("v_readfirstlane", "v_readlane")): n = max(n, 1)
                if c.dpp or "permlane" in c.op: n = max(n, 2)
            if sw & c.r:
                n = max(n, 4 if c.op.startswith(("v_readlane", "v_writelane")) else 2)
            if ("exec", 0) in p.w:
                n = max(n, 5 if c.dpp else (4 if ("permlane" in c.op or "readlane" in c.op or "readfirstlane" in c.op) else 0))
        if c.kind == "vmem" and sw & c.r: n = max(n, 5)
        if c.kind == "mfma" and ("exec", 0) in p.w: n = max(n, 4)
        if c.kind == "salu" and sw & c.r: n = max(n, 1)
    if p.kind == "mfma":
        big = p.passes == 8
        if c.kind == "mfma":
            if p.w & c.abset: n = max(n, 12 if big else 8)
            if p.w & c.cset and not (p.w == c.cset and p.passes == c.passes): n = max(n, 10 if big else 6)
            if (p.w & c.w) and not (p.w == c.cset): n = max(n, 10 if big else 6)
        elif c.kind in ("valu", "ds", "vmem"):
            if p.w & (c.r | c.w): n = max(n, 12 if big else 8)
        if c.kind == "valu" and p.cset & c.w: n = max(n, 7 if big else 3)
    if p.kind == "salu" and ("m0", 0) in p.w and c.kind == "vmem" and getattr(c, "lds", False): n = max(n, 1)
    if p.kind == "vmem" and getattr(p, "wide", False):
        if p.data & c.w: n = max(n, 2 if c.kind == "valu" else 1)
    return n

class Asm:
    def __init__(self):
        self.lines = []
    def I(self, text):
        for t in text.split("\n"):
            t = t.strip()
            if not t: continue
            if t.startswith(";") or t.startswith("."):
                self.lines.append(("raw", t))
            elif t.endswith(":"):
                self.lines.append(("label", t))
            else:
                self.lines.append(("ins", t))
    __call__ = I
    def raw(self, t):
        self.lines.append(("raw", t))
    def finalize(self, verbose=False):
        out = []
        hist = []
        labels = {}
        nins = 0
        def required(c, hist, dist=0):
            req = 0
            for p in reversed(hist):
                n = need(p, c)
                if n > dist: req = max(req, n - dist)
                dist += p.states
                if dist >= 16: break
            return req
        items = self.lines
        for i, (k, t) in enumerate(items):
            if k == "label": labels[t[:-1]] = i
        for i, (k, t) in enumerate(items):
            if k != "ins":
                out.append(t if k == "label" or t.startswith(".") or t.startswith(";") else t)
                if k == "raw" and t.startswith(".amdhsa_kernel"): hist = []
                continue
            c = Ins(t)
            req = required(c, hist)
            if c.op.startswith(("s_cbranch", "s_branch")):
                tgt = c.ops[0]
                if tgt in labels:
                    d = 1
                    j = labels[tgt] + 1
                    extra = 0
                    while j < len(items) and d < 14:
                        if items[j][0] == "ins":
                            c2 = Ins(items[j][1])
                            r2 = required(c2, hist, d)
                            extra = max(extra, r2)
                            d += c2.states
                            if c2.op in ("s_branch", "s_endpgm"): break
                        j += 1
                    req = max(req, extra)
            while req > 0:
                n = min(req, 16)
                nop = Ins(f"s_nop {n-1}")
                out.append("  " + nop.text + "   ; hazard pad")
                hist.append(nop); nins += 1
                req -= n
                if verbose: print("pad", n, "before", t)
            out.append("  " + t)
            hist.append(c)
            if c.op in ("s_branch", "s_endpgm"): hist = []
            hist = hist[-20:]
        return "\n".join(out) + "\n"
```

```python
import sys
from asmlib import Asm

NAME = "recurrent_scan__linear_attn_block__glu_gated_swiglu__prompt"
XN_OFF = 0
ACT_OFF = 4 << 20
KVP_OFF = 24 << 20
KVP_STRIDE = 8448
P_OFF = 32 << 20
FLAG_OFF = 48 << 20
LOG2E = 0x3fb8aa3b
NLOG2E = 0xbfb8aa3b
EPS6 = 0x358637bd
EPS5 = 0x3727c5ac

def kd(A, name, vgpr, sgpr, accum):
    A.raw('.section .rodata,"a"')
    A.raw(".p2align 6")
    A.raw(f".amdhsa_kernel {name}")
    A.raw(f".amdhsa_next_free_vgpr {vgpr}")
    A.raw(f".amdhsa_next_free_sgpr {sgpr}")
    A.raw(f".amdhsa_accum_offset {accum}")
    A.raw(".amdhsa_group_segment_fixed_size 0")
    A.raw(".amdhsa_kernarg_size 80")
    A.raw(".amdhsa_user_sgpr_count 2")
    A.raw(".amdhsa_user_sgpr_kernarg_segment_ptr 1")
    A.raw(".amdhsa_system_sgpr_workgroup_id_x 1")
    A.raw(".amdhsa_float_denorm_mode_32 3")
    A.raw(".end_amdhsa_kernel")
    A.raw(".text")

def head(A, name):
    A.raw(f".globl {name}")
    A.raw(".p2align 8")
    A.raw(f".type {name},@function")
    A(f"{name}:")

def srd(A, d, lo, hi, off, nrec):
    A(f"s_add_u32 s{d}, s{lo}, {off}")
    A(f"s_addc_u32 s{d+1}, s{hi}, 0")
    A(f"s_mov_b32 s{d+2}, {nrec}")
    A(f"s_mov_b32 s{d+3}, 0x20000")

def k0(A):
    head(A, "ln_kernel")
    A("s_cmp_ge_u32 s2, 256\ns_cbranch_scc1 L0_end")
    A("s_load_dwordx2 s[4:5], s[0:1], 0")
    A("s_load_dwordx2 s[6:7], s[0:1], 72")
    A("v_lshrrev_b32 v1, 5, v0")
    A("v_and_b32 v2, 31, v0")
    A("s_lshl_b32 s3, s2, 3")
    A("v_add_u32 v1, s3, v1")
    A("v_lshlrev_b32 v3, 11, v1")
    A("v_lshl_add_u32 v3, v2, 4, v3")
    A("s_waitcnt lgkmcnt(0)")
    for j in range(4):
        A(f"global_load_dwordx4 v[{8+4*j}:{11+4*j}], v3, s[4:5] offset:{512*j}")
    A("s_cmp_ge_u32 s2, 128\ns_cbranch_scc1 L0_noflag")
    A("s_lshl_b32 s8, s2, 8")
    A(f"s_add_u32 s8, s8, {FLAG_OFF}")
    A("v_mov_b32 v5, s8\nv_mov_b32 v6, 0")
    A("v_cmp_eq_u32 vcc, 0, v0")
    A("s_and_saveexec_b64 s[10:11], vcc")
    A("s_cbranch_execz L0_rest")
    A("global_store_dword v5, v6, s[6:7]")
    A("L0_rest:")
    A("s_mov_b64 exec, s[10:11]")
    A("L0_noflag:")
    A("v_lshrrev_b32 v4, 6, v1\nv_lshlrev_b32 v4, 17, v4")
    A("v_lshrrev_b32 v5, 2, v2\nv_lshl_add_u32 v4, v5, 12, v4")
    A("v_bfe_u32 v5, v1, 4, 2\nv_lshl_add_u32 v4, v5, 10, v4")
    A("v_and_b32 v5, 3, v2\nv_lshl_add_u32 v4, v5, 8, v4")
    A("v_and_b32 v5, 15, v1\nv_lshl_add_u32 v4, v5, 4, v4")
    A("s_mov_b32 s8, 0xffff0000")
    A("s_waitcnt vmcnt(0)")
    for i in range(16):
        A(f"v_lshlrev_b32 v{24+2*i}, 16, v{8+i}")
        A(f"v_and_b32 v{25+2*i}, s8, v{8+i}")
    def reduce32(r, t):
        A(f"v_add_f32_dpp v{r}, v{r}, v{r} quad_perm:[1,0,3,2] row_mask:0xf bank_mask:0xf")
        A(f"v_add_f32_dpp v{r}, v{r}, v{r} quad_perm:[2,3,0,1] row_mask:0xf bank_mask:0xf")
        A(f"v_add_f32_dpp v{r}, v{r}, v{r} row_half_mirror row_mask:0xf bank_mask:0xf")
        A(f"v_add_f32_dpp v{r}, v{r}, v{r} row_mirror row_mask:0xf bank_mask:0xf")
        A(f"ds_swizzle_b32 v{t}, v{r} offset:0x401F")
        A("s_waitcnt lgkmcnt(0)")
        A(f"v_add_f32 v{r}, v{r}, v{t}")
    for i in range(4):
        A(f"v_add_f32 v{56+i}, v{24+i}, v{28+i}")
    for b in range(2, 8):
        for i in range(4):
            A(f"v_add_f32 v{56+i}, v{56+i}, v{24+4*b+i}")
    A("v_add_f32 v56, v56, v57\nv_add_f32 v58, v58, v59\nv_add_f32 v56, v56, v58")
    reduce32(56, 57)
    A("v_mul_f32 v56, 0x3a800000, v56")
    for i in range(4):
        A(f"v_mov_b32 v{60+i}, 0")
    for i in range(32):
        A(f"v_sub_f32 v{8+(i%8)}, v{24+i}, v56")
        A(f"v_fmac_f32 v{60+(i%4)}, v{8+(i%8)}, v{8+(i%8)}")
    A("v_add_f32 v60, v60, v61\nv_add_f32 v62, v62, v63\nv_add_f32 v60, v60, v62")
    reduce32(60, 57)
    A("v_mul_f32 v60, 0x3a800000, v60")
    A("v_cvt_pk_bf16_f32 v60, v60, v60\nv_and_b32 v60, s8, v60")
    A(f"v_add_f32 v60, {EPS5}, v60")
    A("v_cvt_pk_bf16_f32 v60, v60, v60\nv_and_b32 v60, s8, v60")
    A("v_sqrt_f32 v60, v60")
    A("v_cvt_pk_bf16_f32 v60, v60, v60\nv_and_b32 v60, s8, v60")
    A("v_rcp_f32 v60, v60")
    A("v_cvt_pk_bf16_f32 v56, v56, v56\nv_and_b32 v56, s8, v56")
    for i in range(16):
        a, b = 24 + 2 * i, 25 + 2 * i
        A(f"v_sub_f32 v{a}, v{a}, v56\nv_sub_f32 v{b}, v{b}, v56")
        A(f"v_cvt_pk_bf16_f32 v{b}, v{a}, v{b}")
        A(f"v_lshlrev_b32 v{a}, 16, v{b}\nv_and_b32 v{b}, s8, v{b}")
        A(f"v_mul_f32 v{a}, v{a}, v60\nv_mul_f32 v{b}, v{b}, v60")
        A(f"v_cvt_pk_bf16_f32 v{8+i}, v{a}, v{b}")
    for j in range(4):
        A(f"global_store_dwordx4 v4, v[{8+4*j}:{11+4*j}], s[6:7]")
        if j < 3:
            A("v_add_u32 v4, 0x8000, v4")
    A("L0_end:")
    A("s_endpgm")
    kd(A, "ln_kernel", 64, 16, 64)

K1_SLOT = 40960
class K1:
    VA = [8, 9, 10, 11]; VH = [12, 13]
    VO6, VO7, VOH, VX0, VX1 = 14, 15, 16, 17, 18
    WR = 32
    def __init__(self, A, typ):
        self.A = A; self.typ = typ
        if typ == "Q":
            ag = [12, 13, 14, 15, 16, 17, 18, 19]
        else:
            ag = [4, 5, 12, 13, 14, 15, 18, 19]
        self.acc = {}
        na = nv = 0
        for nb in range(20):
            for mb in range(4):
                if nb in ag:
                    self.acc[(nb, mb)] = ("a", na); na += 4
                else:
                    self.acc[(nb, mb)] = ("v", 64 + nv); nv += 4
        assert na == 128 and nv == 192
    def accr(self, nb, mb):
        f, r = self.acc[(nb, mb)]
        return f"{f}[{r}:{r+3}]"
    def wfrag(self, nb, kh):
        return self.WR + (nb % 4) * 8 + kh * 4
    def xfrag(self, xs, kh, mb):
        return 128 + xs * 32 + (kh * 4 + mb) * 4
    def rd(self, nb, kh, h4):
        grp, sub = nb // 4, nb % 4
        r = self.wfrag(nb, kh) + 2 * h4
        if self.typ == "KV" and grp == 4:
            v, imm = self.VH[sub % 2], 32768 + (sub // 2) * 4096 + kh * 2048 + h4 * 256
        else:
            v, imm = self.VA[sub], grp * 8192 + kh * 4096 + h4 * 512
        return f"ds_read_b64_tr_b16 v[{r}:{r+1}], v{v} offset:{imm}"
    def loads(self, slot):
        L = []
        dma = []
        for grp in range(5):
            for half in range(2):
                s = 20 + 4 * grp
                isqkv = (grp == 0) or (self.typ == "KV" and grp == 1)
                if self.typ == "KV" and grp == 4:
                    pre = f"s_add_u32 m0, s58, {slot*K1_SLOT + 32768 + half*2048}"
                    ins = f"buffer_load_dwordx4 v{self.VOH}, s[{s}:{s+3}], s{54+half} offen lds"
                else:
                    pre = f"s_add_u32 m0, s57, {slot*K1_SLOT + grp*8192 + half*4096}"
                    vo = self.VO6 if isqkv else self.VO7
                    so = (52 if isqkv else 54) + half
                    ins = f"buffer_load_dwordx4 v{vo}, s[{s}:{s+3}], s{so} offen lds"
                dma.append((pre, ins))
        xl = []
        for kh in range(2):
            for mb in range(4):
                r = self.xfrag(slot, kh, mb)
                vx = self.VX0 if kh == 0 else self.VX1
                xl.append((None, f"buffer_load_dwordx4 a[{r}:{r+3}], v{vx}, s[40:43], s56 offen offset:{mb*1024}"))
        while dma or xl:
            if dma: L.append(dma.pop(0))
            if xl: L.append(xl.pop(0))
        return L
    def adv(self):
        return [f"s_add_u32 s52, s52, {64*6144}", f"s_add_u32 s53, s53, {64*6144}",
                f"s_add_u32 s54, s54, {64*7168}", f"s_add_u32 s55, s55, {64*7168}", "s_add_u32 s56, s56, 8192"]
    def stage(self, slot, load, vmw, last=False):
        A = self.A
        L = self.loads((slot + 3) % 4) if load else []
        delta = K1_SLOT if slot < 3 else -3 * K1_SLOT
        upd = [f"v_add_u32 v{v}, {delta & 0xffffffff:#x}, v{v}" for v in self.VA + (self.VH if self.typ == "KV" else [])]
        for nb in range(20):
            fill = [[] for _ in range(8)]
            nxt = (nb + 2) % 20
            reads = [self.rd(nxt, kh, h4) for kh in range(2) for h4 in range(2)]
            if nb < 18:
                for i, j in enumerate((0, 2, 4, 6)):
                    fill[j].append(reads[i])
                if L:
                    pre, ins = L[nb]
                    if pre: fill[1].append(pre)
                    fill[3].append(ins)
            elif not last:
                if nb == 18:
                    fill[0] += upd[0:2]
                    fill[1].append(f"s_waitcnt vmcnt({vmw}) lgkmcnt(0)")
                    fill[1].append("s_barrier")
                    for i, j in enumerate((2, 3, 4, 5)):
                        fill[j].append(reads[i])
                    fill[6] += upd[2:4]
                    fill[7] += upd[4:6]
                else:
                    for i, j in enumerate((0, 2, 4, 6)):
                        fill[j].append(reads[i])
                    if load:
                        a = self.adv()
                        fill[1] += a[0:2]; fill[3] += a[2:4]; fill[5] += a[4:5]
            if not (last and nb == 19):
                if last and nb >= 17:
                    fill[7].append("s_waitcnt lgkmcnt(%d)" % (4 if nb == 17 else 0))
                elif nb != 18:
                    fill[7].append("s_waitcnt lgkmcnt(4)")
            j = 0
            swapped = self.typ == "KV" and nb < 8
            for mb in range(4):
                for kh in range(2):
                    w = self.wfrag(nb, kh); x = self.xfrag(slot, kh, mb)
                    wa, xa = f"v[{w}:{w+3}]", f"a[{x}:{x+3}]"
                    acc = self.accr(nb, mb)
                    if swapped:
                        A(f"v_mfma_f32_16x16x32_bf16 {acc}, {xa}, {wa}, {acc}")
                    else:
                        A(f"v_mfma_f32_16x16x32_bf16 {acc}, {wa}, {xa}, {acc}")
                    for t in fill[j]: A(t)
                    j += 1
    def body(self):
        A = self.A; t = self.typ
        for s in range(3):
            for pre, ins in self.loads(s):
                if pre: A(pre)
                A(ins)
            for a in self.adv(): A(a)
        for (nb, mb), (f, r) in self.acc.items():
            for i in range(4):
                A(f"v_accvgpr_write_b32 a{r+i}, 0" if f == "a" else f"v_mov_b32 v{r+i}, 0")
        A("s_waitcnt vmcnt(36)\ns_barrier")
        for nb in range(2):
            for kh in range(2):
                for h4 in range(2):
                    A(self.rd(nb, kh, h4))
        A("s_mov_b32 s59, 3")
        A("s_waitcnt lgkmcnt(4)")
        A.raw(".p2align 6")
        A(f"L1{t}_loop:")
        for s in range(4):
            self.stage(s, True, 36)
        A(f"s_sub_u32 s59, s59, 1\ns_cmp_lg_u32 s59, 0\ns_cbranch_scc1 L1{t}_loop")
        self.stage(0, True, 36)
        self.stage(1, False, 18)
        self.stage(2, False, 0)
        self.stage(3, False, 0, last=True)
        A("s_barrier")
    def val(self, nb, mb, i, tmp):
        f, r = self.acc[(nb, mb)]
        if f == "v": return r + i
        self.A(f"v_accvgpr_read_b32 v{tmp}, a{r+i}")
        return tmp
    def phi4(self, r, dst):
        A = self.A
        for i in range(4):
            A(f"v_mul_f32 v{20+i}, s62, v{r+i}")
        for i in range(4):
            A(f"v_exp_f32_e64 v{20+i}, v{20+i} clamp")
        for i in range(4):
            A(f"v_max_f32 v{r+i}, 0, v{r+i}")
        for i in range(4):
            A(f"v_add_f32 v{r+i}, v{r+i}, v{20+i}")
        for i in range(4):
            A(f"v_add_f32 v{r+i}, s64, v{r+i}")
        A(f"v_cvt_pk_bf16_f32 v{dst}, v{r}, v{r+1}")
        A(f"v_cvt_pk_bf16_f32 v{dst+1}, v{r+2}, v{r+3}")
    def gu(self, gb, ub, mb, kstep_s, imm_k, dst):
        A = self.A
        for p in range(2):
            f, g = self.acc[(gb + p, mb)]; assert f == "v"
            fu, u = self.acc[(ub + p, mb)]; assert fu == "a"
            for i in range(4):
                A(f"v_mul_f32 v{20+i}, s63, v{g+i}")
            for i in range(4):
                A(f"v_exp_f32 v{20+i}, v{20+i}")
            for i in range(4):
                A(f"v_accvgpr_read_b32 v{24+i}, a{u+i}")
            for i in range(4):
                A(f"v_add_f32 v{20+i}, 1.0, v{20+i}")
            for i in range(4):
                A(f"v_rcp_f32 v{20+i}, v{20+i}")
            for i in range(4):
                A(f"v_mul_f32 v{g+i}, v{g+i}, v{24+i}")
            for i in range(4):
                A(f"v_mul_f32 v{g+i}, v{g+i}, v{20+i}")
            A(f"v_cvt_pk_bf16_f32 v{dst+2*p}, v{g}, v{g+1}")
            A(f"v_cvt_pk_bf16_f32 v{dst+2*p+1}, v{g+2}, v{g+3}")
        self.store_act(dst, mb, kstep_s, imm_k)
    def store_act(self, dst, mb, kstep_s, imm_k):
        vo = 2 if mb < 2 else 3
        self.A(f"buffer_store_dwordx4 v[{dst}:{dst+3}], v{vo}, s[44:47], s{kstep_s} offen offset:{imm_k*2048 + (mb&1)*1024}")
    def epi_common(self):
        A = self.A
        A(f"s_mov_b32 s62, {LOG2E:#x}\ns_mov_b32 s63, {NLOG2E:#x}\ns_mov_b32 s64, {EPS6:#x}")
        A("v_lshlrev_b32 v2, 4, v1")
        A(f"v_add_u32 v3, {144*2048}, v2")
    def epi_kv(self):
        A = self.A
        self.epi_common()
        for db in range(4):
            for mb in range(4):
                f, r = self.acc[(db, mb)]
                self.phi4(r, 32 + (db * 2 + mb // 2) * 4 + (mb % 2) * 2)
        for eb in range(4):
            for mb in range(4):
                vs = [self.val(4 + eb, mb, i, 20 + i) for i in range(4)]
                d = 64 + (eb * 2 + mb // 2) * 4 + (mb % 2) * 2
                A(f"v_cvt_pk_bf16_f32 v{d}, v{vs[0]}, v{vs[1]}")
                A(f"v_cvt_pk_bf16_f32 v{d+1}, v{vs[2]}, v{vs[3]}")
        for i in range(4):
            A(f"v_mov_b32 v{28+i}, 0x3f803f80")
        for sg in range(2):
            for hd in range(2):
                for db in range(2):
                    pk = 32 + ((hd * 2 + db) * 2 + sg) * 4
                    for eb in range(2):
                        vv = 64 + ((hd * 2 + eb) * 2 + sg) * 4
                        d = 128 + ((hd * 2 + eb) * 2 + db) * 4
                        c = "0" if sg == 0 else f"a[{d}:{d+3}]"
                        A(f"v_mfma_f32_16x16x32_bf16 a[{d}:{d+3}], v[{pk}:{pk+3}], v[{vv}:{vv+3}], {c}")
                    d = 160 + (hd * 2 + db) * 4
                    c = "0" if sg == 0 else f"a[{d}:{d+3}]"
                    A(f"v_mfma_f32_16x16x32_bf16 a[{d}:{d+3}], v[{pk}:{pk+3}], v[28:31], {c}")
        A("s_mul_i32 s60, s17, 12288")
        A("v_add_u32 v4, s60, v2")
        for q in range(12):
            A(f"ds_write_b128 v4, a[{128+q*4}:{131+q*4}] offset:{q*1024}")
        A("s_waitcnt lgkmcnt(0)\ns_barrier")
        A("s_lshl_b32 s60, s17, 11\nv_add_u32 v4, s60, v2")
        A("s_lshl_b32 s60, s17, 10\nv_add_u32 v5, s60, v2")
        for w in range(4):
            A(f"ds_read_b128 v[{64+w*12}:{67+w*12}], v4 offset:{w*12288}")
            A(f"ds_read_b128 v[{68+w*12}:{71+w*12}], v4 offset:{w*12288+1024}")
            A(f"ds_read_b128 v[{72+w*12}:{75+w*12}], v5 offset:{w*12288+8192}")
        A("v_lshrrev_b32 v6, 4, v1\nv_lshlrev_b32 v6, 4, v6")
        A("s_lshl_b32 s60, s17, 6\ns_add_u32 s60, s60, 8192\nv_add_u32 v6, s60, v6")
        A("s_waitcnt lgkmcnt(0)")
        for i in range(12):
            A(f"v_add_f32 v{64+i}, v{64+i}, v{76+i}")
            A(f"v_add_f32 v{88+i}, v{88+i}, v{100+i}")
        for i in range(12):
            A(f"v_add_f32 v{64+i}, v{64+i}, v{88+i}")
        A(f"s_mul_i32 s61, s15, {KVP_STRIDE}")
        A("buffer_store_dwordx4 v[64:67], v4, s[48:51], s61 offen sc0 sc1")
        A("buffer_store_dwordx4 v[68:71], v4, s[48:51], s61 offen offset:1024 sc0 sc1")
        A("v_and_b32 v7, 15, v1\nv_cmp_eq_u32 vcc, 0, v7")
        A("s_and_saveexec_b64 s[66:67], vcc")
        A("buffer_store_dwordx4 v[72:75], v6, s[48:51], s61 offen sc0 sc1")
        A("s_mov_b64 exec, s[66:67]")
        dsts = [32, 36, 40, 44]
        n = 0
        for mb in range(4):
            self.gu(8, 12, mb, 68, 0, dsts[n % 4]); n += 1
        A("s_waitcnt vmcnt(4)\ns_barrier")
        A("s_cmp_lg_u32 s17, 0\ns_cbranch_scc1 L1KV_noflag")
        A("s_lshl_b32 s60, s18, 2\nv_mov_b32 v6, s60\nv_mov_b32 v7, 1")
        A("v_cmp_eq_u32 vcc, 0, v1")
        A("s_and_saveexec_b64 s[66:67], vcc")
        A("global_atomic_add v6, v7, s[12:13] sc1")
        A("s_mov_b64 exec, s[66:67]")
        A("L1KV_noflag:")
        for mb in range(4):
            self.gu(10, 14, mb, 68, 1, dsts[n % 4]); n += 1
        for mb in range(4):
            self.gu(16, 18, mb, 69, 0, dsts[n % 4]); n += 1
        A("s_endpgm")
    def epi_q(self):
        A = self.A
        self.epi_common()
        dsts = [28, 4]
        n = 0
        for j in range(4):
            for mb in range(4):
                self.gu(4 + 2 * j, 12 + 2 * j, mb, 68 + j // 2, j % 2, dsts[n % 2]); n += 1
        for hd in range(2):
            for db in range(2):
                for mb in range(4):
                    f, r = self.acc[(hd * 2 + db, mb)]
                    self.phi4(r, 32 + (hd * 4 + mb) * 4 + db * 2)
        A("s_lshl_b32 s60, s18, 2\nv_mov_b32 v6, s60")
        A("s_mov_b32 s61, 0x400000")
        A("L1Q_poll:")
        A("global_load_dword v7, v6, s[12:13] sc0 sc1")
        A("s_waitcnt vmcnt(0)")
        A("v_readfirstlane_b32 s60, v7")
        A("s_cmp_ge_u32 s60, 8\ns_cbranch_scc1 L1Q_go")
        A("s_sleep 1")
        A("s_sub_u32 s61, s61, 1\ns_cmp_lg_u32 s61, 0\ns_cbranch_scc1 L1Q_poll")
        A("L1Q_go:")
        A("s_lshl_b32 s60, s17, 11\nv_add_u32 v4, s60, v2")
        A("v_lshrrev_b32 v6, 4, v1\nv_lshlrev_b32 v6, 4, v6")
        A("s_lshl_b32 s60, s17, 6\ns_add_u32 s60, s60, 8192\nv_add_u32 v6, s60, v6")
        for p in range(8):
            b = 128 + p * 12
            A(f"s_mov_b32 s61, {p*KVP_STRIDE}")
            A(f"buffer_load_dwordx4 v[{b}:{b+3}], v4, s[48:51], s61 offen sc0 sc1")
            A(f"buffer_load_dwordx4 v[{b+4}:{b+7}], v4, s[48:51], s61 offen offset:1024 sc0 sc1")
            A(f"buffer_load_dwordx4 v[{b+8}:{b+11}], v6, s[48:51], s61 offen sc0 sc1")
        for p in range(1, 8):
            A(f"s_waitcnt vmcnt({(7-p)*3})")
            for i in range(12):
                A(f"v_add_f32 v{128+i}, v{128+i}, v{128+p*12+i}")
        for i in range(6):
            A(f"v_cvt_pk_bf16_f32 v{140+i}, v{128+2*i}, v{129+2*i}")
        A("s_lshl_b32 s60, s17, 10\nv_add_u32 v4, s60, v2")
        A("ds_write_b128 v4, v[140:143]")
        A("s_lshr_b32 s60, s17, 1\ns_lshl_b32 s60, s60, 10\ns_and_b32 s61, s17, 1\ns_lshl_b32 s61, s61, 3\ns_add_u32 s60, s60, s61")
        A("v_add_u32 v4, s60, v2")
        A("ds_write_b64 v4, v[144:145] offset:4096")
        A("s_waitcnt lgkmcnt(0)\ns_barrier")
        for i in range(6):
            A(f"ds_read_b128 v[{128+i*4}:{131+i*4}], v2 offset:{i*1024}")
        A("s_waitcnt lgkmcnt(0)")
        for hd in range(2):
            for mb in range(4):
                pq = 32 + (hd * 4 + mb) * 4
                d = 160 + (hd * 4 + mb) * 12
                for eb in range(2):
                    kf = 128 + (hd * 2 + eb) * 4
                    A(f"v_mfma_f32_16x16x32_bf16 v[{d+eb*4}:{d+eb*4+3}], v[{kf}:{kf+3}], v[{pq}:{pq+3}], 0")
                zf = 144 + hd * 4
                A(f"v_mfma_f32_16x16x32_bf16 v[{d+8}:{d+11}], v[{zf}:{zf+3}], v[{pq}:{pq+3}], 0")
        for hd in range(2):
            for mb in range(4):
                d = 160 + (hd * 4 + mb) * 12
                A(f"v_add_f32 v{d+8}, s64, v{d+8}")
                A(f"v_rcp_f32 v{d+8}, v{d+8}")
                for i in range(8):
                    A(f"v_mul_f32 v{d+i}, v{d+i}, v{d+8}")
                o = 64 + (hd * 4 + mb) * 4
                for i in range(4):
                    A(f"v_cvt_pk_bf16_f32 v{o+i}, v{d+2*i}, v{d+2*i+1}")
                self.store_act(o, mb, 70, hd)
        A("s_endpgm")

def k1(A):
    head(A, "g1_kernel")
    A("s_cmp_ge_u32 s2, 256\ns_cbranch_scc1 L1_end")
    A("s_load_dwordx2 s[4:5], s[0:1], 8")
    A("s_load_dwordx4 s[8:11], s[0:1], 32")
    A("s_load_dwordx4 s[12:15], s[0:1], 64")
    A("v_and_b32 v1, 63, v0")
    A("v_lshrrev_b32 v2, 6, v0")
    A("v_readfirstlane_b32 s17, v2")
    A("s_waitcnt lgkmcnt(0)")
    A("s_mov_b32 s6, s14\ns_mov_b32 s7, s15")
    A("s_and_b32 s14, s2, 7")
    A("s_lshr_b32 s16, s2, 3")
    A("s_and_b32 s15, s16, 7")
    A("s_lshr_b32 s16, s16, 3")
    A("s_and_b32 s19, s16, 1")
    A("s_lshl_b32 s18, s14, 1\ns_add_u32 s18, s18, s19")
    A("s_lshl_b32 s60, s15, 2\ns_add_u32 s60, s60, s17")
    A("s_lshl_b32 s61, s60, 17")
    srd(A, 40, 6, 7, "s61", 131072)
    A(f"s_mul_i32 s61, s60, {2*144*2048}\ns_add_u32 s61, s61, {ACT_OFF}")
    srd(A, 44, 6, 7, "s61", 2 * 144 * 2048)
    A(f"s_mul_i32 s61, s18, {8*KVP_STRIDE}\ns_add_u32 s61, s61, {KVP_OFF}")
    srd(A, 48, 6, 7, "s61", 8 * KVP_STRIDE)
    A("v_lshrrev_b32 v3, 4, v1\nv_bfe_u32 v4, v1, 2, 2\nv_and_b32 v5, 3, v1")
    A("v_lshl_add_u32 v6, v3, 3, v4")
    A("v_lshrrev_b32 v7, 1, v4\nv_and_b32 v19, 1, v3\nv_lshl_or_b32 v7, v19, 1, v7")
    for nb in range(4):
        A(f"v_xor_b32 v20, {nb}, v7\nv_lshlrev_b32 v20, 5, v20")
        A(f"v_lshl_add_u32 v20, v6, 7, v20\nv_lshl_add_u32 v{K1.VA[nb]}, v5, 3, v20")
    for nb in range(2):
        A(f"v_xor_b32 v20, {nb}, v19\nv_lshlrev_b32 v20, 5, v20")
        A(f"v_lshl_add_u32 v20, v6, 6, v20\nv_lshl_add_u32 v{K1.VH[nb]}, v5, 3, v20")
    A("v_lshrrev_b32 v3, 3, v1\ns_lshl_b32 s60, s17, 3\nv_add_u32 v3, s60, v3")
    A("v_bfe_u32 v4, v1, 4, 1\ns_and_b32 s60, s17, 1\ns_lshl_b32 s60, s60, 1\nv_or_b32 v4, s60, v4")
    A("v_bfe_u32 v5, v1, 1, 2\nv_xor_b32 v5, v5, v4\nv_lshlrev_b32 v5, 5, v5")
    A("v_and_b32 v6, 1, v1\nv_lshl_add_u32 v5, v6, 4, v5")
    A(f"v_mul_u32_u24 v{K1.VO6}, 6144, v3\nv_add_u32 v{K1.VO6}, v{K1.VO6}, v5")
    A(f"v_mul_u32_u24 v{K1.VO7}, 7168, v3\nv_add_u32 v{K1.VO7}, v{K1.VO7}, v5")
    A("v_lshrrev_b32 v3, 2, v1\ns_and_b32 s60, s17, 1\ns_lshl_b32 s60, s60, 4\nv_add_u32 v3, s60, v3")
    A("v_bfe_u32 v4, v1, 1, 1\nv_lshrrev_b32 v5, 5, v1\nv_xor_b32 v4, v4, v5\nv_lshlrev_b32 v4, 5, v4")
    A("v_lshl_add_u32 v4, v6, 4, v4")
    A(f"v_mul_u32_u24 v{K1.VOH}, 7168, v3\nv_add_u32 v{K1.VOH}, v{K1.VOH}, v4")
    A(f"v_lshlrev_b32 v{K1.VX0}, 4, v1\nv_add_u32 v{K1.VX1}, 4096, v{K1.VX0}")
    A(f"s_mov_b32 s52, 0\ns_mov_b32 s53, {32*6144}\ns_mov_b32 s54, 0\ns_mov_b32 s55, {32*7168}\ns_mov_b32 s56, 0")
    A("s_lshl_b32 s57, s17, 10")
    A("s_lshr_b32 s58, s17, 1\ns_lshl_b32 s58, s58, 12\ns_and_b32 s60, s17, 1\ns_lshl_b32 s60, s60, 10\ns_add_u32 s58, s58, s60")
    A("s_mul_i32 s65, s14, 896")
    A("s_lshl_b32 s66, s18, 7")
    NQ, NF = 1024 * 6144, 1024 * 7168
    def wsrd(d, lo, off, tot):
        A(f"s_sub_u32 s61, {tot}, {off}")
        srd(A, d, lo, lo + 1, off, "s61")
    A("s_cmp_ge_u32 s16, 2\ns_cbranch_scc1 L1_typeQ")
    A("s_add_u32 s60, s66, 2048"); wsrd(20, 4, "s60", NQ)
    A("s_add_u32 s60, s66, 4096"); wsrd(24, 4, "s60", NQ)
    A("s_lshl_b32 s60, s19, 8\ns_add_u32 s60, s60, 512\ns_add_u32 s60, s60, s65")
    wsrd(28, 8, "s60", NF); wsrd(32, 10, "s60", NF)
    A("s_lshl_b32 s68, s60, 5")
    A("s_lshl_b32 s60, s19, 6\ns_add_u32 s60, s60, 640\ns_add_u32 s60, s60, s65")
    A("s_lshl_b32 s69, s60, 5")
    A("s_cmp_ge_u32 s17, 2\ns_cselect_b32 s66, s10, s8\ns_cselect_b32 s67, s11, s9")
    wsrd(36, 66, "s60", NF)
    kv = K1(A, "KV"); kv.body(); kv.epi_kv()
    A("L1_typeQ:")
    wsrd(20, 4, "s66", NQ)
    A("s_lshl_b32 s60, s19, 8\ns_add_u32 s60, s60, s65")
    wsrd(24, 8, "s60", NF); wsrd(32, 10, "s60", NF)
    A("s_lshl_b32 s68, s60, 5\ns_add_u32 s69, s68, 4096")
    A("s_add_u32 s60, s60, 128")
    wsrd(28, 8, "s60", NF); wsrd(36, 10, "s60", NF)
    A(f"s_lshl_b32 s70, s18, 12\ns_add_u32 s70, s70, {112*2048}")
    q = K1(A, "Q"); q.body(); q.epi_q()
    A("L1_end:")
    A("s_endpgm")
    kd(A, "g1_kernel", 512, 80, 256)

NA2 = 3
class K2:
    VA = [8, 9, 10, 11]; VO = [12, 13]; VX = 14
    WR = 32
    def __init__(self, A): self.A = A
    def wfrag(self, nb, k): return self.WR + (nb % 4) * 8 + k * 4
    def xfrag(self, xs, k, mb): return 64 + xs * 16 + (k * 2 + mb) * 4
    def rd(self, slot, nb, k, h):
        r = self.wfrag(nb, k) + 2 * h
        imm = (slot & 1) * 32768 + (nb >> 2) * 16384 + k * 4096 + h * 2048
        return f"ds_read_b64_tr_b16 v[{r}:{r+1}], v{self.VA[nb & 3]} offset:{imm}"
    def loads(self, slot):
        L = []
        for j in range(2):
            for grp in range(2):
                pre = f"s_add_u32 m0, s30, {slot*32768 + grp*16384 + j*1024 - grp*128}"
                off = " offset:128" if grp else ""
                L.append((pre, f"buffer_load_dwordx4 v{self.VO[j]}, s[20:23], s28 offen{off} lds"))
                k, mb = j, grp
                r = self.xfrag(slot, k, mb)
                L.append((None, f"buffer_load_dwordx4 v[{r}:{r+3}], v{self.VX}, s[24:27], s29 offen offset:{(k*2+mb)*1024}"))
        return L
    def adv(self):
        return [f"s_add_u32 s28, s28, {128*2048}", "s_add_u32 s29, s29, 8192"]
    def stage(self, slot, accb, extra=None):
        A = self.A
        L = self.loads((slot + 3) % 4)
        nslot = (slot + 1) % 4
        upd = [f"v_xor_b32 v{v}, 0x10000, v{v}" for v in self.VA] if slot % 2 == 1 else []
        fill = [[] for _ in range(32)]
        for nb in range(8):
            nxt = (nb + 2) % 8
            sl = slot if nb < 6 else nslot
            reads = [self.rd(sl, nxt, k, h) for k in range(2) for h in range(2)]
            if nb == 6:
                fill[24] += upd[0:2]
                fill[24].append("s_waitcnt vmcnt(16) lgkmcnt(0)")
                fill[24].append("s_barrier")
                fill[25] += reads[0:2]; fill[26] += reads[2:3]; fill[27] += reads[3:4]
                fill[26] += upd[2:4]
            else:
                for i in range(4): fill[nb * 4 + i].append(reads[i])
                fill[nb * 4 + 3].append("s_waitcnt lgkmcnt(4)")
        for i, (pre, ins) in enumerate(L):
            p = i * 3
            if pre: fill[p].append(pre)
            fill[p + 1].append(ins)
        fill[28] += self.adv()
        if extra: fill[30] += extra
        j = 0
        for nb in range(8):
            for mb in range(2):
                for k in range(2):
                    w = self.wfrag(nb, k); x = self.xfrag(slot, k, mb)
                    a = accb + (nb * 2 + mb) * 4
                    A(f"v_mfma_f32_16x16x32_bf16 a[{a}:{a+3}], v[{w}:{w+3}], v[{x}:{x+3}], a[{a}:{a+3}]")
                    for t in fill[j]: A(t)
                    j += 1

def k2(A):
    head(A, "g2_kernel")
    K = K2(A)
    A("s_cmp_ge_u32 s2, 256\ns_cbranch_scc1 L2_end")
    A("s_load_dwordx2 s[4:5], s[0:1], 0")
    A("s_load_dwordx2 s[6:7], s[0:1], 16")
    A("s_load_dwordx4 s[8:11], s[0:1], 48")
    A("s_load_dwordx2 s[12:13], s[0:1], 72")
    A("v_and_b32 v1, 63, v0")
    A("v_lshrrev_b32 v2, 6, v0")
    A("v_readfirstlane_b32 s17, v2")
    A("s_and_b32 s14, s2, 7\ns_lshr_b32 s15, s2, 3")
    A("s_lshr_b32 s16, s15, 4")
    A("s_lshr_b32 s18, s14, 1\ns_lshl_b32 s18, s18, 2\ns_and_b32 s19, s15, 3\ns_add_u32 s18, s18, s19")
    A("s_and_b32 s19, s14, 1\ns_lshl_b32 s19, s19, 2\ns_bfe_u32 s31, s15, 0x20002\ns_add_u32 s19, s19, s31")
    A("s_and_b32 s32, s17, 3\ns_lshr_b32 s33, s17, 2")
    A("s_lshl_b32 s34, s19, 8")
    A("s_waitcnt lgkmcnt(0)")
    A("s_add_u32 s36, s8, s34\ns_addc_u32 s37, s9, 0")
    A(f"s_sub_u32 s38, {3584*2048}, s34")
    A("s_lshl_b32 s35, s18, 2\ns_add_u32 s35, s35, s32")
    A(f"s_mul_i32 s31, s35, {144*2048}\ns_add_u32 s31, s31, {ACT_OFF}")
    srd(A, 24, 12, 13, "s31", 144 * 2048)
    A("s_lshl_b32 s39, s18, 3\ns_add_u32 s39, s39, s19")
    A(f"s_lshl_b32 s31, s39, 16\ns_add_u32 s31, s31, {P_OFF}\ns_lshl_b32 s44, s32, 14\ns_add_u32 s31, s31, s44")
    srd(A, 40, 12, 13, "s31", 16384)
    A("v_lshrrev_b32 v3, 2, v1")
    A("v_bfe_u32 v4, v1, 3, 2\nv_and_b32 v5, 3, v1")
    A("s_lshl_b32 s31, s33, 13")
    for nb in range(4):
        A(f"v_xor_b32 v6, {nb}, v4\nv_lshlrev_b32 v6, 5, v6\nv_lshl_add_u32 v6, v3, 7, v6")
        A(f"v_lshl_add_u32 v6, v5, 3, v6\nv_add_u32 v{K.VA[nb]}, s31, v6")
    A("v_lshrrev_b32 v3, 3, v1\ns_lshl_b32 s31, s17, 4\nv_add_u32 v3, s31, v3")
    A("v_lshrrev_b32 v4, 4, v1\nv_bfe_u32 v5, v1, 1, 2\nv_xor_b32 v5, v5, v4\nv_lshlrev_b32 v5, 5, v5")
    A("v_and_b32 v6, 1, v1\nv_lshl_add_u32 v5, v6, 4, v5")
    A(f"v_lshl_add_u32 v{K.VO[0]}, v3, 11, v5\nv_add_u32 v{K.VO[1]}, {8*2048}, v{K.VO[0]}")
    A(f"v_lshlrev_b32 v2, 4, v1\ns_lshl_b32 s31, s33, 12\nv_add_u32 v{K.VX}, s31, v2")
    A("s_lshl_b32 s30, s17, 11")
    A("s_mov_b32 s23, 0x20000")
    A("s_cmp_eq_u32 s16, 0\ns_cbranch_scc1 L2_initB")
    A("s_add_u32 s20, s6, s34\ns_addc_u32 s21, s7, 0")
    A(f"s_sub_u32 s22, {1024*2048}, s34")
    A(f"s_mov_b32 s28, 0\ns_mov_b32 s29, {112*2048}\ns_mov_b32 s46, {NA2}")
    A("s_branch L2_init")
    A("L2_initB:")
    A("s_mov_b32 s20, s36\ns_mov_b32 s21, s37\ns_mov_b32 s22, s38")
    A(f"s_mov_b32 s28, {NA2*512*2048}\ns_mov_b32 s29, {NA2*16*2048}\ns_mov_b32 s46, {7-NA2}")
    A("L2_init:")
    for s in range(3):
        for pre, ins in K.loads(s):
            if pre: A(pre)
            A(ins)
        for a in K.adv(): A(a)
    for i in range(128):
        A(f"v_accvgpr_write_b32 a{i}, 0")
    A("s_waitcnt vmcnt(16)\ns_barrier")
    for nb in range(2):
        for k in range(2):
            for h in range(2):
                A(K.rd(0, nb, k, h))
    A("s_mov_b32 s45, 2")
    A("s_waitcnt lgkmcnt(4)")
    A("s_cmp_eq_u32 s16, 0\ns_cbranch_scc1 L2_loop2")
    A.raw(".p2align 6")
    A("L2_loop1:")
    sw = ["s_cmp_eq_u32 s45, 1", "s_cselect_b32 s20, s36, s20", "s_cselect_b32 s21, s37, s21", "s_cselect_b32 s22, s38, s22",
          "s_cselect_b32 s28, 0, s28", "s_cselect_b32 s29, 0, s29"]
    for s in range(4):
        K.stage(s, 64, sw if s == 0 else None)
    A("s_sub_u32 s45, s45, 1\ns_cmp_lg_u32 s45, 0\ns_cbranch_scc1 L2_loop1")
    A.raw(".p2align 6")
    A("L2_loop2:")
    sw = ["s_cmp_eq_u32 s46, 1", "s_cselect_b32 s22, 0, s22", "s_cselect_b32 s26, 0, s26"]
    for s in range(4):
        K.stage(s, 0, sw if s == 0 else None)
    A("s_sub_u32 s46, s46, 1\ns_cmp_lg_u32 s46, 0\ns_cbranch_scc1 L2_loop2")
    A("s_waitcnt vmcnt(0) lgkmcnt(0)\ns_barrier")
    A("s_lshl_b32 s31, s17, 14\nv_add_u32 v3, s31, v2")
    A("s_xor_b32 s31, s17, 4\ns_lshl_b32 s31, s31, 14\nv_add_u32 v4, s31, v2")
    A(f"s_lshl_b32 s31, s39, 8\ns_add_u32 s31, s31, {FLAG_OFF}\nv_mov_b32 v5, s31")
    A(f"s_mov_b32 s47, {NLOG2E:#x}\ns_mov_b32 s48, 0xffff0000")
    A("v_and_b32 v6, 15, v1\ns_lshl_b32 s31, s35, 5\nv_add_u32 v6, s31, v6\nv_lshlrev_b32 v6, 11, v6")
    A("v_lshrrev_b32 v7, 4, v1\nv_lshl_add_u32 v6, v7, 3, v6\nv_add_u32 v6, s34, v6")
    A(f"v_add_u32 v7, {16*2048}, v6")
    A("s_cmp_eq_u32 s33, 1\ns_cbranch_scc1 L2_epi1")
    for kh in range(2):
        if kh == 1: A("L2_epi1:")
        own = [kh * 4 + i for i in range(4)]
        oth = [(1 - kh) * 4 + i for i in range(4)]
        q = 0
        for nb in oth:
            for mb in range(2):
                a = (nb * 2 + mb) * 4
                A(f"ds_write_b128 v3, a[{a}:{a+3}] offset:{q*1024}"); q += 1
        A(f"s_cmp_eq_u32 s16, 0\ns_cbranch_scc0 L2_epiA{kh}")
        A("s_waitcnt lgkmcnt(0)\ns_barrier")
        for q in range(8):
            A(f"ds_read_b128 v[{32+q*4}:{35+q*4}], v4 offset:{q*1024}")
        q = 0
        for nb in own:
            for mb in range(2):
                a = (nb * 2 + mb) * 4
                for i in range(4):
                    A(f"v_accvgpr_read_b32 v{64+q*4+i}, a{a+i}")
                q += 1
        A(f"s_mov_b32 s31, {kh*8192}\ns_mov_b32 s44, {kh*8192+4096}")
        for q in range(8):
            A(f"s_waitcnt lgkmcnt({7-q})")
            for i in range(4):
                A(f"v_add_f32 v{64+q*4+i}, v{64+q*4+i}, v{32+q*4+i}")
            A(f"buffer_store_dwordx4 v[{64+q*4}:{67+q*4}], v2, s[40:43], {'s31' if q < 4 else 's44'} offen offset:{(q%4)*1024} sc0 sc1")
        A("s_waitcnt vmcnt(0)\ns_barrier")
        A("s_cmp_lg_u32 s17, 0\ns_cbranch_scc1 L2_end")
        A("v_mov_b32 v6, 1\nv_cmp_eq_u32 vcc, 0, v1")
        A("s_and_saveexec_b64 s[50:51], vcc")
        A("global_store_dword v5, v6, s[12:13] sc0 sc1")
        A("s_endpgm")
        A(f"L2_epiA{kh}:")
        q = 8
        for nb in oth:
            for mb in range(2):
                a = 64 + (nb * 2 + mb) * 4
                A(f"ds_write_b128 v3, a[{a}:{a+3}] offset:{q*1024}"); q += 1
        q = 0
        for nb in own:
            for mb in range(2):
                A(f"global_load_dwordx2 v[{16+q*2}:{17+q*2}], v{6+mb}, s[4:5] offset:{nb*32}"); q += 1
        A("s_mov_b32 s44, 0x400000")
        A(f"L2_poll{kh}:")
        A("global_load_dword v15, v5, s[12:13] sc0 sc1")
        A("s_waitcnt vmcnt(0)")
        A("v_readfirstlane_b32 s31, v15")
        A(f"s_cmp_eq_u32 s31, 1\ns_cbranch_scc1 L2_go{kh}")
        A("s_sleep 1")
        A(f"s_sub_u32 s44, s44, 1\ns_cmp_lg_u32 s44, 0\ns_cbranch_scc1 L2_poll{kh}")
        A(f"L2_go{kh}:")
        A(f"s_mov_b32 s31, {kh*8192}\ns_mov_b32 s44, {kh*8192+4096}")
        for q in range(8):
            A(f"buffer_load_dwordx4 v[{96+q*4}:{99+q*4}], v2, s[40:43], {'s31' if q < 4 else 's44'} offen offset:{(q%4)*1024} sc0 sc1")
        A("s_waitcnt lgkmcnt(0)\ns_barrier")
        for q in range(16):
            A(f"ds_read_b128 v[{32+q*4}:{35+q*4}], v4 offset:{q*1024}")
        A("s_waitcnt lgkmcnt(0)")
        q = 0
        for nb in own:
            for mb in range(2):
                a = (nb * 2 + mb) * 4
                o, s, p, x = 32 + q * 4, 64 + q * 4, 96 + q * 4, 16 + q * 2
                for i in range(4):
                    A(f"v_accvgpr_read_b32 v{8+i}, a{a+i}")
                for i in range(4):
                    A(f"v_add_f32 v{o+i}, v{o+i}, v{8+i}")
                for i in range(4):
                    A(f"v_accvgpr_read_b32 v{8+i}, a{64+a+i}")
                for i in range(4):
                    A(f"v_add_f32 v{s+i}, v{s+i}, v{8+i}")
                A(f"s_waitcnt vmcnt({7-q+q})" if False else f"s_waitcnt vmcnt(7)")
                for i in range(4):
                    A(f"v_add_f32 v{o+i}, v{o+i}, v{p+i}")
                for i in range(4):
                    A(f"v_mul_f32 v{8+i}, s47, v{o+i}")
                for i in range(4):
                    A(f"v_exp_f32 v{8+i}, v{8+i}")
                for i in range(4):
                    A(f"v_mul_f32 v{s+i}, v{s+i}, v{o+i}")
                for i in range(4):
                    A(f"v_add_f32 v{8+i}, 1.0, v{8+i}")
                for i in range(4):
                    A(f"v_rcp_f32 v{8+i}, v{8+i}")
                A(f"v_lshlrev_b32 v{o}, 16, v{x}\nv_and_b32 v{o+1}, s48, v{x}")
                A(f"v_lshlrev_b32 v{o+2}, 16, v{x+1}\nv_and_b32 v{o+3}, s48, v{x+1}")
                for i in range(4):
                    A(f"v_fmac_f32 v{o+i}, v{s+i}, v{8+i}")
                A(f"v_cvt_pk_bf16_f32 v{x}, v{o}, v{o+1}\nv_cvt_pk_bf16_f32 v{x+1}, v{o+2}, v{o+3}")
                A(f"global_store_dwordx2 v{6+mb}, v[{x}:{x+1}], s[10:11] offset:{nb*32}")
                q += 1
        A("s_endpgm")
    A("L2_end:")
    A("s_endpgm")
    kd(A, "g2_kernel", 256, 64, 128)

def main(out):
    A = Asm()
    hdr = open("cdna_kernels/" + NAME + ".s.ref").read().split("\n")
    for l in hdr:
        if l.startswith("; @launch") or l.startswith("; Override") or l.startswith("; grid=ceil"): continue
        if not l.startswith(";"): break
        A.raw(l)
    A.raw("; @launch kernel=ln_kernel grid=(256,1,1) block=(256,1,1) lds=0")
    A.raw("; @launch kernel=g1_kernel grid=(256,1,1) block=(256,1,1) lds=163840")
    A.raw("; @launch kernel=g2_kernel grid=(256,1,1) block=(512,1,1) lds=131072")
    A.raw('.amdgcn_target "amdgcn-amd-amdhsa--gfx950"')
    A.raw(".text")
    k0(A); k1(A); k2(A)
    open(out, "w").write(A.finalize())
main(sys.argv[1] if len(sys.argv) > 1 else "k.s")
```

```python
import sys
from asmlib import Asm

NAME = "recurrent_scan__linear_attn_block__glu_gated_swiglu__prompt"
XN_OFF = 0
ACT_OFF = 4 << 20
KVP_OFF = 24 << 20
KVP_STRIDE = 8448
P_OFF = 32 << 20
FLAG_OFF = 48 << 20
LOG2E = 0x3fb8aa3b
NLOG2E = 0xbfb8aa3b
EPS6 = 0x358637bd
EPS5 = 0x3727c5ac

PF = "--nopf" not in sys.argv
STAMP_OFF = 56 << 20
STAMPS = "--stamps" in sys.argv
def stamp(A, idx):
    if not STAMPS: return
    A("s_memrealtime s[80:81]")
    A("s_waitcnt lgkmcnt(0)")
    A(f"s_mov_b32 s{84+idx}, s80")
def stamp_out(A, kern, wavereg, ws, n, tag):
    if not STAMPS: return
    stamp(A, 7 if n > 3 else n - 1)
    if wavereg is not None:
        A(f"s_cmp_lg_u32 s{wavereg}, 0\ns_cbranch_scc1 LS_{tag}")
    A(f"s_lshl_b32 s80, s2, 6\ns_add_u32 s80, s80, {STAMP_OFF + kern * 65536}")
    A("v_mov_b32 v8, s80")
    for i in range(n):
        A(f"v_mov_b32 v9, s{84+i}")
        A(f"global_store_dword v8, v9, s[{ws}:{ws+1}] offset:{i*4}")
    A(f"LS_{tag}:")

def kd(A, name, vgpr, sgpr, accum):
    A.raw('.section .rodata,"a"')
    A.raw(".p2align 6")
    A.raw(f".amdhsa_kernel {name}")
    A.raw(f".amdhsa_next_free_vgpr {vgpr}")
    A.raw(f".amdhsa_next_free_sgpr {100 if STAMPS else sgpr}")
    A.raw(f".amdhsa_accum_offset {accum}")
    A.raw(".amdhsa_group_segment_fixed_size 0")
    A.raw(".amdhsa_kernarg_size 80")
    A.raw(".amdhsa_user_sgpr_count 2")
    A.raw(".amdhsa_user_sgpr_kernarg_segment_ptr 1")
    A.raw(".amdhsa_system_sgpr_workgroup_id_x 1")
    A.raw(".amdhsa_float_denorm_mode_32 3")
    A.raw(".end_amdhsa_kernel")
    A.raw(".text")

def head(A, name):
    A.raw(f".globl {name}")
    A.raw(".p2align 8")
    A.raw(f".type {name},@function")
    A(f"{name}:")

def srd(A, d, lo, hi, off, nrec):
    A(f"s_add_u32 s{d}, s{lo}, {off}")
    A(f"s_addc_u32 s{d+1}, s{hi}, 0")
    A(f"s_mov_b32 s{d+2}, {nrec}")
    A(f"s_mov_b32 s{d+3}, 0x20000")

def k0(A):
    head(A, "ln_kernel")
    A("s_cmp_ge_u32 s2, 256\ns_cbranch_scc1 L0_end")
    stamp(A, 0)
    A("s_load_dwordx2 s[4:5], s[0:1], 0")
    A("s_load_dwordx2 s[6:7], s[0:1], 72")
    A("v_lshrrev_b32 v1, 5, v0")
    A("v_and_b32 v2, 31, v0")
    A("s_lshl_b32 s3, s2, 3")
    A("v_add_u32 v1, s3, v1")
    A("v_lshlrev_b32 v3, 11, v1")
    A("v_lshl_add_u32 v3, v2, 4, v3")
    A("s_waitcnt lgkmcnt(0)")
    for j in range(4):
        A(f"global_load_dwordx4 v[{8+4*j}:{11+4*j}], v3, s[4:5] offset:{512*j}")
    A("s_cmp_ge_u32 s2, 128\ns_cbranch_scc1 L0_noflag")
    A("s_lshl_b32 s8, s2, 8")
    A(f"s_add_u32 s8, s8, {FLAG_OFF}")
    A("v_mov_b32 v5, s8\nv_mov_b32 v6, 0")
    A("v_cmp_eq_u32 vcc, 0, v0")
    A("s_and_saveexec_b64 s[10:11], vcc")
    A("s_cbranch_execz L0_rest")
    A("global_store_dword v5, v6, s[6:7]")
    A("L0_rest:")
    A("s_mov_b64 exec, s[10:11]")
    A("L0_noflag:")
    A("v_lshrrev_b32 v4, 6, v1\nv_lshlrev_b32 v4, 17, v4")
    A("v_lshrrev_b32 v5, 2, v2\nv_lshl_add_u32 v4, v5, 12, v4")
    A("v_bfe_u32 v5, v1, 4, 2\nv_lshl_add_u32 v4, v5, 10, v4")
    A("v_and_b32 v5, 3, v2\nv_lshl_add_u32 v4, v5, 8, v4")
    A("v_and_b32 v5, 15, v1\nv_lshl_add_u32 v4, v5, 4, v4")
    A("s_mov_b32 s8, 0xffff0000")
    A("s_waitcnt vmcnt(0)")
    stamp(A, 1)
    for i in range(16):
        A(f"v_lshlrev_b32 v{24+2*i}, 16, v{8+i}")
        A(f"v_and_b32 v{25+2*i}, s8, v{8+i}")
    def reduce32(r, t):
        A(f"v_add_f32_dpp v{r}, v{r}, v{r} quad_perm:[1,0,3,2] row_mask:0xf bank_mask:0xf")
        A(f"v_add_f32_dpp v{r}, v{r}, v{r} quad_perm:[2,3,0,1] row_mask:0xf bank_mask:0xf")
        A(f"v_add_f32_dpp v{r}, v{r}, v{r} row_half_mirror row_mask:0xf bank_mask:0xf")
        A(f"v_add_f32_dpp v{r}, v{r}, v{r} row_mirror row_mask:0xf bank_mask:0xf")
        A(f"ds_swizzle_b32 v{t}, v{r} offset:0x401F")
        A("s_waitcnt lgkmcnt(0)")
        A(f"v_add_f32 v{r}, v{r}, v{t}")
    for i in range(4):
        A(f"v_add_f32 v{56+i}, v{24+i}, v{28+i}")
    for b in range(2, 8):
        for i in range(4):
            A(f"v_add_f32 v{56+i}, v{56+i}, v{24+4*b+i}")
    A("v_add_f32 v56, v56, v57\nv_add_f32 v58, v58, v59\nv_add_f32 v56, v56, v58")
    reduce32(56, 57)
    A("v_mul_f32 v56, 0x3a800000, v56")
    for i in range(4):
        A(f"v_mov_b32 v{60+i}, 0")
    for i in range(32):
        A(f"v_sub_f32 v{8+(i%8)}, v{24+i}, v56")
        A(f"v_fmac_f32 v{60+(i%4)}, v{8+(i%8)}, v{8+(i%8)}")
    A("v_add_f32 v60, v60, v61\nv_add_f32 v62, v62, v63\nv_add_f32 v60, v60, v62")
    reduce32(60, 57)
    A("v_mul_f32 v60, 0x3a800000, v60")
    A("v_cvt_pk_bf16_f32 v60, v60, v60\nv_and_b32 v60, s8, v60")
    A(f"v_add_f32 v60, {EPS5}, v60")
    A("v_cvt_pk_bf16_f32 v60, v60, v60\nv_and_b32 v60, s8, v60")
    A("v_sqrt_f32 v60, v60")
    A("v_cvt_pk_bf16_f32 v60, v60, v60\nv_and_b32 v60, s8, v60")
    A("v_rcp_f32 v60, v60")
    A("v_cvt_pk_bf16_f32 v56, v56, v56\nv_and_b32 v56, s8, v56")
    for i in range(16):
        a, b = 24 + 2 * i, 25 + 2 * i
        A(f"v_sub_f32 v{a}, v{a}, v56\nv_sub_f32 v{b}, v{b}, v56")
        A(f"v_cvt_pk_bf16_f32 v{b}, v{a}, v{b}")
        A(f"v_lshlrev_b32 v{a}, 16, v{b}\nv_and_b32 v{b}, s8, v{b}")
        A(f"v_mul_f32 v{a}, v{a}, v60\nv_mul_f32 v{b}, v{b}, v60")
        A(f"v_cvt_pk_bf16_f32 v{8+i}, v{a}, v{b}")
    for j in range(4):
        A(f"global_store_dwordx4 v4, v[{8+4*j}:{11+4*j}], s[6:7]")
        if j < 3:
            A("v_add_u32 v4, 0x8000, v4")
    if STAMPS: A("s_waitcnt vmcnt(0)")
    stamp_out(A, 0, None, 6, 3, "k0")
    A("L0_end:")
    A("s_endpgm")
    kd(A, "ln_kernel", 64, 16, 64)

K1_SLOT = 40960
class K1:
    VA = [8, 9, 10, 11]; VH = [12, 13]
    VO6, VO7, VOH, VX0, VX1 = 14, 15, 16, 17, 18
    WR = 32
    def __init__(self, A, typ):
        self.A = A; self.typ = typ
        if typ == "Q":
            ag = [12, 13, 14, 15, 16, 17, 18, 19]
        else:
            ag = [4, 5, 12, 13, 14, 15, 18, 19]
        self.acc = {}
        na = nv = 0
        for nb in range(20):
            for mb in range(4):
                if nb in ag:
                    self.acc[(nb, mb)] = ("a", na); na += 4
                else:
                    self.acc[(nb, mb)] = ("v", 64 + nv); nv += 4
        assert na == 128 and nv == 192
    def accr(self, nb, mb):
        f, r = self.acc[(nb, mb)]
        return f"{f}[{r}:{r+3}]"
    def wfrag(self, nb, kh):
        return self.WR + (nb % 4) * 8 + kh * 4
    def xfrag(self, xs, kh, mb):
        return 128 + xs * 32 + (kh * 4 + mb) * 4
    def rd(self, nb, kh, h4):
        grp, sub = nb // 4, nb % 4
        r = self.wfrag(nb, kh) + 2 * h4
        if self.typ == "KV" and grp == 4:
            v, imm = self.VH[sub % 2], 32768 + (sub // 2) * 4096 + kh * 2048 + h4 * 256
        else:
            v, imm = self.VA[sub], grp * 8192 + kh * 4096 + h4 * 512
        return f"ds_read_b64_tr_b16 v[{r}:{r+1}], v{v} offset:{imm}"
    def loads(self, slot):
        L = []
        dma = []
        for grp in range(5):
            for half in range(2):
                s = 20 + 4 * grp
                isqkv = (grp == 0) or (self.typ == "KV" and grp == 1)
                if self.typ == "KV" and grp == 4:
                    pre = f"s_add_u32 m0, s58, {slot*K1_SLOT + 32768 + half*2048}"
                    ins = f"buffer_load_dwordx4 v{self.VOH}, s[{s}:{s+3}], s{54+half} offen lds"
                else:
                    pre = f"s_add_u32 m0, s57, {slot*K1_SLOT + grp*8192 + half*4096}"
                    vo = self.VO6 if isqkv else self.VO7
                    so = (52 if isqkv else 54) + half
                    ins = f"buffer_load_dwordx4 v{vo}, s[{s}:{s+3}], s{so} offen lds"
                dma.append((pre, ins))
        xl = []
        for kh in range(2):
            for mb in range(4):
                r = self.xfrag(slot, kh, mb)
                vx = self.VX0 if kh == 0 else self.VX1
                xl.append((None, f"buffer_load_dwordx4 a[{r}:{r+3}], v{vx}, s[40:43], s56 offen offset:{mb*1024}"))
        while dma or xl:
            if dma: L.append(dma.pop(0))
            if xl: L.append(xl.pop(0))
        return L
    def adv(self):
        return [f"s_add_u32 s52, s52, {64*6144}", f"s_add_u32 s53, s53, {64*6144}",
                f"s_add_u32 s54, s54, {64*7168}", f"s_add_u32 s55, s55, {64*7168}", "s_add_u32 s56, s56, 8192"]
    def stage(self, slot, load, vmw, last=False, pf=False):
        A = self.A
        L = self.loads((slot + 3) % 4) if load else []
        delta = K1_SLOT if slot < 3 else -3 * K1_SLOT
        upd = [f"v_add_u32 v{v}, {delta & 0xffffffff:#x}, v{v}" for v in self.VA + (self.VH if self.typ == "KV" else [])]
        for nb in range(20):
            fill = [[] for _ in range(8)]
            nxt = (nb + 2) % 20
            reads = [self.rd(nxt, kh, h4) for kh in range(2) for h4 in range(2)]
            if nb < 18:
                for i, j in enumerate((0, 2, 4, 6)):
                    fill[j].append(reads[i])
                if L:
                    pre, ins = L[nb]
                    if pre: fill[1].append(pre)
                    fill[3].append(ins)
                if pf and nb == 17:
                    if slot < 3:
                        fill[5].append(f"buffer_load_dwordx4 v[20:23], v{self.VX0}, s[72:75], s71 offen")
                        fill[5].append("s_add_u32 s71, s71, 0x100000")
                    else:
                        fill[5].append(f"buffer_load_dwordx4 v[20:23], v{self.VX0}, s[76:79], s3 offen")
                        fill[5].append("s_add_u32 s3, s3, 0x100000")
            elif not last:
                if nb == 18:
                    fill[0] += upd[0:2]
                    fill[1].append(f"s_waitcnt vmcnt({vmw}) lgkmcnt(0)")
                    fill[1].append("s_barrier")
                    for i, j in enumerate((2, 3, 4, 5)):
                        fill[j].append(reads[i])
                    fill[6] += upd[2:4]
                    fill[7] += upd[4:6]
                else:
                    for i, j in enumerate((0, 2, 4, 6)):
                        fill[j].append(reads[i])
                    if load:
                        a = self.adv()
                        fill[1] += a[0:2]; fill[3] += a[2:4]; fill[5] += a[4:5]
            if not (last and nb == 19):
                if last and nb >= 17:
                    fill[7].append("s_waitcnt lgkmcnt(%d)" % (4 if nb == 17 else 0))
                elif nb != 18:
                    fill[7].append("s_waitcnt lgkmcnt(4)")
            j = 0
            swapped = self.typ == "KV" and nb < 8
            for mb in range(4):
                for kh in range(2):
                    w = self.wfrag(nb, kh); x = self.xfrag(slot, kh, mb)
                    wa, xa = f"v[{w}:{w+3}]", f"a[{x}:{x+3}]"
                    acc = self.accr(nb, mb)
                    if swapped:
                        A(f"v_mfma_f32_16x16x32_bf16 {acc}, {xa}, {wa}, {acc}")
                    else:
                        A(f"v_mfma_f32_16x16x32_bf16 {acc}, {wa}, {xa}, {acc}")
                    for t in fill[j]: A(t)
                    j += 1
    def body(self):
        A = self.A; t = self.typ
        stamp(A, 9)
        for s in range(3):
            for pre, ins in self.loads(s):
                if pre: A(pre)
                A(ins)
            for a in self.adv(): A(a)
            stamp(A, 10 + s)
        for (nb, mb), (f, r) in self.acc.items():
            for i in range(4):
                A(f"v_accvgpr_write_b32 a{r+i}, 0" if f == "a" else f"v_mov_b32 v{r+i}, 0")
        stamp(A, 1)
        A("s_waitcnt vmcnt(36)\ns_barrier")
        stamp(A, 2)
        for nb in range(2):
            for kh in range(2):
                for h4 in range(2):
                    A(self.rd(nb, kh, h4))
        A("s_mov_b32 s59, 3")
        A("s_waitcnt lgkmcnt(4)")
        A.raw(".p2align 6")
        A(f"L1{t}_loop:")
        for s in range(4):
            self.stage(s, True, 37 if PF else 36, pf=PF)
        A(f"s_sub_u32 s59, s59, 1\ns_cmp_lg_u32 s59, 0\ns_cbranch_scc1 L1{t}_loop")
        stamp(A, 3)
        self.stage(0, True, 37 if PF else 36)
        self.stage(1, False, 18)
        self.stage(2, False, 0)
        self.stage(3, False, 0, last=True)
        A("s_barrier")
        stamp(A, 4)
    def val(self, nb, mb, i, tmp):
        f, r = self.acc[(nb, mb)]
        if f == "v": return r + i
        self.A(f"v_accvgpr_read_b32 v{tmp}, a{r+i}")
        return tmp
    def phi4(self, r, dst):
        A = self.A
        for i in range(4):
            A(f"v_mul_f32 v{20+i}, s62, v{r+i}")
        for i in range(4):
            A(f"v_exp_f32_e64 v{20+i}, v{20+i} clamp")
        for i in range(4):
            A(f"v_max_f32 v{r+i}, 0, v{r+i}")
        for i in range(4):
            A(f"v_add_f32 v{r+i}, v{r+i}, v{20+i}")
        for i in range(4):
            A(f"v_add_f32 v{r+i}, s64, v{r+i}")
        A(f"v_cvt_pk_bf16_f32 v{dst}, v{r}, v{r+1}")
        A(f"v_cvt_pk_bf16_f32 v{dst+1}, v{r+2}, v{r+3}")
    def gu(self, gb, ub, mb, kstep_s, imm_k, dst):
        A = self.A
        for p in range(2):
            f, g = self.acc[(gb + p, mb)]; assert f == "v"
            fu, u = self.acc[(ub + p, mb)]; assert fu == "a"
            for i in range(4):
                A(f"v_mul_f32 v{20+i}, s63, v{g+i}")
            for i in range(4):
                A(f"v_exp_f32 v{20+i}, v{20+i}")
            for i in range(4):
                A(f"v_accvgpr_read_b32 v{24+i}, a{u+i}")
            for i in range(4):
                A(f"v_add_f32 v{20+i}, 1.0, v{20+i}")
            for i in range(4):
                A(f"v_rcp_f32 v{20+i}, v{20+i}")
            for i in range(4):
                A(f"v_mul_f32 v{g+i}, v{g+i}, v{24+i}")
            for i in range(4):
                A(f"v_mul_f32 v{g+i}, v{g+i}, v{20+i}")
            A(f"v_cvt_pk_bf16_f32 v{dst+2*p}, v{g}, v{g+1}")
            A(f"v_cvt_pk_bf16_f32 v{dst+2*p+1}, v{g+2}, v{g+3}")
        self.store_act(dst, mb, kstep_s, imm_k)
    def store_act(self, dst, mb, kstep_s, imm_k):
        vo = 2 if mb < 2 else 3
        self.A(f"buffer_store_dwordx4 v[{dst}:{dst+3}], v{vo}, s[44:47], s{kstep_s} offen offset:{imm_k*2048 + (mb&1)*1024}")
    def epi_common(self):
        A = self.A
        A(f"s_mov_b32 s62, {LOG2E:#x}\ns_mov_b32 s63, {NLOG2E:#x}\ns_mov_b32 s64, {EPS6:#x}")
        A("v_lshlrev_b32 v2, 4, v1")
        A(f"v_add_u32 v3, {144*2048}, v2")
    def epi_kv(self):
        A = self.A
        self.epi_common()
        for db in range(4):
            for mb in range(4):
                f, r = self.acc[(db, mb)]
                self.phi4(r, 32 + (db * 2 + mb // 2) * 4 + (mb % 2) * 2)
        for eb in range(4):
            for mb in range(4):
                vs = [self.val(4 + eb, mb, i, 20 + i) for i in range(4)]
                d = 64 + (eb * 2 + mb // 2) * 4 + (mb % 2) * 2
                A(f"v_cvt_pk_bf16_f32 v{d}, v{vs[0]}, v{vs[1]}")
                A(f"v_cvt_pk_bf16_f32 v{d+1}, v{vs[2]}, v{vs[3]}")
        for i in range(4):
            A(f"v_mov_b32 v{28+i}, 0x3f803f80")
        for sg in range(2):
            for hd in range(2):
                for db in range(2):
                    pk = 32 + ((hd * 2 + db) * 2 + sg) * 4
                    for eb in range(2):
                        vv = 64 + ((hd * 2 + eb) * 2 + sg) * 4
                        d = 128 + ((hd * 2 + eb) * 2 + db) * 4
                        c = "0" if sg == 0 else f"a[{d}:{d+3}]"
                        A(f"v_mfma_f32_16x16x32_bf16 a[{d}:{d+3}], v[{pk}:{pk+3}], v[{vv}:{vv+3}], {c}")
                    d = 160 + (hd * 2 + db) * 4
                    c = "0" if sg == 0 else f"a[{d}:{d+3}]"
                    A(f"v_mfma_f32_16x16x32_bf16 a[{d}:{d+3}], v[{pk}:{pk+3}], v[28:31], {c}")
        A("s_mul_i32 s60, s17, 12288")
        A("v_add_u32 v4, s60, v2")
        for q in range(12):
            A(f"ds_write_b128 v4, a[{128+q*4}:{131+q*4}] offset:{q*1024}")
        A("s_waitcnt lgkmcnt(0)\ns_barrier")
        A("s_lshl_b32 s60, s17, 11\nv_add_u32 v4, s60, v2")
        A("s_lshl_b32 s60, s17, 10\nv_add_u32 v5, s60, v2")
        for w in range(4):
            A(f"ds_read_b128 v[{64+w*12}:{67+w*12}], v4 offset:{w*12288}")
            A(f"ds_read_b128 v[{68+w*12}:{71+w*12}], v4 offset:{w*12288+1024}")
            A(f"ds_read_b128 v[{72+w*12}:{75+w*12}], v5 offset:{w*12288+8192}")
        A("v_lshrrev_b32 v6, 4, v1\nv_lshlrev_b32 v6, 4, v6")
        A("s_lshl_b32 s60, s17, 6\ns_add_u32 s60, s60, 8192\nv_add_u32 v6, s60, v6")
        A("s_waitcnt lgkmcnt(0)")
        for i in range(12):
            A(f"v_add_f32 v{64+i}, v{64+i}, v{76+i}")
            A(f"v_add_f32 v{88+i}, v{88+i}, v{100+i}")
        for i in range(12):
            A(f"v_add_f32 v{64+i}, v{64+i}, v{88+i}")
        A(f"s_mul_i32 s61, s15, {KVP_STRIDE}")
        A("buffer_store_dwordx4 v[64:67], v4, s[48:51], s61 offen sc0 sc1")
        A("buffer_store_dwordx4 v[68:71], v4, s[48:51], s61 offen offset:1024 sc0 sc1")
        A("v_and_b32 v7, 15, v1\nv_cmp_eq_u32 vcc, 0, v7")
        A("s_and_saveexec_b64 s[66:67], vcc")
        A("buffer_store_dwordx4 v[72:75], v6, s[48:51], s61 offen sc0 sc1")
        A("s_mov_b64 exec, s[66:67]")
        dsts = [32, 36, 40, 44]
        n = 0
        for mb in range(4):
            self.gu(8, 12, mb, 68, 0, dsts[n % 4]); n += 1
        A("s_waitcnt vmcnt(4)\ns_barrier")
        A("s_cmp_lg_u32 s17, 0\ns_cbranch_scc1 L1KV_noflag")
        A("s_lshl_b32 s60, s18, 2\nv_mov_b32 v6, s60\nv_mov_b32 v7, 1")
        A("v_cmp_eq_u32 vcc, 0, v1")
        A("s_and_saveexec_b64 s[66:67], vcc")
        A("global_atomic_add v6, v7, s[12:13] sc1")
        A("s_mov_b64 exec, s[66:67]")
        A("L1KV_noflag:")
        stamp(A, 5)
        for mb in range(4):
            self.gu(10, 14, mb, 68, 1, dsts[n % 4]); n += 1
        for mb in range(4):
            self.gu(16, 18, mb, 69, 0, dsts[n % 4]); n += 1
        stamp(A, 6)
        if STAMPS: A("s_waitcnt vmcnt(0)")
        stamp_out(A, 1, 17, 6, 13, "k1kv")
        A("s_endpgm")
    def epi_q(self):
        A = self.A
        self.epi_common()
        dsts = [28, 4]
        n = 0
        for j in range(4):
            for mb in range(4):
                self.gu(4 + 2 * j, 12 + 2 * j, mb, 68 + j // 2, j % 2, dsts[n % 2]); n += 1
        for hd in range(2):
            for db in range(2):
                for mb in range(4):
                    f, r = self.acc[(hd * 2 + db, mb)]
                    self.phi4(r, 32 + (hd * 4 + mb) * 4 + db * 2)
        stamp(A, 5)
        A("s_lshl_b32 s60, s18, 2\nv_mov_b32 v6, s60")
        A("s_mov_b32 s61, 0x400000")
        A("L1Q_poll:")
        A("global_load_dword v7, v6, s[12:13] sc0 sc1")
        A("s_waitcnt vmcnt(0)")
        A("v_readfirstlane_b32 s60, v7")
        A("s_cmp_ge_u32 s60, 8\ns_cbranch_scc1 L1Q_go")
        A("s_sleep 1")
        A("s_sub_u32 s61, s61, 1\ns_cmp_lg_u32 s61, 0\ns_cbranch_scc1 L1Q_poll")
        A("L1Q_go:")
        stamp(A, 6)
        A("s_lshl_b32 s60, s17, 11\nv_add_u32 v4, s60, v2")
        A("v_lshrrev_b32 v6, 4, v1\nv_lshlrev_b32 v6, 4, v6")
        A("s_lshl_b32 s60, s17, 6\ns_add_u32 s60, s60, 8192\nv_add_u32 v6, s60, v6")
        for p in range(8):
            b = 128 + p * 12
            A(f"s_mov_b32 s61, {p*KVP_STRIDE}")
            A(f"buffer_load_dwordx4 v[{b}:{b+3}], v4, s[48:51], s61 offen sc0 sc1")
            A(f"buffer_load_dwordx4 v[{b+4}:{b+7}], v4, s[48:51], s61 offen offset:1024 sc0 sc1")
            A(f"buffer_load_dwordx4 v[{b+8}:{b+11}], v6, s[48:51], s61 offen sc0 sc1")
        for p in range(1, 8):
            A(f"s_waitcnt vmcnt({(7-p)*3})")
            for i in range(12):
                A(f"v_add_f32 v{128+i}, v{128+i}, v{128+p*12+i}")
        for i in range(6):
            A(f"v_cvt_pk_bf16_f32 v{140+i}, v{128+2*i}, v{129+2*i}")
        A("s_lshl_b32 s60, s17, 10\nv_add_u32 v4, s60, v2")
        A("ds_write_b128 v4, v[140:143]")
        A("s_lshr_b32 s60, s17, 1\ns_lshl_b32 s60, s60, 10\ns_and_b32 s61, s17, 1\ns_lshl_b32 s61, s61, 3\ns_add_u32 s60, s60, s61")
        A("v_add_u32 v4, s60, v2")
        A("ds_write_b64 v4, v[144:145] offset:4096")
        A("s_waitcnt lgkmcnt(0)\ns_barrier")
        for i in range(6):
            A(f"ds_read_b128 v[{128+i*4}:{131+i*4}], v2 offset:{i*1024}")
        A("s_waitcnt lgkmcnt(0)")
        for hd in range(2):
            for mb in range(4):
                pq = 32 + (hd * 4 + mb) * 4
                d = 160 + (hd * 4 + mb) * 12
                for eb in range(2):
                    kf = 128 + (hd * 2 + eb) * 4
                    A(f"v_mfma_f32_16x16x32_bf16 v[{d+eb*4}:{d+eb*4+3}], v[{kf}:{kf+3}], v[{pq}:{pq+3}], 0")
                zf = 144 + hd * 4
                A(f"v_mfma_f32_16x16x32_bf16 v[{d+8}:{d+11}], v[{zf}:{zf+3}], v[{pq}:{pq+3}], 0")
        for hd in range(2):
            for mb in range(4):
                d = 160 + (hd * 4 + mb) * 12
                A(f"v_add_f32 v{d+8}, s64, v{d+8}")
                A(f"v_rcp_f32 v{d+8}, v{d+8}")
                for i in range(8):
                    A(f"v_mul_f32 v{d+i}, v{d+i}, v{d+8}")
                o = 64 + (hd * 4 + mb) * 4
                for i in range(4):
                    A(f"v_cvt_pk_bf16_f32 v{o+i}, v{d+2*i}, v{d+2*i+1}")
                self.store_act(o, mb, 70, hd)
        if STAMPS: A("s_waitcnt vmcnt(0)")
        stamp_out(A, 1, 17, 6, 13, "k1q")
        A("s_endpgm")

def k1(A):
    head(A, "g1_kernel")
    A("s_cmp_ge_u32 s2, 256\ns_cbranch_scc1 L1_end")
    stamp(A, 0)
    A("s_load_dwordx2 s[4:5], s[0:1], 8")
    A("s_load_dwordx4 s[8:11], s[0:1], 32")
    A("s_load_dwordx4 s[12:15], s[0:1], 64")
    A("s_load_dwordx2 s[72:73], s[0:1], 48")
    A("s_load_dwordx2 s[76:77], s[0:1], 16")
    A("v_and_b32 v1, 63, v0")
    A("v_lshrrev_b32 v2, 6, v0")
    A("v_readfirstlane_b32 s17, v2")
    A("s_waitcnt lgkmcnt(0)")
    stamp(A, 8)
    A(f"s_mov_b32 s74, {3584*2048}\ns_mov_b32 s75, 0x20000\ns_mov_b32 s78, {1024*2048}\ns_mov_b32 s79, 0x20000")
    A("s_lshl_b32 s71, s2, 2\ns_add_u32 s71, s71, s17\ns_lshl_b32 s71, s71, 10\ns_mov_b32 s3, s71")
    A("s_mov_b32 s6, s14\ns_mov_b32 s7, s15")
    A("s_and_b32 s14, s2, 7")
    A("s_lshr_b32 s16, s2, 3")
    A("s_and_b32 s15, s16, 7")
    A("s_lshr_b32 s16, s16, 3")
    A("s_and_b32 s19, s16, 1")
    A("s_lshl_b32 s18, s14, 1\ns_add_u32 s18, s18, s19")
    A("s_lshl_b32 s60, s15, 2\ns_add_u32 s60, s60, s17")
    A("s_lshl_b32 s61, s60, 17")
    srd(A, 40, 6, 7, "s61", 131072)
    A(f"s_mul_i32 s61, s60, {2*144*2048}\ns_add_u32 s61, s61, {ACT_OFF}")
    srd(A, 44, 6, 7, "s61", 2 * 144 * 2048)
    A(f"s_mul_i32 s61, s18, {8*KVP_STRIDE}\ns_add_u32 s61, s61, {KVP_OFF}")
    srd(A, 48, 6, 7, "s61", 8 * KVP_STRIDE)
    A("v_lshrrev_b32 v3, 4, v1\nv_bfe_u32 v4, v1, 2, 2\nv_and_b32 v5, 3, v1")
    A("v_lshl_add_u32 v6, v3, 3, v4")
    A("v_lshrrev_b32 v7, 1, v4\nv_and_b32 v19, 1, v3\nv_lshl_or_b32 v7, v19, 1, v7")
    for nb in range(4):
        A(f"v_xor_b32 v20, {nb}, v7\nv_lshlrev_b32 v20, 5, v20")
        A(f"v_lshl_add_u32 v20, v6, 7, v20\nv_lshl_add_u32 v{K1.VA[nb]}, v5, 3, v20")
    for nb in range(2):
        A(f"v_xor_b32 v20, {nb}, v19\nv_lshlrev_b32 v20, 5, v20")
        A(f"v_lshl_add_u32 v20, v6, 6, v20\nv_lshl_add_u32 v{K1.VH[nb]}, v5, 3, v20")
    A("v_lshrrev_b32 v3, 3, v1\ns_lshl_b32 s60, s17, 3\nv_add_u32 v3, s60, v3")
    A("v_bfe_u32 v4, v1, 4, 1\ns_and_b32 s60, s17, 1\ns_lshl_b32 s60, s60, 1\nv_or_b32 v4, s60, v4")
    A("v_bfe_u32 v5, v1, 1, 2\nv_xor_b32 v5, v5, v4\nv_lshlrev_b32 v5, 5, v5")
    A("v_and_b32 v6, 1, v1\nv_lshl_add_u32 v5, v6, 4, v5")
    A(f"v_mul_u32_u24 v{K1.VO6}, 6144, v3\nv_add_u32 v{K1.VO6}, v{K1.VO6}, v5")
    A(f"v_mul_u32_u24 v{K1.VO7}, 7168, v3\nv_add_u32 v{K1.VO7}, v{K1.VO7}, v5")
    A("v_lshrrev_b32 v3, 2, v1\ns_and_b32 s60, s17, 1\ns_lshl_b32 s60, s60, 4\nv_add_u32 v3, s60, v3")
    A("v_bfe_u32 v4, v1, 1, 1\nv_lshrrev_b32 v5, 5, v1\nv_xor_b32 v4, v4, v5\nv_lshlrev_b32 v4, 5, v4")
    A("v_lshl_add_u32 v4, v6, 4, v4")
    A(f"v_mul_u32_u24 v{K1.VOH}, 7168, v3\nv_add_u32 v{K1.VOH}, v{K1.VOH}, v4")
    A(f"v_lshlrev_b32 v{K1.VX0}, 4, v1\nv_add_u32 v{K1.VX1}, 4096, v{K1.VX0}")
    A(f"s_mov_b32 s52, 0\ns_mov_b32 s53, {32*6144}\ns_mov_b32 s54, 0\ns_mov_b32 s55, {32*7168}\ns_mov_b32 s56, 0")
    A("s_lshl_b32 s57, s17, 10")
    A("s_lshr_b32 s58, s17, 1\ns_lshl_b32 s58, s58, 12\ns_and_b32 s60, s17, 1\ns_lshl_b32 s60, s60, 10\ns_add_u32 s58, s58, s60")
    A("s_mul_i32 s65, s14, 896")
    A("s_lshl_b32 s66, s18, 7")
    NQ, NF = 1024 * 6144, 1024 * 7168
    def wsrd(d, lo, off, tot):
        A(f"s_sub_u32 s61, {tot}, {off}")
        srd(A, d, lo, lo + 1, off, "s61")
    A("s_cmp_ge_u32 s16, 2\ns_cbranch_scc1 L1_typeQ")
    A("s_add_u32 s60, s66, 2048"); wsrd(20, 4, "s60", NQ)
    A("s_add_u32 s60, s66, 4096"); wsrd(24, 4, "s60", NQ)
    A("s_lshl_b32 s60, s19, 8\ns_add_u32 s60, s60, 512\ns_add_u32 s60, s60, s65")
    wsrd(28, 8, "s60", NF); wsrd(32, 10, "s60", NF)
    A("s_lshl_b32 s68, s60, 5")
    A("s_lshl_b32 s60, s19, 6\ns_add_u32 s60, s60, 640\ns_add_u32 s60, s60, s65")
    A("s_lshl_b32 s69, s60, 5")
    A("s_cmp_ge_u32 s17, 2\ns_cselect_b32 s66, s10, s8\ns_cselect_b32 s67, s11, s9")
    wsrd(36, 66, "s60", NF)
    kv = K1(A, "KV"); kv.body(); kv.epi_kv()
    A("L1_typeQ:")
    wsrd(20, 4, "s66", NQ)
    A("s_lshl_b32 s60, s19, 8\ns_add_u32 s60, s60, s65")
    wsrd(24, 8, "s60", NF); wsrd(32, 10, "s60", NF)
    A("s_lshl_b32 s68, s60, 5\ns_add_u32 s69, s68, 4096")
    A("s_add_u32 s60, s60, 128")
    wsrd(28, 8, "s60", NF); wsrd(36, 10, "s60", NF)
    A(f"s_lshl_b32 s70, s18, 12\ns_add_u32 s70, s70, {112*2048}")
    q = K1(A, "Q"); q.body(); q.epi_q()
    A("L1_end:")
    A("s_endpgm")
    kd(A, "g1_kernel", 512, 80, 256)

NA2 = 3
class K2:
    VA = [8, 9, 10, 11]; VO = [12, 13]; VX = 14
    WR = 32
    def __init__(self, A): self.A = A
    def wfrag(self, nb, k): return self.WR + (nb % 4) * 8 + k * 4
    def xfrag(self, xs, k, mb): return 64 + xs * 16 + (k * 2 + mb) * 4
    def rd(self, slot, nb, k, h):
        r = self.wfrag(nb, k) + 2 * h
        imm = (slot & 1) * 32768 + (nb >> 2) * 16384 + k * 4096 + h * 2048
        return f"ds_read_b64_tr_b16 v[{r}:{r+1}], v{self.VA[nb & 3]} offset:{imm}"
    def loads(self, slot):
        L = []
        for j in range(2):
            for grp in range(2):
                pre = f"s_add_u32 m0, s30, {slot*32768 + grp*16384 + j*1024 - grp*128}"
                off = " offset:128" if grp else ""
                L.append((pre, f"buffer_load_dwordx4 v{self.VO[j]}, s[20:23], s28 offen{off} lds"))
                k, mb = j, grp
                r = self.xfrag(slot, k, mb)
                L.append((None, f"buffer_load_dwordx4 v[{r}:{r+3}], v{self.VX}, s[24:27], s29 offen offset:{(k*2+mb)*1024}"))
        return L
    def adv(self):
        return [f"s_add_u32 s28, s28, {128*2048}", "s_add_u32 s29, s29, 8192"]
    def stage(self, slot, accb, extra=None):
        A = self.A
        L = self.loads((slot + 3) % 4)
        nslot = (slot + 1) % 4
        upd = [f"v_xor_b32 v{v}, 0x10000, v{v}" for v in self.VA] if slot % 2 == 1 else []
        fill = [[] for _ in range(32)]
        for nb in range(8):
            nxt = (nb + 2) % 8
            sl = slot if nb < 6 else nslot
            reads = [self.rd(sl, nxt, k, h) for k in range(2) for h in range(2)]
            if nb == 6:
                fill[24] += upd[0:2]
                fill[24].append("s_waitcnt vmcnt(16) lgkmcnt(0)")
                fill[24].append("s_barrier")
                fill[25] += reads[0:2]; fill[26] += reads[2:3]; fill[27] += reads[3:4]
                fill[26] += upd[2:4]
            else:
                for i in range(4): fill[nb * 4 + i].append(reads[i])
                fill[nb * 4 + 3].append("s_waitcnt lgkmcnt(4)")
        for i, (pre, ins) in enumerate(L):
            p = i * 3
            if pre: fill[p].append(pre)
            fill[p + 1].append(ins)
        fill[28] += self.adv()
        if extra: fill[30] += extra
        j = 0
        for nb in range(8):
            for mb in range(2):
                for k in range(2):
                    w = self.wfrag(nb, k); x = self.xfrag(slot, k, mb)
                    a = accb + (nb * 2 + mb) * 4
                    A(f"v_mfma_f32_16x16x32_bf16 a[{a}:{a+3}], v[{w}:{w+3}], v[{x}:{x+3}], a[{a}:{a+3}]")
                    for t in fill[j]: A(t)
                    j += 1

def k2(A):
    head(A, "g2_kernel")
    K = K2(A)
    A("s_cmp_ge_u32 s2, 256\ns_cbranch_scc1 L2_end")
    stamp(A, 0)
    A("s_load_dwordx2 s[4:5], s[0:1], 0")
    A("s_load_dwordx2 s[6:7], s[0:1], 16")
    A("s_load_dwordx4 s[8:11], s[0:1], 48")
    A("s_load_dwordx2 s[12:13], s[0:1], 72")
    A("v_and_b32 v1, 63, v0")
    A("v_lshrrev_b32 v2, 6, v0")
    A("v_readfirstlane_b32 s17, v2")
    A("s_and_b32 s14, s2, 7\ns_lshr_b32 s15, s2, 3")
    A("s_lshr_b32 s16, s15, 4")
    A("s_lshr_b32 s18, s14, 1\ns_lshl_b32 s18, s18, 2\ns_and_b32 s19, s15, 3\ns_add_u32 s18, s18, s19")
    A("s_and_b32 s19, s14, 1\ns_lshl_b32 s19, s19, 2\ns_bfe_u32 s31, s15, 0x20002\ns_add_u32 s19, s19, s31")
    A("s_and_b32 s32, s17, 3\ns_lshr_b32 s33, s17, 2")
    A("s_lshl_b32 s34, s19, 8")
    A("s_waitcnt lgkmcnt(0)")
    A("s_add_u32 s36, s8, s34\ns_addc_u32 s37, s9, 0")
    A(f"s_sub_u32 s38, {3584*2048}, s34")
    A("s_lshl_b32 s35, s18, 2\ns_add_u32 s35, s35, s32")
    A(f"s_mul_i32 s31, s35, {144*2048}\ns_add_u32 s31, s31, {ACT_OFF}")
    srd(A, 24, 12, 13, "s31", 144 * 2048)
    A("s_lshl_b32 s39, s18, 3\ns_add_u32 s39, s39, s19")
    A(f"s_lshl_b32 s31, s39, 16\ns_add_u32 s31, s31, {P_OFF}\ns_lshl_b32 s44, s32, 14\ns_add_u32 s31, s31, s44")
    srd(A, 40, 12, 13, "s31", 16384)
    A("v_lshrrev_b32 v3, 2, v1")
    A("v_bfe_u32 v4, v1, 3, 2\nv_and_b32 v5, 3, v1")
    A("s_lshl_b32 s31, s33, 13")
    for nb in range(4):
        A(f"v_xor_b32 v6, {nb}, v4\nv_lshlrev_b32 v6, 5, v6\nv_lshl_add_u32 v6, v3, 7, v6")
        A(f"v_lshl_add_u32 v6, v5, 3, v6\nv_add_u32 v{K.VA[nb]}, s31, v6")
    A("v_lshrrev_b32 v3, 3, v1\ns_lshl_b32 s31, s17, 4\nv_add_u32 v3, s31, v3")
    A("v_lshrrev_b32 v4, 4, v1\nv_bfe_u32 v5, v1, 1, 2\nv_xor_b32 v5, v5, v4\nv_lshlrev_b32 v5, 5, v5")
    A("v_and_b32 v6, 1, v1\nv_lshl_add_u32 v5, v6, 4, v5")
    A(f"v_lshl_add_u32 v{K.VO[0]}, v3, 11, v5\nv_add_u32 v{K.VO[1]}, {8*2048}, v{K.VO[0]}")
    A(f"v_lshlrev_b32 v2, 4, v1\ns_lshl_b32 s31, s33, 12\nv_add_u32 v{K.VX}, s31, v2")
    A("s_lshl_b32 s30, s17, 11")
    A("s_mov_b32 s23, 0x20000")
    A("s_cmp_eq_u32 s16, 0\ns_cbranch_scc1 L2_initB")
    A("s_add_u32 s20, s6, s34\ns_addc_u32 s21, s7, 0")
    A(f"s_sub_u32 s22, {1024*2048}, s34")
    A(f"s_mov_b32 s28, 0\ns_mov_b32 s29, {112*2048}\ns_mov_b32 s46, {NA2}")
    A("s_branch L2_init")
    A("L2_initB:")
    A("s_mov_b32 s20, s36\ns_mov_b32 s21, s37\ns_mov_b32 s22, s38")
    A(f"s_mov_b32 s28, {NA2*512*2048}\ns_mov_b32 s29, {NA2*16*2048}\ns_mov_b32 s46, {7-NA2}")
    A("L2_init:")
    for s in range(3):
        for pre, ins in K.loads(s):
            if pre: A(pre)
            A(ins)
        for a in K.adv(): A(a)
    for i in range(128):
        A(f"v_accvgpr_write_b32 a{i}, 0")
    stamp(A, 1)
    A("s_waitcnt vmcnt(16)\ns_barrier")
    stamp(A, 2)
    stamp(A, 3)
    for nb in range(2):
        for k in range(2):
            for h in range(2):
                A(K.rd(0, nb, k, h))
    A("s_mov_b32 s45, 2")
    A("s_waitcnt lgkmcnt(4)")
    A("s_cmp_eq_u32 s16, 0\ns_cbranch_scc1 L2_loop2")
    A.raw(".p2align 6")
    A("L2_loop1:")
    sw = ["s_cmp_eq_u32 s45, 1", "s_cselect_b32 s20, s36, s20", "s_cselect_b32 s21, s37, s21", "s_cselect_b32 s22, s38, s22",
          "s_cselect_b32 s28, 0, s28", "s_cselect_b32 s29, 0, s29"]
    for s in range(4):
        K.stage(s, 64, sw if s == 0 else None)
    A("s_sub_u32 s45, s45, 1\ns_cmp_lg_u32 s45, 0\ns_cbranch_scc1 L2_loop1")
    stamp(A, 3)
    A.raw(".p2align 6")
    A("L2_loop2:")
    sw = ["s_cmp_eq_u32 s46, 1", "s_cselect_b32 s22, 0, s22", "s_cselect_b32 s26, 0, s26"]
    for s in range(4):
        K.stage(s, 0, sw if s == 0 else None)
    A("s_sub_u32 s46, s46, 1\ns_cmp_lg_u32 s46, 0\ns_cbranch_scc1 L2_loop2")
    A("s_waitcnt vmcnt(0) lgkmcnt(0)\ns_barrier")
    stamp(A, 4)
    A("s_lshl_b32 s31, s17, 14\nv_add_u32 v3, s31, v2")
    A("s_xor_b32 s31, s17, 4\ns_lshl_b32 s31, s31, 14\nv_add_u32 v4, s31, v2")
    A(f"s_lshl_b32 s31, s39, 8\ns_add_u32 s31, s31, {FLAG_OFF}\nv_mov_b32 v5, s31")
    A(f"s_mov_b32 s47, {NLOG2E:#x}\ns_mov_b32 s48, 0xffff0000")
    A("v_and_b32 v6, 15, v1\ns_lshl_b32 s31, s35, 5\nv_add_u32 v6, s31, v6\nv_lshlrev_b32 v6, 11, v6")
    A("v_lshrrev_b32 v7, 4, v1\nv_lshl_add_u32 v6, v7, 3, v6\nv_add_u32 v6, s34, v6")
    A(f"v_add_u32 v7, {16*2048}, v6")
    A("s_cmp_eq_u32 s33, 1\ns_cbranch_scc1 L2_epi1")
    for kh in range(2):
        if kh == 1: A("L2_epi1:")
        own = [kh * 4 + i for i in range(4)]
        oth = [(1 - kh) * 4 + i for i in range(4)]
        q = 0
        for nb in oth:
            for mb in range(2):
                a = (nb * 2 + mb) * 4
                A(f"ds_write_b128 v3, a[{a}:{a+3}] offset:{q*1024}"); q += 1
        A(f"s_cmp_eq_u32 s16, 0\ns_cbranch_scc0 L2_epiA{kh}")
        A("s_waitcnt lgkmcnt(0)\ns_barrier")
        for q in range(8):
            A(f"ds_read_b128 v[{32+q*4}:{35+q*4}], v4 offset:{q*1024}")
        q = 0
        for nb in own:
            for mb in range(2):
                a = (nb * 2 + mb) * 4
                for i in range(4):
                    A(f"v_accvgpr_read_b32 v{64+q*4+i}, a{a+i}")
                q += 1
        A(f"s_mov_b32 s31, {kh*8192}\ns_mov_b32 s44, {kh*8192+4096}")
        for q in range(8):
            A(f"s_waitcnt lgkmcnt({7-q})")
            for i in range(4):
                A(f"v_add_f32 v{64+q*4+i}, v{64+q*4+i}, v{32+q*4+i}")
            A(f"buffer_store_dwordx4 v[{64+q*4}:{67+q*4}], v2, s[40:43], {'s31' if q < 4 else 's44'} offen offset:{(q%4)*1024} sc0 sc1")
        A("s_waitcnt vmcnt(0)\ns_barrier")
        A("s_cmp_lg_u32 s17, 0\ns_cbranch_scc1 L2_end")
        A("v_mov_b32 v6, 1\nv_cmp_eq_u32 vcc, 0, v1")
        A("s_and_saveexec_b64 s[50:51], vcc")
        A("global_store_dword v5, v6, s[12:13] sc0 sc1")
        stamp(A, 5); stamp(A, 6)
        stamp_out(A, 2, 17, 12, 8, f"k2b{kh}")
        A("s_endpgm")
        A(f"L2_epiA{kh}:")
        q = 8
        for nb in oth:
            for mb in range(2):
                a = 64 + (nb * 2 + mb) * 4
                A(f"ds_write_b128 v3, a[{a}:{a+3}] offset:{q*1024}"); q += 1
        q = 0
        for nb in own:
            for mb in range(2):
                A(f"global_load_dwordx2 v[{16+q*2}:{17+q*2}], v{6+mb}, s[4:5] offset:{nb*32}"); q += 1
        stamp(A, 5)
        A("s_mov_b32 s44, 0x400000")
        A(f"L2_poll{kh}:")
        A("global_load_dword v15, v5, s[12:13] sc0 sc1")
        A("s_waitcnt vmcnt(0)")
        A("v_readfirstlane_b32 s31, v15")
        A(f"s_cmp_eq_u32 s31, 1\ns_cbranch_scc1 L2_go{kh}")
        A("s_sleep 1")
        A(f"s_sub_u32 s44, s44, 1\ns_cmp_lg_u32 s44, 0\ns_cbranch_scc1 L2_poll{kh}")
        A(f"L2_go{kh}:")
        stamp(A, 6)
        A(f"s_mov_b32 s31, {kh*8192}\ns_mov_b32 s44, {kh*8192+4096}")
        for q in range(8):
            A(f"buffer_load_dwordx4 v[{96+q*4}:{99+q*4}], v2, s[40:43], {'s31' if q < 4 else 's44'} offen offset:{(q%4)*1024} sc0 sc1")
        A("s_waitcnt lgkmcnt(0)\ns_barrier")
        for q in range(16):
            A(f"ds_read_b128 v[{32+q*4}:{35+q*4}], v4 offset:{q*1024}")
        A("s_waitcnt lgkmcnt(0)")
        q = 0
        for nb in own:
            for mb in range(2):
                a = (nb * 2 + mb) * 4
                o, s, p, x = 32 + q * 4, 64 + q * 4, 96 + q * 4, 16 + q * 2
                for i in range(4):
                    A(f"v_accvgpr_read_b32 v{8+i}, a{a+i}")
                for i in range(4):
                    A(f"v_add_f32 v{o+i}, v{o+i}, v{8+i}")
                for i in range(4):
                    A(f"v_accvgpr_read_b32 v{8+i}, a{64+a+i}")
                for i in range(4):
                    A(f"v_add_f32 v{s+i}, v{s+i}, v{8+i}")
                A(f"s_waitcnt vmcnt({7-q+q})" if False else f"s_waitcnt vmcnt(7)")
                for i in range(4):
                    A(f"v_add_f32 v{o+i}, v{o+i}, v{p+i}")
                for i in range(4):
                    A(f"v_mul_f32 v{8+i}, s47, v{o+i}")
                for i in range(4):
                    A(f"v_exp_f32 v{8+i}, v{8+i}")
                for i in range(4):
                    A(f"v_mul_f32 v{s+i}, v{s+i}, v{o+i}")
                for i in range(4):
                    A(f"v_add_f32 v{8+i}, 1.0, v{8+i}")
                for i in range(4):
                    A(f"v_rcp_f32 v{8+i}, v{8+i}")
                A(f"v_lshlrev_b32 v{o}, 16, v{x}\nv_and_b32 v{o+1}, s48, v{x}")
                A(f"v_lshlrev_b32 v{o+2}, 16, v{x+1}\nv_and_b32 v{o+3}, s48, v{x+1}")
                for i in range(4):
                    A(f"v_fmac_f32 v{o+i}, v{s+i}, v{8+i}")
                A(f"v_cvt_pk_bf16_f32 v{x}, v{o}, v{o+1}\nv_cvt_pk_bf16_f32 v{x+1}, v{o+2}, v{o+3}")
                A(f"global_store_dwordx2 v{6+mb}, v[{x}:{x+1}], s[10:11] offset:{nb*32}")
                q += 1
        if STAMPS: A("s_waitcnt vmcnt(0)")
        stamp_out(A, 2, 17, 12, 8, f"k2a{kh}")
        A("s_endpgm")
    A("L2_end:")
    A("s_endpgm")
    kd(A, "g2_kernel", 256, 64, 128)

def main(out):
    A = Asm()
    hdr = open("cdna_kernels/" + NAME + ".s.ref").read().split("\n")
    for l in hdr:
        if l.startswith("; @launch") or l.startswith("; Override") or l.startswith("; grid=ceil"): continue
        if not l.startswith(";"): break
        A.raw(l)
    A.raw("; @launch kernel=ln_kernel grid=(256,1,1) block=(256,1,1) lds=0")
    A.raw("; @launch kernel=g1_kernel grid=(256,1,1) block=(256,1,1) lds=163840")
    A.raw("; @launch kernel=g2_kernel grid=(256,1,1) block=(512,1,1) lds=131072")
    A.raw('.amdgcn_target "amdgcn-amd-amdhsa--gfx950"')
    A.raw(".text")
    k0(A); k1(A); k2(A)
    open(out, "w").write(A.finalize())
main(sys.argv[1])
```

```python
import re

TRANS = ("v_exp_f32", "v_log_f32", "v_rcp_f32", "v_rsq_f32", "v_sqrt_f32", "v_sin_f32", "v_cos_f32")
REG = re.compile(r"(?<![\w.])([vas])(\d+)(?![\w\[])|(?<![\w.])([vas])\[(\d+):(\d+)\]|(?<![\w.])(vcc|exec|m0|scc)(?![\w])")

def regs_of(op):
    out = set()
    for m in REG.finditer(op):
        if m.group(1):
            out.add((m.group(1), int(m.group(2))))
        elif m.group(3):
            for i in range(int(m.group(4)), int(m.group(5)) + 1):
                out.add((m.group(3), i))
        else:
            out.add((m.group(6), 0))
    return out

def split_ops(s):
    ops, depth, cur = [], 0, ""
    for ch in s:
        if ch in "[(":
            depth += 1
        if ch in "])":
            depth -= 1
        if ch == "," and depth == 0:
            ops.append(cur.strip()); cur = ""
        else:
            cur += ch
    if cur.strip():
        ops.append(cur.strip())
    return ops

class Ins:
    def __init__(self, text):
        self.text = text
        t = text.split(";")[0].strip()
        self.op = t.split()[0]
        rest = t[len(self.op):].strip()
        ops = split_ops(rest)
        self.ops = ops
        op = self.op
        self.kind = "other"
        self.w, self.r = set(), set()
        self.cset = set(); self.abset = set()
        self.states = 1
        self.passes = 0
        self.dpp = ("_dpp" in op) or any(k in rest for k in ("row_shr", "row_shl", "row_ror", "quad_perm", "row_mirror", "row_half_mirror", "row_bcast", "row_newbcast"))
        if op == "s_nop":
            self.states = int(ops[0], 0) + 1
            self.kind = "salu"
        elif op.startswith("v_mfma"):
            self.kind = "mfma"
            self.passes = 8 if "32x32" in op else 4
            self.w = regs_of(ops[0])
            self.abset = regs_of(ops[1]) | regs_of(ops[2])
            self.cset = regs_of(ops[3])
            self.r = self.abset | self.cset
        elif op.startswith("v_"):
            self.kind = "valu"
            if op.startswith("v_cmp"):
                self.w = regs_of(ops[0])
                for o in ops[1:]: self.r |= regs_of(o)
                if op.startswith("v_cmpx"): self.w.add(("exec", 0))
            elif "_co_" in op:
                self.w = regs_of(ops[0]) | regs_of(ops[1])
                for o in ops[2:]: self.r |= regs_of(o)
            elif "permlane" in op and "swap" in op:
                self.w = regs_of(ops[0]) | regs_of(ops[1]); self.r = set(self.w)
            else:
                self.w = regs_of(ops[0])
                for o in ops[1:]: self.r |= regs_of(o)
                if op.startswith(("v_fmac", "v_dot2c", "v_pk_fmac", "v_mac")) or self.dpp or op.startswith("v_writelane"):
                    self.r |= self.w
                if op.startswith("v_cndmask") and len(ops) == 3:
                    self.r.add(("vcc", 0))
        elif op.startswith("ds_"):
            self.kind = "ds"
            if op.startswith(("ds_read", "ds_swizzle", "ds_bpermute", "ds_permute")):
                self.w = regs_of(ops[0])
                for o in ops[1:]: self.r |= regs_of(o)
            else:
                for o in ops: self.r |= regs_of(o)
        elif op.startswith(("buffer_", "global_", "flat_")):
            self.kind = "vmem"
            self.lds = (" lds" in (" " + rest)) or ("load_lds" in op)
            isload = "load" in op and not self.lds
            ret_atomic = "atomic" in op and " sc0" in rest
            if isload or (ret_atomic and op.startswith("global_")):
                self.w = regs_of(ops[0])
                for o in ops[1:]: self.r |= regs_of(o)
            else:
                for o in ops: self.r |= regs_of(o)
                if ret_atomic: self.w = regs_of(ops[0])
            if self.lds: self.r.add(("m0", 0))
            self.wide = ("store" in op) and ("x4" in op or "x3" in op)
            if self.wide:
                self.data = regs_of(ops[0]) if op.startswith("buffer_") else regs_of(ops[1])
        elif op.startswith("s_"):
            self.kind = "salu"
            if op.startswith(("s_cmp", "s_cbranch", "s_branch", "s_waitcnt", "s_barrier", "s_endpgm", "s_sleep", "s_setprio", "s_bitcmp")):
                for o in ops: self.r |= regs_of(o)
            else:
                if ops: self.w = regs_of(ops[0])
                for o in ops[1:]: self.r |= regs_of(o)
                if "saveexec" in op: self.w.add(("exec", 0))
        self.trans = op.split("_e")[0] in TRANS or op in TRANS

def need(p, c):
    n = 0
    vw = {x for x in p.w if x[0] in "va"}
    sw = {x for x in p.w if x[0] in ("s", "vcc")}
    if p.kind == "valu":
        if c.kind == "mfma" and vw & c.r: n = max(n, 2)
        if c.kind == "valu":
            if p.trans and not c.trans and (vw & c.r): n = max(n, 1)
            if p.trans and c.trans and (vw & c.r): n = max(n, 1)
            if vw & c.r:
                if c.op.startswith(("v_readfirstlane", "v_readlane")): n = max(n, 1)
                if c.dpp or "permlane" in c.op: n = max(n, 2)
            if sw & c.r:
                n = max(n, 4 if c.op.startswith(("v_readlane", "v_writelane")) else 2)
            if ("exec", 0) in p.w:
                n = max(n, 5 if c.dpp else (4 if ("permlane" in c.op or "readlane" in c.op or "readfirstlane" in c.op) else 0))
        if c.kind == "vmem" and sw & c.r: n = max(n, 5)
        if c.kind == "mfma" and ("exec", 0) in p.w: n = max(n, 4)
        if c.kind == "salu" and sw & c.r: n = max(n, 1)
    if p.kind == "mfma":
        big = p.passes == 8
        if c.kind == "mfma":
            if p.w & c.abset: n = max(n, 12 if big else 8)
            if p.w & c.cset and not (p.w == c.cset and p.passes == c.passes): n = max(n, 10 if big else 6)
            if (p.w & c.w) and not (p.w == c.cset): n = max(n, 10 if big else 6)
        elif c.kind in ("valu", "ds", "vmem"):
            if p.w & (c.r | c.w): n = max(n, 12 if big else 8)
        if c.kind == "valu" and p.cset & c.w: n = max(n, 7 if big else 3)
    if p.kind == "salu" and ("m0", 0) in p.w and c.kind == "vmem" and getattr(c, "lds", False): n = max(n, 1)
    if p.kind == "vmem" and getattr(p, "wide", False):
        if p.data & c.w: n = max(n, 2 if c.kind == "valu" else 1)
    return n

MAC = """.macro MM d, a, b
v_mfma_f32_16x16x32_bf16 \\d, \\a, \\b, \\d
.endm
.macro TR d, a, o
ds_read_b64_tr_b16 \\d, \\a offset:\\o
.endm"""
_mm = re.compile(r"v_mfma_f32_16x16x32_bf16 (\S+), (\S+), (\S+), (\S+)$")
_tr = re.compile(r"ds_read_b64_tr_b16 (\S+), (\S+) offset:(\d+)$")
def compress(t):
    m = _mm.match(t)
    if m and m.group(1) == m.group(4):
        return f"MM {m.group(1)},{m.group(2)},{m.group(3)}"
    m = _tr.match(t)
    if m:
        return f"TR {m.group(1)},{m.group(2)},{m.group(3)}"
    return " ".join(t.split())

def cost(t):
    if t.startswith("@tag") or t.endswith(":") or t.startswith(";"): return 0
    op = t.split()[0]
    if op.split("_e")[0] in TRANS: return 8
    if op.startswith("v_mfma"): return 16
    return 4

class Asm:
    def __init__(self):
        self.lines = []
        self.nds = 0; self.nvm = 0
        self.tags = {}
    def I(self, text):
        for t in text.split("\n"):
            t = t.strip()
            if not t: continue
            if t.startswith("@"):
                p = t.split()
                if p[0] == "@tag":
                    self.tags[p[1]] = (self.nds, self.nvm)
                elif p[0] == "@wl":
                    n = min(15, self.nds - self.tags[p[1]][0])
                    self.lines.append(("ins", f"s_waitcnt lgkmcnt({n})"))
                elif p[0] == "@wv":
                    n = min(63, self.nvm - self.tags[p[1]][1])
                    self.lines.append(("ins", f"s_waitcnt vmcnt({n})"))
                else:
                    raise ValueError(t)
            elif t.startswith(";") or t.startswith("."):
                self.lines.append(("raw", t))
            elif t.endswith(":"):
                self.lines.append(("label", t))
            else:
                if t.startswith("ds_"): self.nds += 1
                if t.startswith(("buffer_", "global_")): self.nvm += 1
                self.lines.append(("ins", t))
    __call__ = I
    def raw(self, t):
        self.lines.append(("raw", t))
    def finalize(self, verbose=False):
        out = []
        hist = []
        labels = {}
        nins = 0
        def required(c, hist, dist=0):
            req = 0
            for p in reversed(hist):
                n = need(p, c)
                if n > dist: req = max(req, n - dist)
                dist += p.states
                if dist >= 16: break
            return req
        items = self.lines
        for i, (k, t) in enumerate(items):
            if k == "label": labels[t[:-1]] = i
        for i, (k, t) in enumerate(items):
            if k != "ins":
                out.append(t if k == "label" or t.startswith(".") or t.startswith(";") else t)
                if k == "raw" and t.startswith(".amdhsa_kernel"): hist = []
                continue
            c = Ins(t)
            req = required(c, hist)
            if c.op.startswith(("s_cbranch", "s_branch")):
                tgt = c.ops[0]
                if tgt in labels:
                    d = 1
                    j = labels[tgt] + 1
                    extra = 0
                    while j < len(items) and d < 14:
                        if items[j][0] == "ins":
                            c2 = Ins(items[j][1])
                            r2 = required(c2, hist, d)
                            extra = max(extra, r2)
                            d += c2.states
                            if c2.op in ("s_branch", "s_endpgm"): break
                        j += 1
                    req = max(req, extra)
            while req > 0:
                n = min(req, 16)
                nop = Ins(f"s_nop {n-1}")
                out.append(nop.text + " ;hz")
                hist.append(nop); nins += 1
                req -= n
                if verbose: print("pad", n, "before", t)
            out.append(compress(t))
            hist.append(c)
            if c.op in ("s_branch", "s_endpgm"): hist = []
            hist = hist[-20:]
        return "\n".join(out) + "\n"
```

```python
import sys
from asmlib import Asm, MAC, cost

NAME = "recurrent_scan__linear_attn_block__glu_gated_swiglu__prompt"
XN_OFF = 0
ACT_OFF = 4 << 20
KVP_OFF = 24 << 20
KVP_STRIDE = 8448
P_OFF = 32 << 20
FLAG_OFF = 48 << 20
STAMP_OFF = 56 << 20
LOG2E = 0x3fb8aa3b
NLOG2E = 0xbfb8aa3b
EPS6 = 0x358637bd
EPS5 = 0x3727c5ac
SPIN = 0x40000

def opt(name, default=""):
    for a in sys.argv:
        if a.startswith("--" + name + "="): return a.split("=", 1)[1].replace("+", " ")
    return default
STAMPS = "--stamps" in sys.argv
ROT = int(opt("rot", "0"))
L2PF = int(opt("l2pf", "0"))
XFIRST = int(opt("xfirst", "1"))
WU = int(opt("wu", "10"))
RB = int(opt("rb", "0"))
RINV = int(opt("rinv", "0"))
CPF = int(opt("cpf", "1"))
ECPF = int(opt("ecpf", "1"))
W1E = int(opt("w1e", "0"))
W1J = int(opt("w1j", "6"))
P16 = int(opt("p16", "1"))
KVE = int(opt("kve", "1"))
NA = int(opt("na", "12"))
F_X0 = opt("x0", "nt")
F_W1P = opt("w1p", "nt")
F_W1 = opt("w1", "nt")
SC = "sc0 sc1"
F_XN = opt("xn", "sc1")
F_H = opt("h", "sc1")
F_HST = opt("hst", SC)

def stamp(A, idx, tail=False):
    if not STAMPS: return
    if opt("tailst") and 16 <= idx < 26 and not tail: return
    A("s_memtime s[100:101]" if opt("cyc") else "s_memrealtime s[100:101]")
    A("s_waitcnt lgkmcnt(0)")
    A(f"v_writelane_b32 v0, s100, {idx}")
def stamp_out(A, idx, tag):
    if not STAMPS: return
    A("s_waitcnt vmcnt(0)")
    stamp(A, idx)
    A(f"s_cmp_lg_u32 s24, 0\ns_cbranch_scc1 LS_{tag}")
    A(f"s_lshl_b32 s100, s2, 7\ns_add_u32 s100, s100, {STAMP_OFF}")
    A("v_lshl_add_u32 v20, v1, 2, s100")
    A("s_mov_b64 exec, 0xffffffff")
    A("global_store_dword v20, v0, s[22:23]")
    if opt("dbgst"):
        A(f"s_cmp_lg_u32 s2, 0\ns_cbranch_scc1 LS_{tag}")
        A("v_readlane_b32 s30, v0, 0\ns_mov_b64 exec, 1")
        for w, idx in zip((1, 3, 4, 5, 7, 9, 11, 12, 13, 15), (1, 3, 5, 6, 8, 9, 11, 12, 13, 15)):
            A(f"v_readlane_b32 s31, v0, {idx}\ns_sub_u32 s31, s31, s30\nv_mov_b32 v21, s31\nv_mov_b32 v22, {w*4}")
            A("global_store_dword v22, v21, s[20:21]")
    A(f"LS_{tag}:")

def srd(A, d, lo, off, nrec):
    A(f"s_add_u32 s{d}, s{lo}, {off}")
    A(f"s_addc_u32 s{d+1}, s{lo+1}, 0")
    A(f"s_mov_b32 s{d+2}, {nrec}")
    A(f"s_mov_b32 s{d+3}, 0x20000")

_lab = [0]
def newlab(p):
    _lab[0] += 1
    return f"L{p}{_lab[0]}"

def spin(vaddr, base, target, vtmp, first_loaded=False, sleep=1, off=0):
    l, d = newlab("p"), newlab("d")
    g = []
    if first_loaded:
        g += [f"v_readfirstlane_b32 s30, v{vtmp}", f"s_cmp_ge_u32 s30, {target}", f"s_cbranch_scc1 {d}"]
    g += [f"s_mov_b32 s31, {SPIN}", f"{l}:",
          f"global_load_dword v{vtmp}, v{vaddr}, s[{base}:{base+1}] offset:{off} sc1", "s_waitcnt vmcnt(0)",
          f"v_readfirstlane_b32 s30, v{vtmp}", f"s_cmp_ge_u32 s30, {target}", f"s_cbranch_scc1 {d}",
          f"s_sleep {sleep}", "s_sub_u32 s31, s31, 1", "s_cmp_lg_u32 s31, 0", f"s_cbranch_scc1 {l}", f"{d}:"]
    return g

def signal(vaddr, base, v1, off=0):
    l = newlab("s")
    return ["s_cmp_lg_u32 s24, 0", f"s_cbranch_scc1 {l}", f"v_mov_b32 v{v1}, 1", "s_mov_b64 exec, 1",
            f"global_atomic_add v{vaddr}, v{v1}, s[{base}:{base+1}] offset:{off} sc1", "s_mov_b64 exec, -1", f"{l}:"]

def emit_group(A, it, uncounted=False):
    if isinstance(it, str): it = [it]
    for t in it: A(t)

def emit_stream(A, mf, fill, batches):
    bi = 0; pos = 0; done = 0
    def icost(it): return cost(it) if isinstance(it, str) else sum(cost(t) for t in it[:6])
    tot = [sum(icost(x) for x in b[2]) for b in batches]
    for i, m in enumerate(mf):
        A(m)
        for t in fill[i]: emit_group(A, t)
        while bi < len(batches) and batches[bi][0] <= i:
            st, en, items = batches[bi]
            want = tot[bi] * min(1.0, (i - st + 1) / max(1, en - st))
            while pos < len(items) and done < want:
                emit_group(A, items[pos]); done += icost(items[pos]); pos += 1
            while pos < len(items) and icost(items[pos]) == 0:
                emit_group(A, items[pos]); pos += 1
            if pos >= len(items):
                bi += 1; pos = 0; done = 0
            else:
                break
    while bi < len(batches):
        items = batches[bi][2]
        while pos < len(items):
            emit_group(A, items[pos]); pos += 1
        bi += 1; pos = 0

def emit_sync(A, g):
    n = A.nvm
    for t in g: A(t)
    A.nvm = n
class Unc(list):
    pass
def emit_group(A, it):
    if isinstance(it, str): A(it)
    elif isinstance(it, Unc): emit_sync(A, it)
    else:
        for t in it: A(t)

class Inject:
    def __init__(self, A, L, every, skip=0): self.A, self.L, self.every, self.n = A, list(L), every, -skip
    def __call__(self, text):
        for t in text.split("\n"):
            self.A(t); self.n += 1
            if self.n <= 0: continue
            if self.L and self.n % self.every == self.every - 2 and self.L[0][0]: self.A(self.L[0][0])
            if self.L and self.n % self.every == 0: self.A(self.L.pop(0)[1])

def ln_part(A):
    X, F, S, Vv = 64, 80, 112, 116
    A("s_mov_b32 s3, 0xffff0000")
    for i in range(16):
        A(f"v_lshlrev_b32 v{F+2*i}, 16, v{X+i}")
        A(f"v_and_b32 v{F+1+2*i}, s3, v{X+i}")
    def reduce32(r, t):
        for m in ("quad_perm:[1,0,3,2]", "quad_perm:[2,3,0,1]", "row_half_mirror", "row_mirror"):
            A(f"v_add_f32_dpp v{r}, v{r}, v{r} {m} row_mask:0xf bank_mask:0xf")
        A(f"v_mov_b32 v{t}, v{r}")
        A(f"v_permlane16_swap_b32 v{t}, v{r}")
        A(f"v_add_f32 v{r}, v{r}, v{t}")
    for i in range(2):
        A(f"v_pk_add_f32 v[{S+2*i}:{S+2*i+1}], v[{F+2*i}:{F+2*i+1}], v[{F+4+2*i}:{F+5+2*i}]")
    for b in range(2, 8):
        for i in range(2):
            A(f"v_pk_add_f32 v[{S+2*i}:{S+2*i+1}], v[{S+2*i}:{S+2*i+1}], v[{F+4*b+2*i}:{F+4*b+2*i+1}]")
    A(f"v_pk_add_f32 v[{S}:{S+1}], v[{S}:{S+1}], v[{S+2}:{S+3}]")
    A(f"v_add_f32 v{S}, v{S}, v{S+1}")
    reduce32(S, S + 1)
    A(f"v_mul_f32 v{S}, 0xba800000, v{S}")
    A(f"v_mov_b32 v{S+1}, v{S}")
    for i in range(16):
        t = X + 2 * (i % 4)
        A(f"v_pk_add_f32 v[{t}:{t+1}], v[{F+2*i}:{F+2*i+1}], v[{S}:{S+1}]")
        a = Vv + 2 * (i % 2)
        if i < 2:
            A(f"v_pk_mul_f32 v[{a}:{a+1}], v[{t}:{t+1}], v[{t}:{t+1}]")
        else:
            A(f"v_pk_fma_f32 v[{a}:{a+1}], v[{t}:{t+1}], v[{t}:{t+1}], v[{a}:{a+1}]")
    A(f"v_pk_add_f32 v[{Vv}:{Vv+1}], v[{Vv}:{Vv+1}], v[{Vv+2}:{Vv+3}]")
    A(f"v_add_f32 v{Vv}, v{Vv}, v{Vv+1}")
    A(f"v_cvt_pk_bf16_f32 v{S}, v{S}, v{S}\nv_and_b32 v{S}, s3, v{S}\nv_mov_b32 v{S+1}, v{S}")
    reduce32(Vv, Vv + 1)
    chain = [f"v_mul_f32 v{Vv}, 0x3a800000, v{Vv}", f"v_cvt_pk_bf16_f32 v{Vv}, v{Vv}, v{Vv}", f"v_and_b32 v{Vv}, s3, v{Vv}",
             f"v_add_f32 v{Vv}, {EPS5:#x}, v{Vv}", f"v_cvt_pk_bf16_f32 v{Vv}, v{Vv}, v{Vv}", f"v_and_b32 v{Vv}, s3, v{Vv}",
             f"v_sqrt_f32 v{Vv}, v{Vv}", f"v_cvt_pk_bf16_f32 v{Vv}, v{Vv}, v{Vv}", f"v_and_b32 v{Vv}, s3, v{Vv}",
             f"v_rcp_f32 v{Vv}, v{Vv}", f"v_mov_b32 v{Vv+1}, v{Vv}"]
    for i in range(16):
        a = F + 2 * i
        A(f"v_pk_add_f32 v[{a}:{a+1}], v[{a}:{a+1}], v[{S}:{S+1}]")
        if chain: A(chain.pop(0))
        A(f"v_cvt_pk_bf16_f32 v{a+1}, v{a}, v{a+1}")
        A(f"v_lshlrev_b32 v{a}, 16, v{a+1}\nv_and_b32 v{a+1}, s3, v{a+1}")
    for i in range(16):
        a = F + 2 * i
        A(f"v_pk_mul_f32 v[{a}:{a+1}], v[{a}:{a+1}], v[{Vv}:{Vv+1}]")
        A(f"v_cvt_pk_bf16_f32 v{X+i}, v{a}, v{a+1}")

def merge(a, b, f0=0.0, f1=1.0):
    i0, i1 = int(len(a) * f0), int(len(a) * f1)
    out = list(a[:i0]); b = list(b); n = len(b); done = 0
    for i, x in enumerate(a[i0:i1]):
        out.append(x)
        while b and done < n * (i + 1) // (i1 - i0):
            out.append(b.pop(0)); done += 1
    return out + b + list(a[i1:])

class K1:
    VO6, VO7, VOH, VX1 = 16, 17, 18, 19
    def __init__(self, A, typ):
        self.A = A; self.typ = typ
        ag = [4, 5, 6, 7, 16, 17, 18, 19] if typ == "Q" else [4, 5, 6, 7, 12, 13, 14, 15]
        self.acc = {}
        na = nv = 0
        for nb in range(20):
            for mb in range(4):
                if nb in ag: self.acc[(nb, mb)] = ("a", na); na += 4
                else: self.acc[(nb, mb)] = ("v", 64 + nv); nv += 4
        self.u = 0
    def q(self, nb, mb):
        f, r = self.acc[(nb, mb)]; assert f == "v"; return r
    def xfrag(self, xs, kh, mb): return 128 + xs * 32 + (kh * 4 + mb) * 4
    def reads(self, ring, nb, slot):
        out = []
        grp, sub = nb // 4, nb % 4
        for kh in range(2):
            for h4 in range(2):
                r = 32 + ring * 8 + kh * 4 + 2 * h4
                if self.typ == "KV" and grp == 4:
                    v, imm = 12 + sub % 2, slot * 8192 + (sub // 2) * 4096 + kh * 2048 + h4 * 256
                else:
                    v, imm = 4 + (grp // 2) * 4 + sub, (grp % 2) * 32768 + slot * 8192 + kh * 4096 + h4 * 512
                out.append(f"ds_read_b64_tr_b16 v[{r}:{r+1}], v{v} offset:{imm}")
        return out
    def mfmas(self, ring, nb, slot):
        out = []
        sw = self.typ == "KV" and nb < 8
        for mb in range(4):
            for kh in range(2):
                w = 32 + ring * 8 + kh * 4; x = self.xfrag(slot, kh, mb)
                wa, xa = f"v[{w}:{w+3}]", f"a[{x}:{x+3}]"
                f, r = self.acc[(nb, mb)]; acc = f"{f}[{r}:{r+3}]"
                out.append(f"v_mfma_f32_16x16x32_bf16 {acc}, {xa if sw else wa}, {wa if sw else xa}, {acc}")
        return out
    def wloads(self, slot, fl):
        dma = []
        for grp in range(5):
            for half in range(2):
                s = 32 + 4 * grp
                isqkv = (grp == 2) if self.typ == "Q" else (grp < 2)
                if self.typ == "KV" and grp == 4:
                    pre = f"s_add_u32 m0, s79, {131072 + slot*8192 + half*2048}"
                    ins = f"buffer_load_dwordx4 v{self.VOH}, s[{s}:{s+3}], s{74+half} offen {fl} lds"
                else:
                    pre = f"s_add_u32 m0, s78, {grp*32768 + slot*8192 + half*4096}"
                    ins = f"buffer_load_dwordx4 v{self.VO6 if isqkv else self.VO7}, s[{s}:{s+3}], s{(72 if isqkv else 74)+half} offen {fl} lds"
                dma.append((pre, ins))
        return dma
    def xloads(self, slot, so=76):
        xl = []
        for kh in range(2):
            for mb in range(4):
                r = self.xfrag(slot, kh, mb)
                xl.append((None, f"buffer_load_dwordx4 a[{r}:{r+3}], v{2 if kh == 0 else self.VX1}, s[52:55], s{so} offen offset:{mb*1024} {F_XN}"))
        return xl
    def loads(self, slot):
        d, x = self.wloads(slot, F_W1), self.xloads(slot)
        L = []
        while d or x:
            if d: L.append(d.pop(0))
            if x: L.append(x.pop(0))
        return L
    def adv(self):
        return [f"s_add_u32 s72, s72, {64*6144}", f"s_add_u32 s73, s73, {64*6144}", f"s_add_u32 s74, s74, {64*7168}",
                f"s_add_u32 s75, s75, {64*7168}", "s_add_u32 s76, s76, 8192"]
    def l2pf(self):
        l = newlab("f")
        g = ["s_cmp_ge_u32 s90, 1024", f"s_cbranch_scc1 {l}", "s_mul_i32 s10, s90, 6144", "s_mul_i32 s30, s90, 7168",
             f"s_add_u32 s11, s10, {32*6144}", f"s_add_u32 s31, s30, {32*7168}"]
        for pre, ins in self.wloads(0, "nt"):
            ins = ins.replace("buffer_load_dwordx4 ", "buffer_load_dwordx4 v[28:31], ").replace(" lds", "")
            ins = ins.replace("s72", "s10").replace("s73", "s11").replace("s74", "s30").replace("s75", "s31")
            g.append(ins)
        g += [f"{l}:", "s_add_u32 s90, s90, 512"]
        return g
    def stage(self, slot, nxt_units, vmw, pf=(), lastld=False):
        ls = (slot + 3) % 4
        units = [(nb, slot) for nb in range(20)] + list(nxt_units)
        mf, fill = [], []
        for u in range(20):
            f = [[] for _ in range(8)]
            rd = self.reads((u + 2) % 4, *units[u + 2])
            if u == 18:
                f[1] += (["@wv x14", "s_waitcnt lgkmcnt(0)"] if lastld else [f"s_waitcnt vmcnt({vmw}) lgkmcnt(0)"]) + ["s_barrier"]
                for i, j in enumerate((2, 3, 4, 5)): f[j].append(rd[i])
                f[5].append("@tag t0")
            else:
                for i, j in enumerate((0, 2, 4, 6)): f[j].append(rd[i])
                if u == 19: f[6].append("@tag t1")
                f[7].append("s_waitcnt lgkmcnt(4)")
            if u == 19 and not lastld:
                a = self.adv()
                f[1] += a[0:2]; f[3] += a[2:4]; f[5] += a[4:5]
            mf += self.mfmas(u % 4, *units[u]); fill += f
        def odd(p): return p | 1
        W, X = self.wloads(ls, F_W1), self.xloads((slot + 2) % 4)
        wu = WU
        if lastld:
            X += [("s_add_u32 s76, s76, 8192" if i == 0 else None, ins) for i, (_, ins) in enumerate(self.xloads(ls))]
            wu = 10
        nx = len(X)
        if XFIRST:
            xu = 18 - wu
            pos = [odd(xu * 8 + 2 + i * (wu * 8 - 2) // 10) for i in range(10)] + [odd(2 + 2 * len(pf) + i * (xu * 8 - 2 * len(pf)) // nx) for i in range(nx)]
        else:
            pos = [odd(2 + 2 * len(pf) + i * (wu * 8 - 2 * len(pf)) // 10) for i in range(10)] + [odd(wu * 8 + 2 + i * ((18 - wu) * 8 - 2) // nx) for i in range(nx)]
        L = W + X
        for i, p in enumerate(pf): fill[1 + 2 * i] += p
        for (pre, ins), p in zip(L, pos):
            assert p < 145
            if pre: fill[p - 1].append(pre)
            fill[p].append(ins)
        fill[max(pos)].append("@tag kld")
        if lastld: fill[pos[17]].append("@tag x14")
        emit_stream(self.A, mf, fill, [])
    def phi(self, r, d0):
        it = [f"v_mul_f32 v{20+i}, s86, v{r+i}" for i in range(4)]
        for i in range(4):
            it += [f"v_exp_f32_e64 v{20+i}, v{20+i} clamp", f"v_max_f32 v{r+i}, s88, v{r+i}"]
        it += [f"v_add_f32 v{r+i}, v{r+i}, v{20+i}" for i in range(4)]
        it += [f"v_cvt_pk_bf16_f32 v{d0}, v{r}, v{r+1}", f"v_cvt_pk_bf16_f32 v{d0+1}, v{r+2}, v{r+3}"]
        return it
    def store_act(self, d, mb, ks, imm_k, fl):
        return f"buffer_store_dwordx4 v[{d}:{d+3}], v{2 if mb < 2 else 31 if False else 3}, s[56:59], s{ks} offen offset:{imm_k*2048 + (mb&1)*1024} {fl}"
    def gu(self, gb, ub, pos, pk=False):
        it = [f"s_add_u32 s84, s83, {pos*8192}"]
        if pk: it += ["v_mov_b32 v36, s87", "v_mov_b32 v37, s87", "v_mov_b32 v38, 1.0", "v_mov_b32 v39, 1.0"]
        P = lambda r: f"v[{r}:{r+1}]"
        for mb in range(4):
            d = self.q(gb, mb)
            for p in range(2):
                g = self.q(gb + p, mb); fu, u = self.acc[(ub + p, mb)]
                rd = [[f"v_accvgpr_read_b32 v{24+i}, a{u+i}"] if fu == "a" else [] for i in range(4)]
                if fu == "a": u = 24
                if pk: it += [f"v_pk_mul_f32 {P(20+i)}, {P(g+i)}, {P(36)}" for i in (0, 2)]
                else: it += [f"v_mul_f32 v{20+i}, s87, v{g+i}" for i in range(4)]
                for i in range(4):
                    it += [f"v_exp_f32 v{20+i}, v{20+i}"] + rd[i]
                if pk:
                    it += [f"v_pk_mul_f32 {P(g+i)}, {P(g+i)}, {P(u+i)}" for i in (0, 2)]
                    it += [f"v_pk_add_f32 {P(20+i)}, {P(20+i)}, {P(38)}" for i in (0, 2)]
                    it += [f"v_rcp_f32 v{20+i}, v{20+i}" for i in range(4)]
                    it += [f"v_pk_mul_f32 {P(g+i)}, {P(g+i)}, {P(20+i)}" for i in (0, 2)]
                else:
                    it += [f"v_add_f32 v{20+i}, 1.0, v{20+i}" for i in range(4)]
                    for i in range(4):
                        it += [f"v_rcp_f32 v{20+i}, v{20+i}", f"v_mul_f32 v{g+i}, v{g+i}, v{u+i}"]
                    it += [f"v_mul_f32 v{g+i}, v{g+i}, v{20+i}" for i in range(4)]
                it += [f"v_cvt_pk_bf16_f32 v{d+2*p}, v{g}, v{g+1}", f"v_cvt_pk_bf16_f32 v{d+2*p+1}, v{g+2}, v{g+3}"]
            it.append(self.store_act(d, mb, 84, 0, F_HST))
        return it
    def tail_units(self):
        if self.typ == "KV":
            nbs = [0,1,2,3, 4,5,6,7, 8,9,12,13, 10,11,14,15, 16,17,18,19]
        else:
            nbs = [0,1,4,5, 2,3,6,7, 8,9,10,11, 12,13,16,17, 14,15,18,19]
        return [(nb, s) for nb in nbs[:4] for s in (1, 2)] + [(nb, 3) for nb in nbs[:4]] + [(nb, s) for nb in nbs[4:] for s in (1, 2, 3)]
    def tail(self, batches):
        units = self.tail_units()
        mf, fill = [], []
        for u in range(60):
            f = [[] for _ in range(8)]
            if u == 5: f[7] += ["@wv kld", "s_barrier"]
            if u + 2 < 60:
                rd = self.reads((u + 2) % 4, *units[u + 2])
                for i, j in enumerate((0, 2, 4, 6)): f[j].append(rd[i])
                f[6].append(f"@tag t{u+2}")
            if u + 1 < 60: f[7].append(f"@wl t{u+1}")
            if STAMPS and opt("tailst") and u % 6 == 5:
                f[7] += ["s_memtime s[100:101]" if opt("cyc") else "s_memrealtime s[100:101]", "s_waitcnt lgkmcnt(0)", f"v_writelane_b32 v0, s100, {16 + u // 6}"]
            mf += self.mfmas(u % 4, *units[u]); fill += f
        emit_stream(self.A, mf, fill, batches)
    def batches_kv(self):
        B = []
        def ph(db): return sum([self.phi(self.q(db, mb), self.q(db, mb & 2) + 2 * (mb & 1)) for mb in range(4)], [])
        def vp(eb):
            it = []
            for mb in range(4):
                f, r = self.acc[(4 + eb, mb)]
                d = self.q(eb, (mb & 2) + 1) + 2 * (mb & 1)
                if f == "a":
                    it += [f"v_accvgpr_read_b32 v{24+i}, a{r+i}" for i in range(4)]; r = 24
                it += [f"v_cvt_pk_bf16_f32 v{d}, v{r}, v{r+1}", f"v_cvt_pk_bf16_f32 v{d+1}, v{r+2}, v{r+3}"]
            return it
        pre = [f"v_mov_b32 v{28+i}, 0x3f803f80" for i in range(4)]
        pre += [["s_lshl_b32 s30, s24, 15", "v_add_u32 v16, s30, v2"],
                "v_lshrrev_b32 v19, 4, v1", "v_lshlrev_b32 v19, 4, v19",
                ["s_lshl_b32 s30, s24, 8", "s_add_u32 s30, s30, 0x20000", "v_add_u32 v17, s30, v19"],
                ["s_lshl_b32 s30, s24, 11", "v_add_u32 v18, s30, v2"],
                ["s_lshl_b32 s30, s24, 6", "v_add_u32 v19, s30, v19"]]
        B.append((0, 24, pre))
        B.append((50, 78, K2.xaddr(24, 25) + K2.xres(24, 25)))
        B += [(78, 104, ph(0)), (104, 130, ph(1)), (130, 156, ph(2)), (156, 162, vp(0)), (162, 186, ph(3)),
              (186, 191, vp(1)), (191, 196, vp(2)), (198, 204, vp(3))]
        Z = 32
        it = []
        for sg in range(2):
            for hd in range(2):
                for db in range(2):
                    pk = self.q(hd * 2 + db, 2 * sg)
                    for eb in range(2):
                        vv = self.q(hd * 2 + eb, 2 * sg + 1)
                        d = ((hd * 2 + eb) * 2 + db) * 4
                        it.append(f"v_mfma_f32_16x16x32_bf16 a[{d}:{d+3}], v[{pk}:{pk+3}], v[{vv}:{vv+3}], {'0' if sg == 0 else f'a[{d}:{d+3}]'}")
                    d = Z + (hd * 2 + db) * 4
                    it.append(f"v_mfma_f32_16x16x32_bf16 a[{d}:{d+3}], v[{pk}:{pk+3}], v[28:31], {'0' if sg == 0 else f'a[{d}:{d+3}]'}")
        B.append((205, 215, it))
        it = [f"ds_write_b128 v16, a[{q*4}:{3+q*4}] offset:{q*1024}" for q in range(8)]
        it.append(["s_mov_b32 s30, 0x00010001", "s_mov_b32 s31, 0x00010001", "s_mov_b64 exec, s[30:31]"] +
                  [f"ds_write_b128 v17, a[{Z+q*4}:{Z+q*4+3}] offset:{q*64}" for q in range(4)] + ["s_mov_b64 exec, -1", "@tag kvw"])
        B.append((219, 225, it))
        it = [["@wl kvw", "s_barrier"], "v_add_u32 v16, 0x10000, v18", "v_add_u32 v17, 0x20000, v19"]
        for w in range(4):
            va = 18 if w < 2 else 16
            it.append(f"ds_read_b128 v[{64+w*12}:{67+w*12}], v{va} offset:{(w%2)*32768}")
            it.append(f"ds_read_b128 v[{68+w*12}:{71+w*12}], v{va} offset:{(w%2)*32768+1024}")
            it.append(f"ds_read_b128 v[{72+w*12}:{75+w*12}], v17 offset:{w*256}")
        it.append("@tag kvr")
        B.append((230, 237, it))
        it = ["@wl kvr"]
        for i in range(12):
            it += [f"v_add_f32 v{64+i}, v{64+i}, v{76+i}", f"v_add_f32 v{88+i}, v{88+i}, v{100+i}"]
        it += [f"v_add_f32 v{64+i}, v{64+i}, v{88+i}" for i in range(12)]
        it += [f"s_mul_i32 s10, s26, {KVP_STRIDE}", "s_add_u32 s11, s10, 8192",
               f"buffer_store_dwordx4 v[64:67], v18, s[60:63], s10 offen {SC}",
               f"buffer_store_dwordx4 v[68:71], v18, s[60:63], s10 offen offset:1024 {SC}",
               ["s_mov_b32 s30, 0x00010001", "s_mov_b32 s31, 0x00010001", "s_mov_b64 exec, s[30:31]",
                f"buffer_store_dwordx4 v[72:75], v19, s[60:63], s11 offen {SC}", "s_mov_b64 exec, -1", "@tag kvs"]]
        B.append((243, 254, it))
        g0 = self.gu(8, 12, 4)
        k = len(g0) // 3
        pub = [["@wv kvs", "s_barrier"], "v_mov_b32 v16, s89", Unc(signal(16, 20, 17))]
        B.append((256, 286, self.k2.setup_early()))
        B.append((288, 290, pub))
        smp, chk = self.hA()
        xf = self.k2.xfirst()
        B.append((294, 384, merge(merge(smp + g0, self.k2.wfirst(), 0, 0.6), chk + xf[:10], 0.65, 1.0) + ["@tag hA"]))
        B.append((390, 480, merge(self.h1mix(self.gu(10, 14, 10), 768), xf[10:], 0.0, 0.28)))
        self.last = self.gu(16, 18, 12, pk=True)
        self.lastld = []
        return B
    def hA(self):
        return ([["global_load_dword v29, v30, s[22:23] sc1", "@tag h1s"]],
                ["@wv h1s", Unc(spin(30, 22, 16, 29, True, sleep=4))])
    def h1mix(self, g, off, after=(), f=0.3, f1=1.0):
        k = int(len(g) * f)
        pub = [["@wv hA", "s_barrier"], Unc(signal(30, 22, 31, off))]
        return g[:k] + pub + merge(g[k:], after, 0, f1)
    def pquads(self):
        return [self.q(nb, mb) for nb in (0, 1, 2, 3) for mb in range(4)] + [self.q(nb, mb) for nb in (9, 11) for mb in range(4)]
    def batches_q(self):
        B = []
        def ph(nb): return sum([self.phi(self.q(8 + nb, mb), self.q(8 + (nb & 2), mb) + 2 * (nb & 1)) for mb in range(4)], [])
        pre = ["v_mov_b32 v16, s89",
               "v_lshrrev_b32 v19, 4, v1", "v_lshlrev_b32 v19, 4, v19",
               ["s_lshl_b32 s30, s24, 11", "v_add_u32 v18, s30, v2"],
               ["s_lshl_b32 s30, s24, 6", "s_add_u32 s30, s30, 8192", "v_add_u32 v19, s30, v19"]]
        B.append((0, 24, pre))
        B.append((50, 78, K2.xaddr(24, 25) + K2.xres(24, 25)))
        B.append((78, 102, self.k2.setup_early()))
        B.append((102, 192, self.gu(0, 4, 0) + ["@tag hA"]))
        B.append((198, 288, self.h1mix(self.gu(2, 6, 2), 0, self.k2.wfirst()) + ["@tag hA"]))
        smp, chk = self.hA()
        phq = ph(0) + ph(1) + ph(2) + ph(3)
        k = len(phq) // 4
        B.append((294, 388, smp + self.h1mix(phq, 1024, chk + self.k2.xfirst(), f=0.33)))
        P = self.pquads()
        ld = []
        for p in range(8):
            ld.append([f"s_mov_b32 s10, {p*KVP_STRIDE}",
                       f"buffer_load_dwordx4 v[{P[3*p]}:{P[3*p]+3}], v18, s[60:63], s10 offen sc1"])
            ld.append(f"buffer_load_dwordx4 v[{P[3*p+1]}:{P[3*p+1]+3}], v18, s[60:63], s10 offen offset:1024 sc1")
            ld.append(f"buffer_load_dwordx4 v[{P[3*p+2]}:{P[3*p+2]+3}], v19, s[60:63], s10 offen sc1")
        ld.append("@tag kvl")
        chk = ["@wv kvp", Unc(spin(16, 20, 8, 17, True))]
        smp = ["global_load_dword v17, v16, s[20:21] sc1", "@tag kvp"]
        g2 = self.gu(12, 16, 6)
        f = float(opt("kvk", "0.4"))
        k0, k = int(len(g2) * (f - 0.25)), int(len(g2) * f)
        nl = int(opt("kvn", "18"))
        B.append((390, 480, g2[:k0] + smp + g2[k0:k] + chk + merge(g2[k:], ld[:nl])))
        self.lastld = ld[nl:]
        self.last = self.gu(14, 18, 8, pk=True)
        return B
    def opath1(self):
        A = self.A; P = self.pquads()
        A("@wv kvl")
        for p in range(1, 8):
            for j in range(3):
                for i in range(0, 4, 2):
                    a, b = P[j] + i, P[3 * p + j] + i
                    A(f"v_pk_add_f32 v[{a}:{a+1}], v[{a}:{a+1}], v[{b}:{b+1}]")
        for j in range(3):
            A(f"v_cvt_pk_bf16_f32 v{20+2*j}, v{P[j]}, v{P[j]+1}\nv_cvt_pk_bf16_f32 v{21+2*j}, v{P[j]+2}, v{P[j]+3}")
        A("s_lshl_b32 s30, s24, 10\ns_add_u32 s30, s30, 0x20000\nv_add_u32 v26, s30, v2")
        A("ds_write_b128 v26, v[20:23]")
        A("s_lshr_b32 s30, s24, 1\ns_lshl_b32 s30, s30, 10\ns_and_b32 s31, s24, 1\ns_lshl_b32 s31, s31, 3\ns_add_u32 s30, s30, s31\ns_add_u32 s30, s30, 0x21000")
        A("v_add_u32 v26, s30, v2")
        A("ds_write_b64 v26, v[24:25]")
        A("v_add_u32 v26, 0x20000, v2")
        A("s_waitcnt lgkmcnt(0)")
    def opath2(self):
        A = self.A
        for i in range(6):
            A(f"ds_read_b128 v[{32+i*4}:{35+i*4}], v26 offset:{i*1024}")
        A("s_waitcnt lgkmcnt(0)")
        den = lambda t: self.q(8 + 2 * (t // 4) + 1, t % 4)
        for t in range(8):
            pq = self.q(8 + 2 * (t // 4), t % 4); zf = 48 + (t // 4) * 4
            A(f"v_mfma_f32_16x16x32_bf16 v[{den(t)}:{den(t)+3}], v[{zf}:{zf+3}], v[{pq}:{pq+3}], 0")
        side = [f"v_add_f32 v{den(t)}, s88, v{den(t)}" for t in range(8)] + [f"v_rcp_f32 v{den(t)}, v{den(t)}" for t in range(8)]
        side += [f"v_mov_b32 v{den(t)+1}, v{den(t)}" for t in range(8)]
        for t in range(8):
            pq = self.q(8 + 2 * (t // 4), t % 4); d = 64 + t * 8
            for eb in range(2):
                kf = 32 + ((t // 4) * 2 + eb) * 4
                A(f"v_mfma_f32_16x16x32_bf16 v[{d+eb*4}:{d+eb*4+3}], v[{kf}:{kf+3}], v[{pq}:{pq+3}], 0")
                if t > 0:
                    for _ in range(2):
                        if side: A(side.pop(0))
        for x in side: A(x)
        for t in range(8):
            d = 64 + t * 8
            for i in range(0, 8, 2):
                A(f"v_pk_mul_f32 v[{d+i}:{d+i+1}], v[{d+i}:{d+i+1}], v[{den(t)}:{den(t)+1}]")
            for i in range(4):
                A(f"v_cvt_pk_bf16_f32 v{d+i}, v{d+2*i}, v{d+2*i+1}")
            A(self.store_act(d, t % 4, 85, t // 4, F_HST))
    def body(self, k2):
        A = self.A; t = self.typ; self.k2 = k2
        def issue(L):
            for pre, ins in L:
                if pre: A(pre)
                A(ins)
        issue(self.wloads(0, F_W1P))
        for a in self.adv()[:4]: A(a)
        if W1E:
            issue(self.wloads(1, F_W1P))
            for a in self.adv()[:4]: A(a)
        l = newlab("z")
        A(f"s_cmp_lg_u32 s24, 0\ns_cbranch_scc1 {l}")
        A("v_mov_b32 v24, 0\nv_lshl_add_u32 v25, v1, 8, s92\nv_subrev_u32 v25, 256, v25\nv_mov_b32 v26, s93")
        A("v_cmp_eq_u32 vcc, 0, v1\nv_cndmask_b32 v25, v25, v26, vcc")
        A("s_or_b32 s30, s25, s27\ns_cmp_eq_u32 s30, 0\ns_cselect_b32 s30, 63, 1\ns_mov_b32 s31, 0\ns_mov_b64 exec, s[30:31]")
        A(f"global_store_dword v25, v24, s[22:23] {SC}")
        A("s_mov_b64 exec, -1")
        A(f"{l}:")
        A("s_waitcnt vmcnt(%d)" % (20 if W1E else 10))
        stamp(A, 1)
        inj = Inject(A, self.wloads(1, F_W1P)[:W1J], 10, skip=int(opt("w1s", "110")))
        ln_part(inj)
        assert not inj.L
        for j in range(4):
            A(f"ds_write_b128 v22, v[{64+4*j}:{67+4*j}] offset:{24576 + (j%2)*4096 + (j//2)*32768}")
        A("s_waitcnt lgkmcnt(0)\ns_barrier")
        for j in range(4):
            A(f"ds_read_b128 v[{64+4*j}:{67+4*j}], v21 offset:{24576 + j*1024}")
        for j in range(4):
            A(f"s_waitcnt lgkmcnt({3-j})")
            A(f"global_store_dwordx4 v23, v[{64+4*j}:{67+4*j}], s[22:23] {SC}")
            if j < 3: A("v_add_u32 v23, 0x2000, v23")
        stamp(A, 2)
        zero = []
        for (nb, mb), (f, r) in self.acc.items():
            for i in range(4):
                zero.append(f"v_accvgpr_write_b32 a{r+i}, 0" if f == "a" else f"v_mov_b32 v{r+i}, 0")
        zero.reverse()
        for z in zero[:64]: A(z)
        A("s_lshl_b32 s30, s26, 5\nv_mov_b32 v24, s30")
        A("s_waitcnt vmcnt(0)\ns_barrier")
        emit_sync(A, signal(24, 20, 25))
        stamp(A, 3)
        if not W1E:
            inj = Inject(A, self.wloads(1, F_W1P)[W1J:], 8)
            for z in zero[64:64+8*(11-W1J)]: inj(z)
            assert not inj.L
            for a in self.adv()[:4]: A(a)
        inj = Inject(A, self.wloads(2, F_W1P), 8 if not W1E else 6)
        for z in zero[64+8*(11-W1J) if not W1E else 64:]: inj(z)
        assert not inj.L
        for a in self.adv()[:4]: A(a)
        l = newlab("w")
        A(f"s_cmp_lg_u32 s24, 0\ns_cbranch_scc1 {l}")
        A("s_waitcnt vmcnt(0)")
        emit_sync(A, spin(24, 20, 32, 25, sleep=4))
        A(f"{l}:")
        A("s_barrier")
        stamp(A, 4)
        issue(self.xloads(0))
        A("s_add_u32 s76, s76, 8192")
        issue(self.xloads(1))
        A("s_add_u32 s76, s76, 8192")
        A("s_waitcnt vmcnt(8)")
        stamp(A, 5)
        for u in range(2):
            for r in self.reads(u, u, 0): A(r)
        A("s_mov_b32 s80, 3")
        if CPF:
            l = newlab("c")
            A(f"s_getpc_b64 s[10:11]\n{l}:\ns_sub_u32 s10, s10, {l}-{NAME}_kernel\ns_subb_u32 s11, s11, 0")
            A("s_lshr_b32 s30, s2, 3\ns_lshl_b32 s30, s30, 2\ns_add_u32 s30, s30, s24\ns_lshl_b32 s30, s30, 10")
            A(f"s_min_u32 s30, s30, L_end-{NAME}_kernel-1024\nv_add_u32 v28, s30, v2")
        A("s_waitcnt lgkmcnt(4)")
        A.raw(".p2align 6")
        A(f"L1{t}_loop:")
        pw2 = ["buffer_load_dwordx4 v[20:23], v2, s[64:67], s81 offen", "s_add_u32 s81, s81, 0x100000"]
        pwo = ["buffer_load_dwordx4 v[20:23], v2, s[68:71], s82 offen", "s_add_u32 s82, s82, 0x100000"]
        px = ["buffer_load_dwordx4 v[24:27], v2, s[96:99], s94 offen", "s_add_u32 s94, s94, 0x100000"]
        pfs = [[pw2], [pw2], [pw2], [pwo]]
        if opt("nopf"): pfs = [[], [], [], []]
        if CPF: pfs[1].append(["global_load_dwordx4 v[28:31], v31, s[100:101]" if False else "global_load_dwordx4 v[24:27], v28, s[10:11]"])
        for s in range(4):
            n = (s + 1) % 4
            self.stage(s, [(0, n), (1, n)], 18 + len(pfs[s]), pf=pfs[s])
        A(f"s_sub_u32 s80, s80, 1\ns_cmp_lg_u32 s80, 0\ns_cbranch_scc1 L1{t}_loop")
        stamp(A, 6)
        self.stage(0, self.tail_units()[:2], 18, lastld=True)
        stamp(A, 7)
        self.tail(self.batches_kv() if t == "KV" else self.batches_q())
        stamp(A, 8)
        for x in merge(self.last, [["global_load_dword v29, v30, s[22:23] offset:1024 sc1", "@tag h2s"]] + self.lastld, 0, 0.5): emit_group(A, x)
        stamp(A, 9)
        k2.setup()
        for z in k2.zero(): A(z)
        if t == "Q":
            self.opath1()
            A("s_barrier")
        stamp(A, 10)
        if t == "Q": self.opath2()
        stamp(A, 11)
        k2.pre()
        A("s_branch L2_start")

class K2:
    def __init__(self, A): self.A = A
    def issue(self, L):
        for pre, ins in L:
            if pre: self.A(pre)
            self.A(ins)
    def xfrag(self, slot, k, mb): return slot * 32 + (k * 2 + mb) * 4
    def reads(self, ring, nb, slot, kp):
        out = []
        for k2 in range(2):
            for h in range(2):
                r = 32 + ring * 8 + k2 * 4 + 2 * h
                imm = (slot & 1) * 32768 + (nb >> 2) * 16384 + (kp * 2 + k2) * 4096 + h * 2048
                out.append(f"ds_read_b64_tr_b16 v[{r}:{r+1}], v{4 + (slot >> 1) * 4 + (nb & 3)} offset:{imm}")
        return out
    def mfmas(self, ring, nb, slot, kp, accb):
        out = []
        for mb in range(2):
            for k2 in range(2):
                w = 32 + ring * 8 + k2 * 4; x = self.xfrag(slot, kp * 2 + k2, mb); a = accb + (nb * 2 + mb) * 4
                out.append(f"v_mfma_f32_16x16x32_bf16 v[{a}:{a+3}], v[{w}:{w+3}], a[{x}:{x+3}], v[{a}:{a+3}]")
        return out
    def wloads(self, slot, so=72, ngrp=2):
        L = []
        for j in range(4):
            for grp in range(ngrp):
                d = (32, 44)[grp]
                L.append((f"s_add_u32 m0, s78, {slot*32768 + grp*16384 + j*1024}",
                          f"buffer_load_dwordx4 v28, s[{d}:{d+3}], s{(72, 96, 97, 98)[j]} offen lds"))
        return L
    def xloads(self, slot, va=None):
        L = []
        for k in range(4):
            for mb in range(2):
                r = self.xfrag(slot, k, mb)
                L.append((None, f"buffer_load_dwordx4 a[{r}:{r+3}], v2, s[36:39], s{73 if k < 2 else 76} offen offset:{((k&1)*2+mb)*1024} {F_H}"))
        return L
    def loads(self, slot, ngrp):
        d, x = self.wloads(slot, ngrp=ngrp), self.xloads(slot)
        if ngrp == 2: return [y for p in zip(d, x) for y in p]
        return [y for i in range(4) for y in (d[i], x[2*i], x[2*i+1])]
    ORDER = [0, 4, 1, 5, 8, 12, 2, 6, 3, 7, 9, 13, 10, 11]
    def advx(self): return ["s_add_u32 s73, s73, 8192", "s_add_u32 s76, s76, 8192"]
    def woff(self): return [f"s_add_u32 s{95+j}, s72, {j*16384}" for j in (1, 2, 3)]
    def advw(self, perm=True):
        if perm: return ["s_lshr_b64 s[48:49], s[48:49], 4", "s_and_b32 s72, s48, 15", "s_lshl_b32 s72, s72, 16", "s_add_u32 s72, s72, s75"] + self.woff()
        return [f"s_add_u32 s72, s72, {128*2048}"] + self.woff()
    def adv(self, perm=True): return self.advx() + self.advw(perm)
    def setup_early(self):
        class Rec(list):
            def __call__(self, t): self.extend(t.split("\n"))
        it = ["v_lshrrev_b32 v29, 4, v1", "v_bfe_u32 v28, v1, 1, 2", "v_xor_b32 v28, v28, v29", "v_lshlrev_b32 v28, 5, v28",
              "v_and_b32 v29, 1, v1", "v_lshl_add_u32 v28, v29, 4, v28", "v_lshrrev_b32 v29, 3, v1", "v_lshl_add_u32 v28, v29, 11, v28"]
        def grp(f):
            r = Rec(); f(r); it.append(list(r))
        grp(lambda A: A("s_lshl_b32 s78, s24, 12\ns_and_b32 s79, s94, 0x7ff"))
        grp(lambda A: (A(f"s_sub_u32 s31, {3584*2048}, s79"), srd(A, 32, 16, "s79", "s31")))
        grp(lambda A: (A(f"s_xor_b32 s30, s79, 128\ns_sub_u32 s31, {3584*2048}, s30"), srd(A, 44, 16, "s30", "s31")))
        grp(lambda A: (A("s_lshr_b32 s30, s95, 3\ns_lshl_b32 s30, s30, 2\ns_add_u32 s30, s30, s24"),
                       A(f"s_mul_i32 s30, s30, {144*2048}\ns_add_u32 s30, s30, {ACT_OFF}"), srd(A, 36, 22, "s30", 144 * 2048)))
        grp(lambda A: (A(f"s_lshl_b32 s30, s95, 16\ns_lshl_b32 s31, s24, 14\ns_add_u32 s30, s30, s31\ns_add_u32 s30, s30, {P_OFF}"),
                       srd(A, 40, 22, "s30", 16384)))
        grp(lambda A: A("s_lshl_b32 s74, s91, 13\ns_xor_b32 s77, s74, 8192"))
        tab = sum(c << (4 * i) for i, c in enumerate(self.ORDER))
        grp(lambda A: A(f"s_mov_b32 s48, {tab & 0xffffffff:#x}\ns_mov_b32 s49, {tab >> 32:#x}"))
        grp(lambda A: A(f"s_lshl_b32 s75, s91, 2\ns_add_u32 s75, s75, s24\ns_mul_i32 s75, s75, {14*32*2048}\ns_mov_b32 s72, s75"))
        grp(lambda A: A(f"s_mul_i32 s73, s91, {14*8192}\ns_add_u32 s76, s73, 4096\ns_mov_b32 s80, 3\ns_mov_b32 s50, 32"))
        it.append(self.woff())
        it.append("v_mov_b32 v30, s92")
        return it
    def wfirst(self):
        g = lambda LL: [[pre, "s_nop 0", ins] for pre, ins in LL]
        return g(self.wloads(0)) + [self.advw()] + g(self.wloads(1)) + [self.advw()]
    def xfirst(self):
        return [i for _, i in self.xloads(0)] + ["@tag k20", self.advx()] + [i for _, i in self.xloads(1)] + [self.advx()]
    def setup(self):
        A = self.A
        A("v_lshrrev_b32 v12, 2, v1\nv_bfe_u32 v13, v1, 3, 2\nv_and_b32 v14, 3, v1")
        for nb in range(4):
            A(f"v_xor_b32 v15, {nb}, v13\nv_lshlrev_b32 v15, 5, v15\nv_lshl_add_u32 v15, v12, 7, v15")
            A(f"v_lshl_add_u32 v{4+nb}, v14, 3, v15\nv_add_u32 v{8+nb}, 0x10000, v{4+nb}")
    @staticmethod
    def xaddr(a, b):
        return [f"v_and_b32 v{a}, 15, v1", f"v_lshlrev_b32 v{a}, 11, v{a}", f"v_bfe_u32 v{b}, v1, 4, 1", f"v_lshl_add_u32 v{a}, v{b}, 5, v{a}",
                f"v_lshrrev_b32 v{b}, 5, v1", f"v_lshl_add_u32 v{a}, v{b}, 4, v{a}", f"v_add_u32 v{a}, s94, v{a}", f"v_add_u32 v{b}, {16*2048}, v{a}"]
    @staticmethod
    def xres(a, b):
        it = []
        for mb in range(2):
            for p in range(2):
                r = 128 + (p * 2 + mb) * 4
                it.append(f"global_load_dwordx4 a[{r}:{r+3}], v{(a, b)[mb]}, s[4:5] offset:{p*64} {F_X0}")
        return it
    def zero(self):
        return [f"v_mov_b64 v[{i}:{i+1}], 0" for i in range(192, 256, 2)]
    def run(self, units, nxt, accb, ld, bar, batches=()):
        n = len(units); al = list(units) + list(nxt)
        mf, fill = [], [[] for _ in range(4 * n)]
        for u in range(n):
            if u in bar:
                fill[4 * u - 1] += [bar[u], "s_barrier"]
            if u + 3 < len(al):
                rd = self.reads((u + 3) % 4, *al[u + 3])
                for i in range(4): fill[4 * u + i].append(rd[i])
            rem = min(len(al), u + 4) - (u + 2)
            if u + 1 < len(al): fill[4 * u + 3].append(f"s_waitcnt lgkmcnt({4 * max(rem, 0)})")
            mf += self.mfmas(u % 4, *units[u], accb)
        for slot, ngrp, post, *pos in ([ld] if isinstance(ld, tuple) else (ld or [])):
            L = self.loads(slot, ngrp)
            p0, span = pos if pos else (0, 4 * n - 4 if n == 8 else 48)
            for i, (pre, ins) in enumerate(L):
                p = p0 + i * span // len(L)
                if pre: fill[p].append(pre)
                fill[p + 1].append(ins)
            fill[p + 1].append(f"@tag ld{slot}")
            a = self.adv(ngrp == 2)
            for i in range(0, len(a), 2): fill[min(p + 2 + i // 2, 4 * n - 1)] += a[i:i+2]
            assert not post
        emit_stream(self.A, mf, fill, list(batches))
    def pre(self):
        A = self.A
        A("v_add_u32 v3, 4096, v2\nv_mov_b32 v24, s92\nv_add_u32 v26, 256, v24\nv_add_u32 v27, 512, v24")
        A("@wv h2s")
        emit_sync(A, spin(30, 22, 16, 29, True, sleep=4, off=1024))
        A("s_barrier")
    def sunits(self, slot, order=range(8)): return [(nb, slot, kp) for nb in order for kp in range(2)]
    def body(self):
        A = self.A
        A("L2_start:")
        stamp(A, 12)
        for u in range(3):
            for r in self.reads(u, *self.sunits(0)[u]): A(r)
        A("s_waitcnt lgkmcnt(8)")
        A.raw(".p2align 6")
        A("L2_loop:")
        for s in range(4):
            bt = [(56, 57, ["global_load_dword v25, v26, s[22:23] sc1"])] if s == 2 else []
            if s == 0:
                l = newlab("g")
                bt = [(52, 53, [Unc(["s_lshl_b32 s30, s24, 2", "s_add_u32 s30, s30, s80", "s_cmp_lg_u32 s30, 3", f"s_cbranch_scc1 {l}",
                                     "v_mov_b32 v25, 1", "s_mov_b64 exec, 1", "global_atomic_add v26, v25, s[22:23] sc1",
                                     "s_cmp_lt_u32 s25, 4", f"s_cbranch_scc1 {l}x",
                                     "global_atomic_add v27, v25, s[22:23] sc1", f"{l}x:", "s_mov_b64 exec, -1", f"{l}:"])]),
                      (56, 57, ["global_load_dword v29, v30, s[22:23] offset:768 sc1"])]
            if s == 1: bt = [(62, 63, [Unc(spin(30, 22, 16, 29, True, sleep=2, off=768))])]
            self.run(self.sunits(s), self.sunits((s + 1) % 4)[:3], 192, ((s + 2) % 4, 2, []), {13: "s_waitcnt vmcnt(16)"}, bt)
        if STAMPS: A("s_memrealtime s[100:101]\ns_waitcnt lgkmcnt(0)\ns_sub_u32 m0, 29, s80\ns_nop 1\nv_writelane_b32 v0, s100, m0")
        emit_sync(A, spin(26, 22, "s50", 25, True))
        if STAMPS: A("s_memrealtime s[100:101]\ns_waitcnt lgkmcnt(0)\ns_sub_u32 m0, 32, s80\ns_nop 1\nv_writelane_b32 v0, s100, m0")
        A("v_mov_b32 v26, v27\ns_mov_b32 s50, 16")
        A("s_sub_u32 s80, s80, 1\ns_cmp_lg_u32 s80, 0\ns_cbranch_scc1 L2_loop")
        stamp(A, 13)
        A("@tag k2l")
        A(f"s_add_u32 s32, s8, s79\ns_addc_u32 s33, s9, 0\ns_sub_u32 s34, {1024*2048}, s79\ns_lshl_b32 s72, s24, 16")
        def gpart(q):
            o, p = 192 + q * 4, 128 + q * 4
            if P16:
                it = [f"@wv P{q//2}"] if q % 2 == 0 else []
                pp = 128 + q * 2
                it += [f"v_lshlrev_b32 v20, 16, v{pp}", f"v_and_b32 v21, s3, v{pp}", f"v_lshlrev_b32 v22, 16, v{pp+1}", f"v_and_b32 v23, s3, v{pp+1}"]
                it += [f"v_add_f32 v{o+i}, v{o+i}, v{20+i}" for i in range(4)]
            else:
                it = [f"@wv P{q}"]
                it += [f"v_add_f32 v{o+i}, v{o+i}, v{p+i}" for i in range(4)]
            it += [f"v_mul_f32 v{20+i}, s87, v{o+i}" for i in range(4)]
            it += [f"v_exp_f32 v{20+i}, v{20+i}" for i in range(4)]
            it += [f"v_add_f32 v{20+i}, 1.0, v{20+i}" for i in range(4)]
            it += [f"v_rcp_f32 v{20+i}, v{20+i}" for i in range(4)]
            it += [f"v_mul_f32 v{o+i}, v{o+i}, v{20+i}" for i in range(4)]
            return it
        def xpart(p, mb):
            r = 128 + (p * 2 + mb) * 4
            q0, q1 = 96 + ((2 * p) * 2 + mb) * 4, 96 + ((2 * p + 1) * 2 + mb) * 4
            it = [f"v_accvgpr_read_b32 v{12+i}, a{r+i}" for i in range(4)]
            it += ["v_permlane16_swap_b32 v12, v14", "v_permlane16_swap_b32 v13, v15"]
            for q, s in ((q0, 12), (q1, 14)):
                it += [f"v_lshlrev_b32 v{q}, 16, v{s}", f"v_and_b32 v{q+1}, s3, v{s}", f"v_lshlrev_b32 v{q+2}, 16, v{s+1}", f"v_and_b32 v{q+3}, s3, v{s+1}"]
            return it
        def fin(p, mb):
            it = []
            qs = [(2 * p) * 2 + mb, (2 * p + 1) * 2 + mb]
            for q in qs:
                it += [f"v_fmac_f32 v{96+q*4+i}, v{64+q*4+i}, v{192+q*4+i}" for i in range(4)]
            d = 192 + qs[0] * 4
            for j, q in enumerate(qs):
                it += [f"v_cvt_pk_bf16_f32 v{d+2*j}, v{96+q*4}, v{97+q*4}", f"v_cvt_pk_bf16_f32 v{d+2*j+1}, v{98+q*4}, v{99+q*4}"]
            it += [f"v_permlane16_swap_b32 v{d}, v{d+2}", f"v_permlane16_swap_b32 v{d+1}, v{d+3}",
                   f"global_store_dwordx4 v{16+mb}, v[{d}:{d+3}], s[18:19] offset:{p*64} {opt('out')}"]
            return it
        l = newlab("f")
        flag = Unc(["s_cmp_lg_u32 s24, 0", f"s_cbranch_scc1 {l}", "v_mov_b32 v25, 1", "s_mov_b64 exec, 1",
                    f"global_store_dword v27, v25, s[22:23] {SC}", "s_mov_b64 exec, -1", f"{l}:"])
        un = self.sunits(0, [0, 1, 4, 5, 6, 7]) + self.sunits(1, [4, 5, 6, 7]) + self.sunits(0, [2, 3]) + self.sunits(1, [0, 1, 2, 3])
        WL = [65536, 81920, 98304, 114688, 131072, 147456, 0, 16384]
        XR = [64, 96, 144, 176, 208, 0, 32, 64]
        def sreads(ring, t, nb, kp):
            out = []
            base = WL[t]; v = (4, 8, 160)[base >> 16] + nb
            for k2 in range(2):
                for h in range(2):
                    r = 32 + ring * 8 + k2 * 4 + 2 * h
                    out.append(f"ds_read_b64_tr_b16 v[{r}:{r+1}], v{v} offset:{(base & 0xffff) + (kp * 2 + k2) * 4096 + h * 2048}")
            return out
        def smf(ring, t, nb, kp):
            out = []
            for mb in range(2):
                for k2 in range(2):
                    w = 32 + ring * 8 + k2 * 4; x = XR[t] + ((kp * 2 + k2) * 2 + mb) * 4; a = 64 + (nb * 2 + mb) * 4
                    out.append(f"v_mfma_f32_16x16x32_bf16 v[{a}:{a+3}], v[{w}:{w+3}], a[{x}:{x+3}], v[{a}:{a+3}]")
            return out
        sun = [(t, nb, kp) for t in range(8) for nb in range(4) for kp in range(2)]
        N = 96
        rdu = lambda u: self.reads(u % 4, *un[u]) if u < 32 else sreads(u % 4, *sun[u - 32])
        mfu = lambda u: self.mfmas(u % 4, *un[u], 192) if u < 32 else smf(u % 4, *sun[u - 32])
        mf, fill = [], [[] for _ in range(4 * N)]
        bars = {9: "@wv k2l", 29: "@wv W1", 45: "@wv W3", 61: "@wv W5", 77: "@wv W7", int(opt("fb", "37")): "@wv ps"}
        for u in range(N):
            if u in bars: fill[4 * u - 1] += [bars[u], "s_barrier"] + ([flag] if bars[u] == "@wv ps" else [])
            if u >= 32 and u % 8 == 0: fill[4 * u - 1].append(f"@wv X{(u - 32) // 8}")
            if u + 3 < N:
                for i, r in enumerate(rdu(u + 3)): fill[4 * u + i].append(r)
            if u + 1 < N: fill[4 * u + 3].append(f"s_waitcnt lgkmcnt({4 * max(min(N, u + 4) - (u + 2), 0)})")
            mf += mfu(u)
        def pairbase(t): return [f"s_add_u32 s98, s75, {t//2}", "s_and_b32 s98, s98, 3", "s_lshl_b32 s97, s98, 19", "s_add_u32 s97, s97, s72",
                                 "s_lshl_b32 s98, s98, 14"]
        def wl(t): return [((pairbase(t) if (j == 0 and t % 2 == 0) else []) +
                            [f"s_add_u32 m0, s78, {WL[t] + j*1024}", f"s_add_u32 s96, s97, {(t%2)*128*2048 + j*16384}"],
                            ["buffer_load_dwordx4 v28, s[32:35], s96 offen lds"] + ([f"@tag W{t}"] if j == 3 else [])) for j in range(4)]
        def xl(t): return [([f"s_add_u32 s73, s98, {112*2048 + (t%2)*8192 + (i//4)*4096}"] if i % 4 == 0 else [],
                            [f"buffer_load_dwordx4 a[{XR[t]+i*4}:{XR[t]+i*4+3}], v2, s[36:39], s73 offen offset:{(i%4)*1024} {F_H}"] +
                            ([f"@tag X{t}"] if i == 7 else [])) for i in range(8)]
        A("s_add_u32 s75, s26, s27" if int(opt("srot", "0")) else "s_mov_b32 s75, 0")
        L = []
        for t in range(0, 8, 2): L += wl(t) + wl(t + 1) + xl(t) + xl(t + 1)
        r1, r2 = float(opt("r1", "3.6")), float(opt("r2", "3.0"))
        p = 1.0; pos = []
        for pre, ins in L:
            q = int(p); pos.append(q)
            fill[q - 1] += pre; fill[q] += ins
            p += r1 if p < 128 else r2
        assert pos[24] > 36 and pos[72] > 116 and pos[64] > 96 and pos[80] > 128 and pos[88] > 160
        for t in range(8):
            assert pos[(t // 2) * 24 + 8 + (t % 2) * 8 + 7] < 128 + 32 * t - 1
        for i, b in enumerate((29, 45, 61, 77)): assert pos[i * 24 + 7] < 4 * b - 1
        misc = (["v_mov_b32 v27, s93", "v_xor_b32 v26, 128, v27", "s_mov_b32 s3, 0xffff0000"] + self.xaddr(16, 17) +
                [f"v_add_u32 v{160+i}, 0x20000, v{4+i}" for i in range(4)] + [f"v_mov_b32 v{i}, 0" for i in range(64, 96)])
        bt = [(0, 60, misc)]
        for j in range(4):
            a = 224 + j * 8
            it = [f"v_cvt_pk_bf16_f32 v{a+i}, v{a+2*i}, v{a+2*i+1}" for i in range(4)]
            it.append([f"buffer_store_dwordx4 v[{a}:{a+3}], v2, s[40:43], s74 offen offset:{j*1024} {SC}"] + (["@tag ps"] if j == 3 else []))
            bt.append((62 + 8 * j, 62 + 8 * j + 6, it))
        pc = int(opt("pc", "224"))
        bt.append((132, pc - 34, xpart(0, 0) + xpart(0, 1) + xpart(1, 0) + xpart(1, 1)))
        bt.append((pc - 32, pc - 31, [["global_load_dword v25, v26, s[22:23] sc1", "@tag pp"]]))
        it = ["@wv pp", Unc(spin(26, 22, 1, 25, True))]
        for q in range(4):
            it.append([f"buffer_load_dwordx4 v[{128+q*4}:{131+q*4}], v2, s[40:43], s77 offen offset:{q*1024} sc1", f"@tag P{q}"])
        bt.append((pc, pc + 8, it))
        bt.append((pc + 36, 372, sum([gpart(q) for q in range(8)], [])))
        bt.append((374, 384, fin(0, 0) + fin(0, 1)))
        bt.append((390, 391, fin(1, 0) + fin(1, 1)))
        if STAMPS and not opt("tailst"):
            for t in range(9):
                fill[127 + 32 * t] += ["s_memtime s[100:101]" if opt("cyc") else "s_memrealtime s[100:101]", "s_waitcnt lgkmcnt(0)", f"v_writelane_b32 v0, s100, {17 + t}"]
        emit_stream(A, mf, fill, bt)
        if opt("padfrom"):
            A(f"s_waitcnt vmcnt(0)\nv_readlane_b32 s30, v0, {opt('padfrom')}\ns_add_u32 s30, s30, 10000")
            A("Lpad:\ns_memrealtime s[100:101]\ns_waitcnt lgkmcnt(0)\ns_sub_u32 s31, s100, s30\ns_cmp_lt_i32 s31, 0\ns_cbranch_scc1 Lpad")
        stamp_out(A, 15, "a")
        A("s_endpgm")

def kernel(A):
    name = NAME + "_kernel"
    A.raw(f".globl {name}\n.p2align 8\n.type {name},@function")
    A(f"{name}:")
    A("s_cmp_ge_u32 s2, 256\ns_cbranch_scc1 L_end")
    if STAMPS: A("s_memtime s[98:99]" if opt("cyc") else "s_memrealtime s[98:99]")
    A("s_load_dwordx4 s[4:7], s[0:1], 0\ns_load_dwordx2 s[8:9], s[0:1], 16")
    A("s_load_dwordx4 s[12:15], s[0:1], 32\ns_load_dwordx4 s[16:19], s[0:1], 48\ns_load_dwordx4 s[20:23], s[0:1], 64")
    if ECPF:
        l = newlab("c")
        A(f"s_getpc_b64 s[10:11]\n{l}:\ns_sub_u32 s10, s10, {l}-{name}\ns_subb_u32 s11, s11, 0")
        A("s_lshr_b32 s30, s2, 3\ns_lshl_b32 s30, s30, 12\nv_lshl_add_u32 v28, v0, 4, s30")
        A(f"v_min_u32 v28, L_end-{name}-16, v28")
        A("global_load_dwordx4 v[120:123], v28, s[10:11]")
    A("v_and_b32 v1, 63, v0\nv_lshrrev_b32 v2, 6, v0\nv_readfirstlane_b32 s24, v2")
    A("s_and_b32 s25, s2, 7\ns_bfe_u32 s26, s2, 0x30003\ns_lshr_b32 s27, s2, 6\ns_and_b32 s29, s27, 1")
    A("s_and_b32 s28, s25, 3\ns_lshl_b32 s28, s28, 2\ns_add_u32 s28, s28, s27")
    A("s_lshl_b32 s30, s27, 3\ns_add_u32 s30, s30, s25\ns_lshl_b32 s30, s30, 3\ns_lshl_b32 s31, s26, 8\ns_add_u32 s30, s30, s31")
    A("v_lshrrev_b32 v21, 5, v0\nv_add_u32 v21, s30, v21\nv_and_b32 v22, 31, v0")
    A("v_lshlrev_b32 v20, 11, v21\nv_lshl_add_u32 v20, v22, 4, v20")
    A("s_waitcnt lgkmcnt(0)")
    for j in range(4):
        A(f"global_load_dwordx4 v[{64+4*j}:{67+4*j}], v20, s[4:5] offset:{512*j} {F_X0}")
    if opt("tlb"):
        A("v_lshlrev_b32 v29, 20, v1")
        A("global_load_dword v124, v29, s[22:23]")
        A("v_and_b32 v30, 3, v1\nv_lshlrev_b32 v30, 20, v30")
        A("global_load_dword v125, v30, s[18:19]")
        A("v_min_u32 v30, 6, v1\nv_lshlrev_b32 v30, 20, v30")
        A("global_load_dword v126, v30, s[16:17]\nglobal_load_dword v126, v30, s[12:13]\nglobal_load_dword v126, v30, s[14:15]")
        A("v_min_u32 v30, 5, v1\nv_lshlrev_b32 v30, 20, v30\nglobal_load_dword v126, v30, s[6:7]")
        A("v_min_u32 v30, 1, v1\nv_lshlrev_b32 v30, 20, v30\nglobal_load_dword v126, v30, s[8:9]")
    if STAMPS: A("v_writelane_b32 v0, s98, 0")
    A("v_lshlrev_b32 v2, 4, v1")
    A("v_lshrrev_b32 v24, 3, v1\ns_lshl_b32 s30, s24, 3\nv_add_u32 v24, s30, v24")
    A("v_bfe_u32 v25, v1, 4, 1\ns_and_b32 s30, s24, 1\ns_lshl_b32 s30, s30, 1\nv_or_b32 v25, s30, v25")
    A("v_bfe_u32 v26, v1, 1, 2\nv_xor_b32 v26, v26, v25\nv_lshlrev_b32 v26, 5, v26")
    A("v_and_b32 v27, 1, v1\nv_lshl_add_u32 v26, v27, 4, v26")
    A(f"v_mul_u32_u24 v{K1.VO6}, 6144, v24\nv_add_u32 v{K1.VO6}, v{K1.VO6}, v26")
    A(f"v_mul_u32_u24 v{K1.VO7}, 7168, v24\nv_add_u32 v{K1.VO7}, v{K1.VO7}, v26")
    A("v_lshrrev_b32 v24, 2, v1\ns_and_b32 s30, s24, 1\ns_lshl_b32 s30, s30, 4\nv_add_u32 v24, s30, v24")
    A("v_bfe_u32 v25, v1, 1, 1\nv_lshrrev_b32 v26, 5, v1\nv_xor_b32 v25, v25, v26\nv_lshlrev_b32 v25, 5, v25")
    A("v_lshl_add_u32 v25, v27, 4, v25")
    A(f"v_mul_u32_u24 v{K1.VOH}, 7168, v24\nv_add_u32 v{K1.VOH}, v{K1.VOH}, v25")
    A(f"v_add_u32 v{K1.VX1}, 4096, v2\nv_add_u32 v3, {144*2048}, v2")
    A(f"s_mov_b32 s72, 0\ns_mov_b32 s74, 0\ns_mov_b32 s73, {32*6144}\ns_mov_b32 s75, {32*7168}\ns_mov_b32 s76, 0")
    A("s_lshl_b32 s78, s24, 10")
    A("s_lshl_b32 s90, s26, 6\ns_add_u32 s90, s90, 256")
    A("s_lshr_b32 s79, s24, 1\ns_lshl_b32 s79, s79, 12\ns_and_b32 s30, s24, 1\ns_lshl_b32 s30, s30, 10\ns_add_u32 s79, s79, s30")
    A("s_lshl_b32 s10, s26, 2\ns_add_u32 s10, s10, s24\ns_lshl_b32 s30, s10, 17")
    srd(A, 52, 22, "s30", 131072)
    A(f"s_mul_i32 s30, s10, {2*144*2048}\ns_add_u32 s30, s30, {ACT_OFF}")
    srd(A, 56, 22, "s30", 2 * 144 * 2048)
    A(f"s_mul_i32 s30, s28, {8*KVP_STRIDE}\ns_add_u32 s30, s30, {KVP_OFF}")
    srd(A, 60, 22, "s30", 8 * KVP_STRIDE)
    srd(A, 64, 16, 0, 3584 * 2048); srd(A, 68, 8, 0, 1024 * 2048)
    A("s_lshl_b32 s81, s2, 2\ns_add_u32 s81, s81, s24\ns_lshl_b32 s81, s81, 10\ns_mov_b32 s82, s81")
    A(f"s_mov_b32 s86, {LOG2E:#x}\ns_mov_b32 s87, {NLOG2E:#x}\ns_mov_b32 s88, {EPS6:#x}")
    A("s_lshl_b32 s89, s28, 4\ns_add_u32 s89, s89, 8")
    ob = [b for b in range(3) if b != RB]
    A(f"s_lshl_b32 s95, s26, 1\ns_bfe_u32 s30, s25, {0x10000 + ob[0]:#x}\ns_add_u32 s95, s95, s30\ns_lshl_b32 s95, s95, 3")
    A(f"s_bfe_u32 s30, s25, {0x10000 + ob[1]:#x}\ns_lshl_b32 s30, s30, 2\ns_add_u32 s95, s95, s30\ns_add_u32 s95, s95, s27")
    A(f"s_bfe_u32 s91, s25, {0x10000 + RB:#x}")
    if RINV: A("s_xor_b32 s91, s91, 1")
    A("s_lshr_b32 s94, s95, 3\ns_lshl_b32 s94, s94, 2\ns_add_u32 s94, s94, s24\ns_lshl_b32 s94, s94, 16")
    A("s_and_b32 s30, s95, 7\ns_lshl_b32 s30, s30, 8\ns_add_u32 s94, s94, s30\ns_lshl_b32 s31, s91, 7\ns_add_u32 s94, s94, s31")
    A(f"s_lshl_b32 s92, s26, 11\ns_add_u32 s92, s92, {FLAG_OFF}")
    A(f"s_lshl_b32 s93, s95, 8\ns_add_u32 s93, s93, {FLAG_OFF + 16384}\ns_add_u32 s93, s93, s31")
    A("v_xor_b32 v24, v21, v22\nv_and_b32 v24, 7, v24\nv_lshlrev_b32 v24, 4, v24\nv_lshl_add_u32 v22, v22, 7, v24")
    A("v_readfirstlane_b32 s30, v21")
    A("s_lshr_b32 s31, s30, 6\ns_lshl_b32 s31, s31, 17\ns_bfe_u32 s3, s30, 0x20004\ns_lshl_b32 s3, s3, 10\ns_add_u32 s31, s31, s3")
    A("s_and_b32 s30, s30, 8\ns_lshl_b32 s30, s30, 4\ns_add_u32 s31, s31, s30\ns_lshl_b32 s30, s24, 15\ns_add_u32 s31, s31, s30")
    A("v_lshrrev_b32 v23, 5, v1\nv_lshlrev_b32 v23, 12, v23\nv_bfe_u32 v24, v1, 3, 2\nv_lshl_add_u32 v23, v24, 8, v23")
    A("v_lshrrev_b32 v24, 3, v1\nv_xor_b32 v24, v24, v1\nv_and_b32 v24, 7, v24\nv_lshl_add_u32 v23, v24, 4, v23\nv_add_u32 v23, s31, v23")
    A("s_lshr_b32 s30, s24, 1\ns_lshl_b32 s30, s30, 15\ns_and_b32 s31, s24, 1\ns_lshl_b32 s31, s31, 12\ns_add_u32 s30, s30, s31\nv_add_u32 v21, s30, v2")
    A("v_lshrrev_b32 v24, 4, v1\nv_bfe_u32 v25, v1, 2, 2\nv_and_b32 v26, 3, v1")
    A("v_lshl_add_u32 v27, v24, 3, v25")
    A("v_lshrrev_b32 v28, 1, v25\nv_and_b32 v29, 1, v24\nv_lshl_or_b32 v28, v29, 1, v28")
    for nb in range(4):
        A(f"v_xor_b32 v30, {nb}, v28\nv_lshlrev_b32 v30, 5, v30\nv_lshl_add_u32 v30, v27, 7, v30")
        A(f"v_lshl_add_u32 v{4+nb}, v26, 3, v30\nv_add_u32 v{8+nb}, 0x10000, v{4+nb}\nv_add_u32 v{12+nb}, 0x20000, v{4+nb}")
    A("s_lshr_b32 s83, s28, 3\ns_mul_i32 s83, s83, 56\ns_bfe_u32 s30, s28, 0x20001\ns_add_u32 s83, s83, s30\ns_lshl_b32 s83, s83, 11")
    A("s_lshr_b32 s10, s28, 1\ns_mul_i32 s10, s10, 896\ns_lshl_b32 s11, s28, 7")
    NQ, NF = 1024 * 6144, 1024 * 7168
    def wsrd(d, lo, off, tot):
        A(f"s_sub_u32 s31, {tot}, {off}")
        srd(A, d, lo, off, "s31")
    k2 = K2(A)
    A("s_cmp_ge_u32 s25, 4\ns_cbranch_scc1 L1_typeQ")
    for nb in range(2):
        A(f"v_xor_b32 v30, {nb}, v29\nv_lshlrev_b32 v30, 5, v30\nv_lshl_add_u32 v30, v27, 6, v30")
        A(f"v_lshl_add_u32 v30, v26, 3, v30\nv_add_u32 v{12+nb}, 0x20000, v30")
    A("s_add_u32 s30, s11, 2048"); wsrd(32, 6, "s30", NQ)
    A("s_add_u32 s30, s11, 4096"); wsrd(36, 6, "s30", NQ)
    A("s_lshl_b32 s30, s29, 8\ns_add_u32 s30, s30, 512\ns_add_u32 s30, s30, s10")
    wsrd(40, 12, "s30", NF); wsrd(44, 14, "s30", NF)
    A("s_lshl_b32 s31, s29, 13\ns_add_u32 s83, s83, s31")
    A("s_lshl_b32 s30, s29, 6\ns_add_u32 s30, s30, 640\ns_add_u32 s30, s30, s10")
    A("s_cmp_ge_u32 s24, 2\ns_cselect_b32 s10, s14, s12\ns_cselect_b32 s11, s15, s13")
    wsrd(48, 10, "s30", NF)
    K1(A, "KV").body(k2)
    A("L1_typeQ:")
    wsrd(40, 6, "s11", NQ)
    A("s_lshl_b32 s30, s29, 8\ns_add_u32 s30, s30, s10")
    wsrd(32, 12, "s30", NF); wsrd(36, 14, "s30", NF)
    A("s_lshl_b32 s31, s29, 13\ns_add_u32 s83, s83, s31")
    A("s_add_u32 s30, s30, 128")
    wsrd(44, 12, "s30", NF); wsrd(48, 14, "s30", NF)
    A(f"s_lshl_b32 s85, s28, 12\ns_add_u32 s85, s85, {112*2048}")
    K1(A, "Q").body(k2)
    k2.body()
    A("L_end:")
    A("s_endpgm")
    A.raw('.section .rodata,"a"\n.p2align 6')
    A.raw(f".amdhsa_kernel {name}")
    for l in (".amdhsa_next_free_vgpr 512", ".amdhsa_next_free_sgpr 102", ".amdhsa_accum_offset 256", ".amdhsa_group_segment_fixed_size 0",
              ".amdhsa_kernarg_size 80", ".amdhsa_user_sgpr_count 2", ".amdhsa_user_sgpr_kernarg_segment_ptr 1",
              ".amdhsa_system_sgpr_workgroup_id_x 1", ".amdhsa_float_denorm_mode_32 3", ".end_amdhsa_kernel"):
        A.raw(l)

def main(out):
    A = Asm()
    for l in open("cdna_kernels/" + NAME + ".s.ref").read().split("\n"):
        if l.startswith("; @launch") or l.startswith("; Override") or l.startswith("; grid=ceil"): continue
        if not l.startswith(";"): break
        A.raw(l)
    if "--list" in sys.argv:
        A.raw(f"; @launch kernel={NAME}_kernel grid=(256,1,1) block=(256,1,1) lds=163840")
    else:
        A.raw("; @launch grid=(256,1,1) block=(256,1,1) lds=163840")
    A.raw('.amdgcn_target "amdgcn-amd-amdhsa--gfx950"')
    A.raw(MAC)
    A.raw(".text")
    kernel(A)
    open(out, "w").write(A.finalize())
main(sys.argv[1])
```

```python
import sys
from asmlib import Asm, MAC, cost

NAME = "recurrent_scan__linear_attn_block__glu_gated_swiglu__prompt"
XN_OFF = 0
ACT_OFF = 4 << 20
KVP_OFF = 24 << 20
KVP_STRIDE = 8448
P_OFF = 32 << 20
FLAG_OFF = 48 << 20
XFL_OFF = 49 << 20
STAT_OFF = 50 << 20
STAMP_OFF = 56 << 20
LOG2E = 0x3fb8aa3b
NLOG2E = 0xbfb8aa3b
EPS6 = 0x358637bd
EPS5 = 0x3727c5ac
SPIN = 0x40000

def opt(name, default=""):
    for a in sys.argv:
        if a.startswith("--" + name + "="): return a.split("=", 1)[1].replace("+", " ")
    return default
STAMPS = "--stamps" in sys.argv
ROT = int(opt("rot", "0"))
L2PF = int(opt("l2pf", "0"))
XFIRST = int(opt("xfirst", "1"))
WU = int(opt("wu", "10"))
RB = int(opt("rb", "0"))
RINV = int(opt("rinv", "0"))
CPF = int(opt("cpf", "1"))
ECPF = int(opt("ecpf", "1"))
W1E = int(opt("w1e", "0"))
W1J = int(opt("w1j", "4"))
NSY = int(opt("nsy", "1"))
ODEF = int(opt("odef", "0"))
FAST = int(opt("fast", "0"))
P16 = int(opt("p16", "1"))

NA = int(opt("na", "12"))
F_X0 = opt("x0", "nt")
F_W1P = opt("w1p", "nt")
F_W1 = opt("w1", "nt")
SC = "sc0 sc1"
F_XN = opt("xn", "sc1")
F_H = opt("h", "sc1")
F_HST = opt("hst", SC)

def stamp(A, idx, tail=False):
    if not STAMPS: return
    if opt("tailst") and 16 <= idx < 26 and not tail: return
    A("s_memtime s[100:101]" if opt("cyc") else "s_memrealtime s[100:101]")
    A("s_waitcnt lgkmcnt(0)")
    A(f"v_writelane_b32 v0, s100, {idx}")
def stamp_out(A, idx, tag):
    if not STAMPS: return
    A("s_waitcnt vmcnt(0)")
    stamp(A, idx)
    A(f"s_cmp_lg_u32 s24, 0\ns_cbranch_scc1 LS_{tag}")
    A(f"s_lshl_b32 s100, s2, 7\ns_add_u32 s100, s100, {STAMP_OFF}")
    A("v_lshl_add_u32 v20, v1, 2, s100")
    A("s_mov_b64 exec, 0xffffffff")
    A("global_store_dword v20, v0, s[22:23]")
    if opt("dbgst"):
        A(f"s_cmp_lg_u32 s2, 0\ns_cbranch_scc1 LS_{tag}")
        A("v_readlane_b32 s30, v0, 0\ns_mov_b64 exec, 1")
        for w, idx in zip((1, 3, 4, 5, 7, 9, 11, 12, 13, 15), (1, 3, 5, 6, 8, 9, 11, 12, 13, 15)):
            A(f"v_readlane_b32 s31, v0, {idx}\ns_sub_u32 s31, s31, s30\nv_mov_b32 v21, s31\nv_mov_b32 v22, {w*4}")
            A("global_store_dword v22, v21, s[20:21]")
    A(f"LS_{tag}:")

def srd(A, d, lo, off, nrec):
    A(f"s_add_u32 s{d}, s{lo}, {off}")
    A(f"s_addc_u32 s{d+1}, s{lo+1}, 0")
    A(f"s_mov_b32 s{d+2}, {nrec}")
    A(f"s_mov_b32 s{d+3}, 0x20000")

_lab = [0]
def newlab(p):
    _lab[0] += 1
    return f"L{p}{_lab[0]}"

def spin(vaddr, base, target, vtmp, first_loaded=False, sleep=1, off=0):
    l, d = newlab("p"), newlab("d")
    g = []
    if first_loaded:
        g += [f"v_readfirstlane_b32 s30, v{vtmp}", f"s_cmp_ge_u32 s30, {target}", f"s_cbranch_scc1 {d}"]
    g += [f"s_mov_b32 s31, {SPIN}", f"{l}:",
          f"global_load_dword v{vtmp}, v{vaddr}, s[{base}:{base+1}] offset:{off} sc1", "s_waitcnt vmcnt(0)",
          f"v_readfirstlane_b32 s30, v{vtmp}", f"s_cmp_ge_u32 s30, {target}", f"s_cbranch_scc1 {d}",
          f"s_sleep {sleep}", "s_sub_u32 s31, s31, 1", "s_cmp_lg_u32 s31, 0", f"s_cbranch_scc1 {l}", f"{d}:"]
    return g

def signal(vaddr, base, v1, off=0):
    l = newlab("s")
    return ["s_cmp_lg_u32 s24, 0", f"s_cbranch_scc1 {l}", f"v_mov_b32 v{v1}, 1", "s_mov_b64 exec, 1",
            f"global_atomic_add v{vaddr}, v{v1}, s[{base}:{base+1}] offset:{off} sc1", "s_mov_b64 exec, -1", f"{l}:"]

def emit_group(A, it, uncounted=False):
    if isinstance(it, str): it = [it]
    for t in it: A(t)

def emit_stream(A, mf, fill, batches):
    bi = 0; pos = 0; done = 0
    def icost(it): return cost(it) if isinstance(it, str) else sum(cost(t) for t in it[:6])
    tot = [sum(icost(x) for x in b[2]) for b in batches]
    for i, m in enumerate(mf):
        A(m)
        for t in fill[i]: emit_group(A, t)
        while bi < len(batches) and batches[bi][0] <= i:
            st, en, items = batches[bi]
            want = tot[bi] * min(1.0, (i - st + 1) / max(1, en - st))
            while pos < len(items) and done < want:
                emit_group(A, items[pos]); done += icost(items[pos]); pos += 1
            while pos < len(items) and icost(items[pos]) == 0:
                emit_group(A, items[pos]); pos += 1
            if pos >= len(items):
                bi += 1; pos = 0; done = 0
            else:
                break
    while bi < len(batches):
        items = batches[bi][2]
        while pos < len(items):
            emit_group(A, items[pos]); pos += 1
        bi += 1; pos = 0

def emit_sync(A, g):
    n = A.nvm
    for t in g: A(t)
    A.nvm = n
class Unc(list):
    pass
def emit_group(A, it):
    if isinstance(it, str): A(it)
    elif isinstance(it, Unc): emit_sync(A, it)
    else:
        for t in it: A(t)

class Inject:
    def __init__(self, A, L, every, skip=0): self.A, self.L, self.every, self.n = A, list(L), every, -skip
    def __call__(self, text):
        for t in text.split("\n"):
            self.A(t); self.n += 1
            if self.n <= 0: continue
            if self.L and self.n % self.every == self.every - 2 and self.L[0][0]: self.A(self.L[0][0])
            if self.L and self.n % self.every == 0: self.A(self.L.pop(0)[1])

def ln_part(A, publish=None):
    X, F, S, Vv = 64, 80, 112, 116
    A("s_mov_b32 s3, 0xffff0000")
    for i in range(16):
        A(f"v_lshlrev_b32 v{F+2*i}, 16, v{X+i}")
        A(f"v_and_b32 v{F+1+2*i}, s3, v{X+i}")
    def reduce32(r, t):
        for m in ("quad_perm:[1,0,3,2]", "quad_perm:[2,3,0,1]", "row_half_mirror", "row_mirror"):
            A(f"v_add_f32_dpp v{r}, v{r}, v{r} {m} row_mask:0xf bank_mask:0xf")
        A(f"v_mov_b32 v{t}, v{r}")
        A(f"v_permlane16_swap_b32 v{t}, v{r}")
        A(f"v_add_f32 v{r}, v{r}, v{t}")
    for i in range(2):
        A(f"v_pk_add_f32 v[{S+2*i}:{S+2*i+1}], v[{F+2*i}:{F+2*i+1}], v[{F+4+2*i}:{F+5+2*i}]")
    for b in range(2, 8):
        for i in range(2):
            A(f"v_pk_add_f32 v[{S+2*i}:{S+2*i+1}], v[{S+2*i}:{S+2*i+1}], v[{F+4*b+2*i}:{F+4*b+2*i+1}]")
    A(f"v_pk_add_f32 v[{S}:{S+1}], v[{S}:{S+1}], v[{S+2}:{S+3}]")
    A(f"v_add_f32 v{S}, v{S}, v{S+1}")
    reduce32(S, S + 1)
    A(f"v_mul_f32 v{S}, 0xba800000, v{S}")
    A(f"v_mov_b32 v{S+1}, v{S}")
    for i in range(16):
        t = X + 2 * (i % 4)
        A(f"v_pk_add_f32 v[{t}:{t+1}], v[{F+2*i}:{F+2*i+1}], v[{S}:{S+1}]")
        a = Vv + 2 * (i % 2)
        if i < 2:
            A(f"v_pk_mul_f32 v[{a}:{a+1}], v[{t}:{t+1}], v[{t}:{t+1}]")
        else:
            A(f"v_pk_fma_f32 v[{a}:{a+1}], v[{t}:{t+1}], v[{t}:{t+1}], v[{a}:{a+1}]")
    A(f"v_pk_add_f32 v[{Vv}:{Vv+1}], v[{Vv}:{Vv+1}], v[{Vv+2}:{Vv+3}]")
    A(f"v_add_f32 v{Vv}, v{Vv}, v{Vv+1}")
    A(f"v_cvt_pk_bf16_f32 v{S}, v{S}, v{S}\nv_and_b32 v{S}, s3, v{S}\nv_mov_b32 v{S+1}, v{S}")
    reduce32(Vv, Vv + 1)
    chain = [f"v_mul_f32 v{Vv}, 0x3a800000, v{Vv}", f"v_cvt_pk_bf16_f32 v{Vv}, v{Vv}, v{Vv}", f"v_and_b32 v{Vv}, s3, v{Vv}",
             f"v_add_f32 v{Vv}, {EPS5:#x}, v{Vv}", f"v_cvt_pk_bf16_f32 v{Vv}, v{Vv}, v{Vv}", f"v_and_b32 v{Vv}, s3, v{Vv}",
             f"v_sqrt_f32 v{Vv}, v{Vv}", f"v_cvt_pk_bf16_f32 v{Vv}, v{Vv}, v{Vv}", f"v_and_b32 v{Vv}, s3, v{Vv}",
             f"v_rcp_f32 v{Vv}, v{Vv}", f"v_mov_b32 v{Vv+1}, v{Vv}"]
    if publish:
        for c in chain[:8]: A(c)
        chain = chain[8:]
        publish(S, Vv)
    for i in range(16):
        a = F + 2 * i
        A(f"v_pk_add_f32 v[{a}:{a+1}], v[{a}:{a+1}], v[{S}:{S+1}]")
        if chain: A(chain.pop(0))
        A(f"v_cvt_pk_bf16_f32 v{a+1}, v{a}, v{a+1}")
        A(f"v_lshlrev_b32 v{a}, 16, v{a+1}\nv_and_b32 v{a+1}, s3, v{a+1}")
    for i in range(16):
        a = F + 2 * i
        A(f"v_pk_mul_f32 v[{a}:{a+1}], v[{a}:{a+1}], v[{Vv}:{Vv+1}]")
        A(f"v_cvt_pk_bf16_f32 v{X+i}, v{a}, v{a+1}")

def merge(a, b, f0=0.0, f1=1.0):
    i0, i1 = int(len(a) * f0), int(len(a) * f1)
    out = list(a[:i0]); b = list(b); n = len(b); done = 0
    for i, x in enumerate(a[i0:i1]):
        out.append(x)
        while b and done < n * (i + 1) // (i1 - i0):
            out.append(b.pop(0)); done += 1
    return out + b + list(a[i1:])

class K1:
    VO6, VO7, VOH, VX1 = 16, 17, 18, 19
    def __init__(self, A, typ):
        self.A = A; self.typ = typ
        ag = [4, 5, 6, 7, 16, 17, 18, 19] if typ == "Q" else [4, 5, 6, 7, 12, 13, 14, 15]
        self.acc = {}
        na = nv = 0
        for nb in range(20):
            for mb in range(4):
                if nb in ag: self.acc[(nb, mb)] = ("a", na); na += 4
                else: self.acc[(nb, mb)] = ("v", 64 + nv); nv += 4
        self.u = 0
    def q(self, nb, mb):
        f, r = self.acc[(nb, mb)]; assert f == "v"; return r
    def xfrag(self, xs, kh, mb): return 128 + xs * 32 + (kh * 4 + mb) * 4
    def reads(self, ring, nb, slot):
        out = []
        grp, sub = nb // 4, nb % 4
        for kh in range(2):
            for h4 in range(2):
                r = 32 + ring * 8 + kh * 4 + 2 * h4
                if self.typ == "KV" and grp == 4:
                    v, imm = 12 + sub % 2, slot * 8192 + (sub // 2) * 4096 + kh * 2048 + h4 * 256
                else:
                    v, imm = 4 + (grp // 2) * 4 + sub, (grp % 2) * 32768 + slot * 8192 + kh * 4096 + h4 * 512
                out.append(f"ds_read_b64_tr_b16 v[{r}:{r+1}], v{v} offset:{imm}")
        return out
    def mfmas(self, ring, nb, slot, first=False):
        out = []
        sw = self.typ == "KV" and nb < 8
        for mb in range(4):
            for kh in range(2):
                w = 32 + ring * 8 + kh * 4; x = self.xfrag(slot, kh, mb)
                wa, xa = f"v[{w}:{w+3}]", f"a[{x}:{x+3}]"
                f, r = self.acc[(nb, mb)]; acc = f"{f}[{r}:{r+3}]"
                out.append(f"v_mfma_f32_16x16x32_bf16 {acc}, {xa if sw else wa}, {wa if sw else xa}, {'0' if first and kh == 0 else acc}")
        return out
    def wloads(self, slot, fl):
        dma = []
        for grp in range(5):
            for half in range(2):
                s = 32 + 4 * grp
                isqkv = (grp == 2) if self.typ == "Q" else (grp < 2)
                if self.typ == "KV" and grp == 4:
                    pre = f"s_add_u32 m0, s79, {131072 + slot*8192 + half*2048}"
                    ins = f"buffer_load_dwordx4 v{self.VOH}, s[{s}:{s+3}], s{74+half} offen {fl} lds"
                else:
                    pre = f"s_add_u32 m0, s78, {grp*32768 + slot*8192 + half*4096}"
                    ins = f"buffer_load_dwordx4 v{self.VO6 if isqkv else self.VO7}, s[{s}:{s+3}], s{(72 if isqkv else 74)+half} offen {fl} lds"
                dma.append((pre, ins))
        return dma
    def xloads(self, slot, so=76):
        xl = []
        for kh in range(2):
            for mb in range(4):
                r = self.xfrag(slot, kh, mb)
                xl.append((None, f"buffer_load_dwordx4 a[{r}:{r+3}], v{2 if kh == 0 else self.VX1}, s[52:55], s{so} offen offset:{mb*1024} {F_XN}"))
        return xl
    def loads(self, slot):
        d, x = self.wloads(slot, F_W1), self.xloads(slot)
        L = []
        while d or x:
            if d: L.append(d.pop(0))
            if x: L.append(x.pop(0))
        return L
    def adv(self):
        return [f"s_add_u32 s72, s72, {64*6144}", f"s_add_u32 s73, s73, {64*6144}", f"s_add_u32 s74, s74, {64*7168}",
                f"s_add_u32 s75, s75, {64*7168}", "s_add_u32 s76, s76, 8192"]
    def l2pf(self):
        l = newlab("f")
        g = ["s_cmp_ge_u32 s90, 1024", f"s_cbranch_scc1 {l}", "s_mul_i32 s10, s90, 6144", "s_mul_i32 s30, s90, 7168",
             f"s_add_u32 s11, s10, {32*6144}", f"s_add_u32 s31, s30, {32*7168}"]
        for pre, ins in self.wloads(0, "nt"):
            ins = ins.replace("buffer_load_dwordx4 ", "buffer_load_dwordx4 v[28:31], ").replace(" lds", "")
            ins = ins.replace("s72", "s10").replace("s73", "s11").replace("s74", "s30").replace("s75", "s31")
            g.append(ins)
        g += [f"{l}:", "s_add_u32 s90, s90, 512"]
        return g
    def stage(self, slot, nxt_units, vmw, pf=(), lastld=False):
        ls = (slot + 3) % 4
        units = [(nb, slot) for nb in range(20)] + list(nxt_units)
        mf, fill = [], []
        for u in range(20):
            f = [[] for _ in range(8)]
            rd = self.reads((u + 2) % 4, *units[u + 2])
            if u == 18:
                f[1] += (["@wv x14", "s_waitcnt lgkmcnt(0)"] if lastld else [f"s_waitcnt vmcnt({vmw}) lgkmcnt(0)"]) + ["s_barrier"]
                for i, j in enumerate((2, 3, 4, 5)): f[j].append(rd[i])
                f[5].append("@tag t0")
            else:
                for i, j in enumerate((0, 2, 4, 6)): f[j].append(rd[i])
                if u == 19: f[6].append("@tag t1")
                f[7].append("s_waitcnt lgkmcnt(4)")
            if u == 19 and not lastld:
                a = self.adv()
                f[1] += a[0:2]; f[3] += a[2:4]; f[5] += a[4:5]
            mf += self.mfmas(u % 4, *units[u]); fill += f
        def odd(p): return p | 1
        W, X = self.wloads(ls, F_W1), self.xloads((slot + 2) % 4)
        wu = WU
        if lastld:
            X += [("s_add_u32 s76, s76, 8192" if i == 0 else None, ins) for i, (_, ins) in enumerate(self.xloads(ls))]
            wu = 10
        nx = len(X)
        if XFIRST:
            xu = 18 - wu
            pos = [odd(xu * 8 + 2 + i * (wu * 8 - 2) // 10) for i in range(10)] + [odd(2 + 2 * len(pf) + i * (xu * 8 - 2 * len(pf)) // nx) for i in range(nx)]
        else:
            pos = [odd(2 + 2 * len(pf) + i * (wu * 8 - 2 * len(pf)) // 10) for i in range(10)] + [odd(wu * 8 + 2 + i * ((18 - wu) * 8 - 2) // nx) for i in range(nx)]
        L = W + X
        for i, p in enumerate(pf): fill[1 + 2 * i] += p
        for (pre, ins), p in zip(L, pos):
            assert p < 145
            if pre: fill[p - 1].append(pre)
            fill[p].append(ins)
        fill[max(pos)].append("@tag kld")
        if lastld: fill[pos[17]].append("@tag x14")
        emit_stream(self.A, mf, fill, [])
    def stage0(self):
        units = [(nb, 0) for nb in range(20)] + [(0, 1), (1, 1)]
        mf, fill = [], []
        for u in range(20):
            f = [[] for _ in range(8)]
            rd = self.reads((u + 2) % 4, *units[u + 2])
            if u == 18:
                f[1] += ["@wv wp", "s_waitcnt lgkmcnt(0)", "s_barrier"]
                for i, j in enumerate((2, 3, 4, 5)): f[j].append(rd[i])
            else:
                for i, j in enumerate((0, 2, 4, 6)): f[j].append(rd[i])
                f[7].append("s_waitcnt lgkmcnt(4)")
            mf += self.mfmas(u % 4, *units[u], first=True); fill += f
        for i, (pre, ins) in enumerate(self.wloads(3, F_W1)):
            p = 3 + 6 * i
            fill[p - 1].append(pre); fill[p].append(ins)
        fill[61] += self.adv()[:4]
        ps, pc = int(opt("f0s", "63")), int(opt("f0c", "93"))
        fill[ps] += ["global_load_dword v25, v31, s[22:23] sc1", "@tag fs"]
        p, d = newlab("p"), newlab("d")
        chk = ["v_cmp_ne_u32 vcc, s90, v25", "s_cmp_eq_u64 vcc, 0", f"s_cbranch_scc1 {d}"]
        fill[pc] += ["@wv fs", Unc(chk + [f"s_mov_b32 s31, {SPIN}", f"{p}:", "global_load_dword v25, v31, s[22:23] sc1", "s_waitcnt vmcnt(0)"] + chk +
                                   ["s_sleep 2", "s_sub_u32 s31, s31, 1", "s_cmp_lg_u32 s31, 0", f"s_cbranch_scc1 {p}", f"{d}:"])]
        st = (158 - pc - 2) // 16
        for i, (_, ins) in enumerate(self.xloads(1) + self.xloads(2)):
            q = pc + 2 + (2 * i if i < 8 else 16 + (i - 8) * ((158 - pc - 20) // 8))
            fill[q].append(ins)
            if i in (7, 15): fill[q] += (["@tag x1"] if i == 7 else []) + ["s_add_u32 s76, s76, 8192"]
        fill[159].append("@wv x1")
        emit_stream(self.A, mf, fill, [])
    def fast_start(self):
        A = self.A; t = self.typ
        def issue(L):
            for pre, ins in L:
                if pre: A(pre)
                A(ins)
        R, U, ST = 128, 160, 224
        A("s_mul_i32 s30, s26, 24\ns_mul_i32 s31, s24, 6\ns_add_u32 s31, s31, s30\nv_add_u32 v24, s31, v1")
        A("v_mul_u32_u24 v25, 6144, v24\nv_mul_u32_u24 v24, 7168, v24")
        if t == "KV":
            A("s_and_b32 s31, s24, 1\ns_mul_i32 s31, s31, 12\ns_add_u32 s31, s31, s30\nv_add_u32 v26, s31, v1\nv_mul_u32_u24 v26, 7168, v26")
            A("s_mov_b64 exec, 0xfff")
            A(f"buffer_load_dword v124, v26, s[48:51], 0 offen {F_W1P}")
        A("s_mov_b64 exec, 63")
        for grp in range(5 if t == "Q" else 4):
            q = (grp == 2) if t == "Q" else (grp < 2)
            A(f"buffer_load_dword v124, v{25 if q else 24}, s[{32+4*grp}:{35+4*grp}], 0 offen {F_W1P}")
        A("s_mov_b64 exec, -1")
        raw = []
        for mb in range(4):
            for kh in range(2):
                r = R + (kh * 4 + mb) * 4
                raw.append(("v_add_u32 v127, 0x8000, v127" if (kh == 0 and mb) else None,
                            f"global_load_dwordx4 v[{r}:{r+3}], v127, s[4:5] offset:{kh*64}" + ("\n@tag raw" if (mb, kh) == (3, 1) else "")))
        RE = int(opt("rawe", "8"))
        issue(raw[:RE])
        A("s_lshl_b32 s10, s26, 5\ns_add_u32 s10, s20, s10\ns_addc_u32 s11, s21, 0")
        A("s_lshl_b32 s30, s26, 5\nv_mov_b32 v30, s30")
        A(f"s_waitcnt vmcnt({5 + RE})")
        stamp(A, 1)
        A("s_load_dword s90, s[10:11], 0")
        def publish(S, Vv):
            p, d = newlab("p"), newlab("d")
            A(f"v_bfi_b32 v{Vv+2}, s3, v{S}, v{Vv}")
            A(f"s_waitcnt lgkmcnt(0)\ns_cmp_lg_u32 s90, 0\ns_cbranch_scc1 {d}")
            emit_sync(A, spin(30, 20, 1, 126) + ["s_mov_b32 s90, s30", f"{d}:"])
            A(f"v_mov_b32 v{Vv+3}, s90\ns_mov_b32 s30, 1\ns_mov_b32 s31, 1\ns_mov_b64 exec, s[30:31]")
            A(f"global_store_dwordx2 v20, v[{Vv+2}:{Vv+3}], s[22:23] {SC}\ns_mov_b64 exec, -1")
            stamp(A, 10)
        def nxt(L): return [("\n".join(self.adv()[:4] + [L[0][0]]), L[0][1])] + L[1:]
        rest = raw[RE:] + self.wloads(0, F_W1P) + nxt(self.wloads(1, F_W1P)) + nxt(self.wloads(2, F_W1P))
        n1, n2 = 18 - RE, int(opt("fn2", "8"))
        inj = Inject(A, rest[:n1], 5, skip=104)
        ln_part(inj, publish)
        assert not inj.L
        for j in range(4):
            A(f"ds_write_b128 v22, v[{64+4*j}:{67+4*j}] offset:{24576 + (j%2)*4096 + (j//2)*32768}")
        A("s_waitcnt lgkmcnt(0)\ns_barrier")
        for j in range(4):
            A(f"ds_read_b128 v[{64+4*j}:{67+4*j}], v21 offset:{24576 + j*1024}")
        for j in range(4):
            A(f"s_waitcnt lgkmcnt({3-j})")
            A(f"global_store_dwordx4 v23, v[{64+4*j}:{67+4*j}], s[22:23] {SC}")
            if j < 3: A("v_add_u32 v23, 0x2000, v23")
        stamp(A, 2)
        A("@wv raw")
        inj = Inject(A, rest[n1:n1+n2], 8)
        for i in range(32):
            inj(f"v_lshlrev_b32 v{U+2*i}, 16, v{R+i}\nv_and_b32 v{U+2*i+1}, s3, v{R+i}")
        assert not inj.L
        if CPF:
            l = newlab("c")
            A(f"s_getpc_b64 s[10:11]\n{l}:\ns_sub_u32 s10, s10, {l}-{NAME}_kernel\ns_subb_u32 s11, s11, 0")
            A("s_lshr_b32 s30, s2, 3\ns_lshl_b32 s30, s30, 2\ns_add_u32 s30, s30, s24\ns_lshl_b32 s30, s30, 10")
            A(f"s_min_u32 s30, s30, L_end-{NAME}_kernel-1024\nv_add_u32 v28, s30, v2")
        A("s_mov_b32 s80, 3\ns_mov_b32 s76, 8192")
        if int(opt("fsl", "0")): A(f"s_sleep {opt('fsl')}")
        p, d = newlab("p"), newlab("d")
        A(f"s_mov_b32 s31, {SPIN}\n{p}:")
        n = A.nvm
        for mb in range(4):
            A(f"global_load_dwordx2 v[{ST+2*mb}:{ST+2*mb+1}], v125, s[22:23] offset:{mb*128} sc1")
        A.nvm = n
        A("s_waitcnt vmcnt(0)")
        A(f"v_xor_b32 v24, s90, v{ST+1}\nv_xor_b32 v25, s90, v{ST+3}\nv_xor_b32 v26, s90, v{ST+5}\nv_xor_b32 v27, s90, v{ST+7}")
        A("v_or3_b32 v24, v24, v25, v26\nv_or_b32 v24, v24, v27\nv_cmp_ne_u32 vcc, 0, v24\ns_cmp_eq_u64 vcc, 0")
        A(f"s_cbranch_scc1 {d}\ns_sleep 1\ns_sub_u32 s31, s31, 1\ns_cmp_lg_u32 s31, 0\ns_cbranch_scc1 {p}\n{d}:")
        stamp(A, 4)
        A("s_barrier")
        l = newlab("a")
        emit_sync(A, ["s_cmp_lg_u32 s24, 0", f"s_cbranch_scc1 {l}", "s_lshl_b32 s30, s27, 3", "s_add_u32 s30, s30, s25",
                      "s_lshl_b64 exec, 1, s30", "v_mov_b32 v25, s90", f"global_store_dword v31, v25, s[22:23] {SC}", "s_mov_b64 exec, -1", f"{l}:"])
        stamp(A, 3)
        for u in range(2):
            for r in self.reads(u, u, 0): A(r)
        inj = Inject(A, rest[n1+n2:], 240 // max(1, len(rest) - n1 - n2))
        for mb in range(4):
            m, r = ST + 8 + 4 * mb, ST + 10 + 4 * mb
            inj(f"v_lshlrev_b32 v{r}, 16, v{ST+2*mb}\nv_and_b32 v{m}, s3, v{ST+2*mb}\nv_rcp_f32 v{r}, v{r}\nv_mov_b32 v{m+1}, v{m}\nv_mov_b32 v{r+1}, v{r}")
        for f in range(8):
            mb = f % 4; m, r = ST + 8 + 4 * mb, ST + 10 + 4 * mb
            P = lambda x: f"v[{x}:{x+1}]"
            a = [U + 8 * f + 2 * i for i in range(4)]
            for x in a: inj(f"v_pk_add_f32 {P(x)}, {P(x)}, {P(m)}")
            for x in a: inj(f"v_cvt_pk_bf16_f32 v{x+1}, v{x}, v{x+1}")
            for x in a: inj(f"v_lshlrev_b32 v{x}, 16, v{x+1}\nv_and_b32 v{x+1}, s3, v{x+1}")
            for x in a: inj(f"v_pk_mul_f32 {P(x)}, {P(x)}, {P(r)}")
            for x in a: inj(f"v_cvt_pk_bf16_f32 v{x}, v{x}, v{x+1}")
            for i, x in enumerate(a): inj(f"v_accvgpr_write_b32 a{128+4*f+i}, v{x}")
        assert not inj.L
        A("@tag wp")
        for a in self.adv()[:4]: A(a)
        A("s_waitcnt lgkmcnt(4)")
        stamp(A, 5)
        self.stage0()
        A(f"s_branch L1{t}_s1")
    def phi(self, r, d0):
        it = [f"v_mul_f32 v{20+i}, s86, v{r+i}" for i in range(4)]
        for i in range(4):
            it += [f"v_exp_f32_e64 v{20+i}, v{20+i} clamp", f"v_max_f32 v{r+i}, s88, v{r+i}"]
        it += [f"v_add_f32 v{r+i}, v{r+i}, v{20+i}" for i in range(4)]
        it += [f"v_cvt_pk_bf16_f32 v{d0}, v{r}, v{r+1}", f"v_cvt_pk_bf16_f32 v{d0+1}, v{r+2}, v{r+3}"]
        return it
    def store_act(self, d, mb, ks, imm_k, fl):
        return f"buffer_store_dwordx4 v[{d}:{d+3}], v{2 if mb < 2 else 31 if False else 3}, s[56:59], s{ks} offen offset:{imm_k*2048 + (mb&1)*1024} {fl}"
    def gu(self, gb, ub, pos, pk=False):
        it = [f"s_add_u32 s84, s83, {pos*8192}"]
        if pk: it += ["v_mov_b32 v36, s87", "v_mov_b32 v37, s87", "v_mov_b32 v38, 1.0", "v_mov_b32 v39, 1.0"]
        P = lambda r: f"v[{r}:{r+1}]"
        for mb in range(4):
            d = self.q(gb, mb)
            for p in range(2):
                g = self.q(gb + p, mb); fu, u = self.acc[(ub + p, mb)]
                rd = [[f"v_accvgpr_read_b32 v{24+i}, a{u+i}"] if fu == "a" else [] for i in range(4)]
                if fu == "a": u = 24
                if pk: it += [f"v_pk_mul_f32 {P(20+i)}, {P(g+i)}, {P(36)}" for i in (0, 2)]
                else: it += [f"v_mul_f32 v{20+i}, s87, v{g+i}" for i in range(4)]
                for i in range(4):
                    it += [f"v_exp_f32 v{20+i}, v{20+i}"] + rd[i]
                if pk:
                    it += [f"v_pk_mul_f32 {P(g+i)}, {P(g+i)}, {P(u+i)}" for i in (0, 2)]
                    it += [f"v_pk_add_f32 {P(20+i)}, {P(20+i)}, {P(38)}" for i in (0, 2)]
                    it += [f"v_rcp_f32 v{20+i}, v{20+i}" for i in range(4)]
                    it += [f"v_pk_mul_f32 {P(g+i)}, {P(g+i)}, {P(20+i)}" for i in (0, 2)]
                else:
                    it += [f"v_add_f32 v{20+i}, 1.0, v{20+i}" for i in range(4)]
                    for i in range(4):
                        it += [f"v_rcp_f32 v{20+i}, v{20+i}", f"v_mul_f32 v{g+i}, v{g+i}, v{u+i}"]
                    it += [f"v_mul_f32 v{g+i}, v{g+i}, v{20+i}" for i in range(4)]
                it += [f"v_cvt_pk_bf16_f32 v{d+2*p}, v{g}, v{g+1}", f"v_cvt_pk_bf16_f32 v{d+2*p+1}, v{g+2}, v{g+3}"]
            it.append(self.store_act(d, mb, 84, 0, F_HST))
        return it
    def tail_units(self):
        if self.typ == "KV":
            nbs = [0,1,2,3, 4,5,6,7, 8,9,12,13, 10,11,14,15, 16,17,18,19]
        else:
            nbs = [0,1,4,5, 2,3,6,7, 8,9,10,11, 12,13,16,17, 14,15,18,19]
        return [(nb, s) for nb in nbs[:4] for s in (1, 2)] + [(nb, 3) for nb in nbs[:4]] + [(nb, s) for nb in nbs[4:] for s in (1, 2, 3)]
    def tail(self, batches):
        units = self.tail_units()
        mf, fill = [], []
        for u in range(60):
            f = [[] for _ in range(8)]
            if u == 5: f[7] += ["@wv kld", "s_barrier"]
            if u + 2 < 60:
                rd = self.reads((u + 2) % 4, *units[u + 2])
                for i, j in enumerate((0, 2, 4, 6)): f[j].append(rd[i])
                f[6].append(f"@tag t{u+2}")
            if u + 1 < 60: f[7].append(f"@wl t{u+1}")
            if STAMPS and opt("tailst") and u % 6 == 5:
                f[7] += ["s_memtime s[100:101]" if opt("cyc") else "s_memrealtime s[100:101]", "s_waitcnt lgkmcnt(0)", f"v_writelane_b32 v0, s100, {16 + u // 6}"]
            mf += self.mfmas(u % 4, *units[u]); fill += f
        emit_stream(self.A, mf, fill, batches)
    def batches_kv(self):
        B = []
        def ph(db): return sum([self.phi(self.q(db, mb), self.q(db, mb & 2) + 2 * (mb & 1)) for mb in range(4)], [])
        def vp(eb):
            it = []
            for mb in range(4):
                f, r = self.acc[(4 + eb, mb)]
                d = self.q(eb, (mb & 2) + 1) + 2 * (mb & 1)
                if f == "a":
                    it += [f"v_accvgpr_read_b32 v{24+i}, a{r+i}" for i in range(4)]; r = 24
                it += [f"v_cvt_pk_bf16_f32 v{d}, v{r}, v{r+1}", f"v_cvt_pk_bf16_f32 v{d+1}, v{r+2}, v{r+3}"]
            return it
        pre = [f"v_mov_b32 v{28+i}, 0x3f803f80" for i in range(4)]
        pre += [["s_lshl_b32 s30, s24, 15", "v_add_u32 v16, s30, v2"],
                "v_lshrrev_b32 v19, 4, v1", "v_lshlrev_b32 v19, 4, v19",
                ["s_lshl_b32 s30, s24, 8", "s_add_u32 s30, s30, 0x20000", "v_add_u32 v17, s30, v19"],
                ["s_lshl_b32 s30, s24, 11", "v_add_u32 v18, s30, v2"],
                ["s_lshl_b32 s30, s24, 6", "v_add_u32 v19, s30, v19"]]
        B.append((0, 24, pre))
        B.append((50, 78, K2.xaddr(24, 25) + K2.xres(24, 25)))
        B += [(78, 104, ph(0)), (104, 130, ph(1)), (130, 156, ph(2)), (156, 162, vp(0)), (162, 186, ph(3)),
              (186, 191, vp(1)), (191, 196, vp(2)), (198, 204, vp(3))]
        Z = 32
        it = []
        for sg in range(2):
            for hd in range(2):
                for db in range(2):
                    pk = self.q(hd * 2 + db, 2 * sg)
                    for eb in range(2):
                        vv = self.q(hd * 2 + eb, 2 * sg + 1)
                        d = ((hd * 2 + eb) * 2 + db) * 4
                        it.append(f"v_mfma_f32_16x16x32_bf16 a[{d}:{d+3}], v[{pk}:{pk+3}], v[{vv}:{vv+3}], {'0' if sg == 0 else f'a[{d}:{d+3}]'}")
                    d = Z + (hd * 2 + db) * 4
                    it.append(f"v_mfma_f32_16x16x32_bf16 a[{d}:{d+3}], v[{pk}:{pk+3}], v[28:31], {'0' if sg == 0 else f'a[{d}:{d+3}]'}")
        B.append((205, 215, it))
        it = [f"ds_write_b128 v16, a[{q*4}:{3+q*4}] offset:{q*1024}" for q in range(8)]
        it.append(["s_mov_b32 s30, 0x00010001", "s_mov_b32 s31, 0x00010001", "s_mov_b64 exec, s[30:31]"] +
                  [f"ds_write_b128 v17, a[{Z+q*4}:{Z+q*4+3}] offset:{q*64}" for q in range(4)] + ["s_mov_b64 exec, -1", "@tag kvw"])
        B.append((219, 225, it))
        it = [["@wl kvw", "s_barrier"], "v_add_u32 v16, 0x10000, v18", "v_add_u32 v17, 0x20000, v19"]
        for w in range(4):
            va = 18 if w < 2 else 16
            it.append(f"ds_read_b128 v[{64+w*12}:{67+w*12}], v{va} offset:{(w%2)*32768}")
            it.append(f"ds_read_b128 v[{68+w*12}:{71+w*12}], v{va} offset:{(w%2)*32768+1024}")
            it.append(f"ds_read_b128 v[{72+w*12}:{75+w*12}], v17 offset:{w*256}")
        it.append("@tag kvr")
        B.append((230, 237, it))
        it = ["@wl kvr"]
        for i in range(12):
            it += [f"v_add_f32 v{64+i}, v{64+i}, v{76+i}", f"v_add_f32 v{88+i}, v{88+i}, v{100+i}"]
        it += [f"v_add_f32 v{64+i}, v{64+i}, v{88+i}" for i in range(12)]
        it += [f"s_mul_i32 s10, s26, {KVP_STRIDE}", "s_add_u32 s11, s10, 8192",
               f"buffer_store_dwordx4 v[64:67], v18, s[60:63], s10 offen {SC}",
               f"buffer_store_dwordx4 v[68:71], v18, s[60:63], s10 offen offset:1024 {SC}",
               ["s_mov_b32 s30, 0x00010001", "s_mov_b32 s31, 0x00010001", "s_mov_b64 exec, s[30:31]",
                f"buffer_store_dwordx4 v[72:75], v19, s[60:63], s11 offen {SC}", "s_mov_b64 exec, -1", "@tag kvs"]]
        B.append((243, 254, it))
        g0 = self.gu(8, 12, 4)
        k = len(g0) // 3
        pub = [["@wv kvs", "s_barrier"], "v_mov_b32 v16, s89", Unc(signal(16, 20, 17))]
        B.append((256, 286, self.k2.setup_early()))
        B.append((288, 290, pub))
        smp, chk = self.hA()
        xf = self.k2.xfirst()
        B.append((294, 384, merge(merge(smp + g0, self.k2.wfirst(), 0, 0.6), chk + xf[:10], 0.65, 1.0) + ["@tag hA"]))
        B.append((390, 480, merge(merge(self.h1mix(self.gu(10, 14, 10), 768), xf[10:], 0.0, 0.28), self.k2.l2pf(), 0.36, 1.0)))
        self.last = self.gu(16, 18, 12, pk=True)
        self.lastld = []
        return B
    def hA(self):
        return ([["global_load_dword v29, v30, s[22:23] sc1", "@tag h1s"]],
                ["@wv h1s", Unc(spin(30, 22, 16, 29, True, sleep=4))])
    def h1mix(self, g, off, after=(), f=0.3, f1=1.0):
        k = int(len(g) * f)
        pub = [["@wv hA", "s_barrier"], Unc(signal(30, 22, 31, off))]
        return g[:k] + pub + merge(g[k:], after, 0, f1)
    def pquads(self):
        return [self.q(nb, mb) for nb in (0, 1, 2, 3) for mb in range(4)] + [self.q(nb, mb) for nb in (9, 11) for mb in range(4)]
    def batches_q(self):
        B = []
        def ph(nb): return sum([self.phi(self.q(8 + nb, mb), self.q(8 + (nb & 2), mb) + 2 * (nb & 1)) for mb in range(4)], [])
        pre = ["v_mov_b32 v16, s89",
               "v_lshrrev_b32 v19, 4, v1", "v_lshlrev_b32 v19, 4, v19",
               ["s_lshl_b32 s30, s24, 11", "v_add_u32 v18, s30, v2"],
               ["s_lshl_b32 s30, s24, 6", "s_add_u32 s30, s30, 8192", "v_add_u32 v19, s30, v19"]]
        B.append((0, 24, pre))
        B.append((50, 78, K2.xaddr(24, 25) + K2.xres(24, 25)))
        B.append((78, 102, self.k2.setup_early()))
        B.append((102, 192, merge(self.gu(0, 4, 0), self.k2.l2pf(), 0, 0.8) + ["@tag hA"]))
        B.append((198, 288, self.h1mix(self.gu(2, 6, 2), 0, self.k2.wfirst()) + ["@tag hA"]))
        smp, chk = self.hA()
        phq = ph(0) + ph(1) + ph(2) + ph(3)
        k = len(phq) // 4
        B.append((294, 388, smp + self.h1mix(phq, 1024, chk + self.k2.xfirst(), f=0.33)))
        P = self.pquads()
        ld = []
        for p in range(8):
            ld.append([f"s_mov_b32 s10, {p*KVP_STRIDE}",
                       f"buffer_load_dwordx4 v[{P[3*p]}:{P[3*p]+3}], v18, s[60:63], s10 offen sc1"])
            ld.append(f"buffer_load_dwordx4 v[{P[3*p+1]}:{P[3*p+1]+3}], v18, s[60:63], s10 offen offset:1024 sc1")
            ld.append(f"buffer_load_dwordx4 v[{P[3*p+2]}:{P[3*p+2]+3}], v19, s[60:63], s10 offen sc1")
        ld.append("@tag kvl")
        chk = ["@wv kvp", Unc(spin(16, 20, 8, 17, True))]
        smp = ["global_load_dword v17, v16, s[20:21] sc1", "@tag kvp"]
        g2 = self.gu(12, 16, 6)
        f = float(opt("kvk", "0.3"))
        k0, k = int(len(g2) * (f - 0.25)), int(len(g2) * f)
        nl = int(opt("kvn", "25"))
        B.append((390, 480, g2[:k0] + smp + g2[k0:k] + chk + merge(g2[k:], ld[:nl], 0, float(opt('kve', '0.7')))))
        self.lastld = ld[nl:]
        self.last = self.gu(14, 18, 8, pk=True)
        return B
    def opath1(self):
        P = self.pquads()
        it = ["@wv kvl"]
        for st in (4, 2, 1):
            for p in range(st):
                for j in range(3):
                    for i in (0, 2):
                        a, b = P[3 * p + j] + i, P[3 * (p + st) + j] + i
                        it.append(f"v_pk_add_f32 v[{a}:{a+1}], v[{a}:{a+1}], v[{b}:{b+1}]")
        for j in range(3):
            it += [f"v_cvt_pk_bf16_f32 v{40+2*j}, v{P[j]}, v{P[j]+1}", f"v_cvt_pk_bf16_f32 v{41+2*j}, v{P[j]+2}, v{P[j]+3}"]
        it += [["s_lshl_b32 s30, s24, 10", "s_add_u32 s30, s30, 0x20000", "v_add_u32 v18, s30, v2"], "ds_write_b128 v18, v[40:43]",
               ["s_lshr_b32 s30, s24, 1", "s_lshl_b32 s30, s30, 10", "s_and_b32 s31, s24, 1", "s_lshl_b32 s31, s31, 3",
                "s_add_u32 s30, s30, s31", "s_add_u32 s30, s30, 0x21000", "v_add_u32 v19, s30, v2"], "ds_write_b64 v19, v[44:45]",
               "v_add_u32 v18, 0x20000, v2"]
        return it
    def opath2(self):
        rd = [["s_waitcnt lgkmcnt(0)", "s_barrier"]] + [f"ds_read_b128 v[{40+i*4}:{43+i*4}], v18 offset:{i*1024}" for i in range(6)]
        den = lambda t: self.q(8 + 2 * (t // 4) + 1, t % 4)
        mm = ["s_waitcnt lgkmcnt(0)"]
        for t in range(8):
            pq = self.q(8 + 2 * (t // 4), t % 4); zf = 56 + (t // 4) * 4
            mm.append(f"v_mfma_f32_16x16x32_bf16 v[{den(t)}:{den(t)+3}], v[{zf}:{zf+3}], v[{pq}:{pq+3}], 0")
        side = [f"v_add_f32 v{den(t)}, s88, v{den(t)}" for t in range(8)] + [f"v_rcp_f32 v{den(t)}, v{den(t)}" for t in range(8)]
        side += [f"v_mov_b32 v{den(t)+1}, v{den(t)}" for t in range(8)]
        for t in range(8):
            pq = self.q(8 + 2 * (t // 4), t % 4); d = 64 + t * 8
            for eb in range(2):
                kf = 40 + ((t // 4) * 2 + eb) * 4
                mm.append(f"v_mfma_f32_16x16x32_bf16 v[{d+eb*4}:{d+eb*4+3}], v[{kf}:{kf+3}], v[{pq}:{pq+3}], 0")
                if t > 0:
                    for _ in range(2):
                        if side: mm.append(side.pop(0))
        mm += side
        fin = []
        for t in range(8):
            d = 64 + t * 8
            fin += [f"v_pk_mul_f32 v[{d+i}:{d+i+1}], v[{d+i}:{d+i+1}], v[{den(t)}:{den(t)+1}]" for i in range(0, 8, 2)]
            fin += [f"v_cvt_pk_bf16_f32 v{d+i}, v{d+2*i}, v{d+2*i+1}" for i in range(4)]
            if ODEF: self.k2.ostores.append(self.store_act(d, t % 4, 85, t // 4, F_HST))
            else: fin.append(self.store_act(d, t % 4, 85, t // 4, F_HST))
        return rd, mm, fin
    def body(self, k2):
        A = self.A; t = self.typ; self.k2 = k2
        def issue(L):
            for pre, ins in L:
                if pre: A(pre)
                A(ins)
        if FAST: self.fast_start()
        else:
            A("s_lshl_b32 s30, s26, 5\nv_mov_b32 v30, s30")
            if NSY:
                l = newlab("m")
                A(f"s_or_b32 s30, s25, s27\ns_xor_b32 s31, s24, 3\ns_or_b32 s30, s30, s31\ns_cmp_lg_u32 s30, 0\ns_cbranch_scc1 {l}")
                emit_sync(A, ["s_waitcnt vmcnt(4)", "v_mov_b32 v25, 1", "s_mov_b64 exec, 1", f"global_store_dword v30, v25, s[20:21] {SC}", "s_mov_b64 exec, -1", f"{l}:"])
            if int(opt("wpf", "0")):
                A("s_lshl_b32 s30, s26, 4\ns_lshl_b32 s31, s24, 2\ns_add_u32 s31, s31, s30\ns_add_u32 s31, s31, 64\nv_add_u32 v24, s31, v1")
                A("v_mul_u32_u24 v25, 6144, v24\nv_mul_u32_u24 v24, 7168, v24")
                if t == "KV":
                    A("s_and_b32 s31, s24, 1\ns_lshl_b32 s31, s31, 3\ns_add_u32 s31, s31, s30\ns_add_u32 s31, s31, 64\nv_add_u32 v26, s31, v1\nv_mul_u32_u24 v26, 7168, v26")
                    A("s_mov_b64 exec, 0xff")
                    A(f"buffer_load_dword v124, v26, s[48:51], 0 offen {F_W1P}")
                A("s_mov_b64 exec, 15")
                for grp in range(5 if t == "Q" else 4):
                    q = (grp == 2) if t == "Q" else (grp < 2)
                    A(f"buffer_load_dword v124, v{25 if q else 24}, s[{32+4*grp}:{35+4*grp}], 0 offen {F_W1P}")
                A("s_mov_b64 exec, -1")
            issue(self.wloads(0, F_W1P))
            for a in self.adv()[:4]: A(a)
            if W1E:
                issue(self.wloads(1, F_W1P))
                for a in self.adv()[:4]: A(a)
            A("s_waitcnt vmcnt(10)")
            stamp(A, 1)
            inj = Inject(A, self.wloads(1, F_W1P)[:W1J], 10, skip=int(opt("w1s", "110")))
            ln_part(inj)
            assert not inj.L
            if NSY: A("global_load_dword v29, v30, s[20:21] sc1")
            for j in range(4):
                A(f"ds_write_b128 v22, v[{64+4*j}:{67+4*j}] offset:{24576 + (j%2)*4096 + (j//2)*32768}")
            A("s_waitcnt lgkmcnt(0)\ns_barrier")
            for j in range(4):
                A(f"ds_read_b128 v[{64+4*j}:{67+4*j}], v21 offset:{24576 + j*1024}")
            for j in range(4):
                A(f"s_waitcnt lgkmcnt({3-j})")
                A(f"global_store_dwordx4 v23, v[{64+4*j}:{67+4*j}], s[22:23] {SC}")
                if j < 3: A("v_add_u32 v23, 0x2000, v23")
            stamp(A, 2)
            zero = []
            for (nb, mb), (f, r) in self.acc.items():
                for i in range(4):
                    zero.append(f"v_accvgpr_write_b32 a{r+i}, 0" if f == "a" else f"v_mov_b32 v{r+i}, 0")
            zero.reverse()
            A("@tag xns")
            w2 = self.wloads(2, F_W1P)
            rest = self.wloads(1, F_W1P)[W1J:] + [("\n".join(self.adv()[:4] + [w2[0][0]]), w2[0][1])] + w2[1:]
            W1K = int(opt("w1k", "6"))
            inj = Inject(A, rest[:W1K], 6)
            for z in zero[:64]: inj(z)
            assert not inj.L
            A("@wv xns\ns_barrier")
            if NSY:
                l = newlab("a")
                emit_sync(A, ["s_cmp_lg_u32 s24, 0", f"s_cbranch_scc1 {l}"] + spin(30, 20, 1, 29, True) +
                          ["s_lshl_b32 s30, s27, 3", "s_add_u32 s30, s30, s25", "s_lshl_b64 exec, 1, s30", "v_mov_b32 v25, 1",
                           f"global_store_dword v31, v25, s[22:23] {SC}", "s_mov_b64 exec, -1", f"{l}:"])
            else:
                emit_sync(A, signal(30, 20, 25))
            stamp(A, 3)
            inj = Inject(A, rest[W1K:], 8)
            for z in zero[64:]: inj(z)
            assert not inj.L
            for a in self.adv()[:4]: A(a)
            l = newlab("w")
            A(f"s_cmp_lg_u32 s24, 0\ns_cbranch_scc1 {l}")
            if NSY:
                p, d = newlab("p"), newlab("d")
                emit_sync(A, [f"s_mov_b32 s31, {SPIN}", f"{p}:", "global_load_dword v25, v31, s[22:23] sc1", "s_waitcnt vmcnt(0)",
                              "v_cmp_ne_u32 vcc, 1, v25", "s_cmp_eq_u64 vcc, 0", f"s_cbranch_scc1 {d}", f"s_sleep {opt('nsl', '2')}",
                              "s_sub_u32 s31, s31, 1", "s_cmp_lg_u32 s31, 0", f"s_cbranch_scc1 {p}", f"{d}:"])
            else:
                A("s_waitcnt vmcnt(0)")
                emit_sync(A, spin(30, 20, 32, 25, sleep=4))
            A(f"{l}:")
            A("s_barrier")
            stamp(A, 4)
            issue(self.xloads(0))
            A("s_add_u32 s76, s76, 8192")
            issue(self.xloads(1))
            A("s_add_u32 s76, s76, 8192")
            A("s_waitcnt vmcnt(8)")
            stamp(A, 5)
            for u in range(2):
                for r in self.reads(u, u, 0): A(r)
            A("s_mov_b32 s80, 3")
            if CPF:
                l = newlab("c")
                A(f"s_getpc_b64 s[10:11]\n{l}:\ns_sub_u32 s10, s10, {l}-{NAME}_kernel\ns_subb_u32 s11, s11, 0")
                A("s_lshr_b32 s30, s2, 3\ns_lshl_b32 s30, s30, 2\ns_add_u32 s30, s30, s24\ns_lshl_b32 s30, s30, 10")
                A(f"s_min_u32 s30, s30, L_end-{NAME}_kernel-1024\nv_add_u32 v28, s30, v2")
            A("s_waitcnt lgkmcnt(4)")
        A.raw(".p2align 6")
        A(f"L1{t}_loop:")
        pw2 = ["buffer_load_dwordx4 v[20:23], v2, s[64:67], s81 offen", "s_add_u32 s81, s81, 0x100000"]
        pwo = ["buffer_load_dwordx4 v[20:23], v2, s[68:71], s82 offen", "s_add_u32 s82, s82, 0x100000"]
        px = ["buffer_load_dwordx4 v[24:27], v2, s[96:99], s94 offen", "s_add_u32 s94, s94, 0x100000"]
        pfs = [[pw2], [pw2], [pw2], [pwo]]
        if opt("nopf"): pfs = [[], [], [], []]
        if CPF: pfs[1].append(["global_load_dwordx4 v[28:31], v31, s[100:101]" if False else "global_load_dwordx4 v[24:27], v28, s[10:11]"])
        for s in range(4):
            n = (s + 1) % 4
            if s == 1: A(f"L1{t}_s1:")
            self.stage(s, [(0, n), (1, n)], 18 + len(pfs[s]), pf=pfs[s])
        A(f"s_sub_u32 s80, s80, 1\ns_cmp_lg_u32 s80, 0\ns_cbranch_scc1 L1{t}_loop")
        stamp(A, 6)
        self.stage(0, self.tail_units()[:2], 18, lastld=True)
        stamp(A, 7)
        self.tail(self.batches_kv() if t == "KV" else self.batches_q())
        stamp(A, 8)
        last = [["global_load_dword v29, v30, s[22:23] offset:1024 sc1", "@tag h2s"]] + self.last
        if t == "Q":
            n = len(last); rd, mm, fin = self.opath2()
            a, b, c = int(n * float(opt("oa", "0.05"))), int(n * float(opt("ob", "0.2"))), int(n * float(opt("oc", "0.35")))
            st = lambda i: [["s_memtime s[100:101]", "s_waitcnt lgkmcnt(0)", f"v_writelane_b32 v0, s100, {i}"]] if (STAMPS and opt("ost")) else []
            o1 = self.opath1()
            last = (merge(last[:a], self.lastld, 0, 0.6) + st(26) + o1[:1] + st(27) + o1[1:] + st(28) + last[a:b] + rd + st(29) + last[b:c] + mm + st(30) +
                    merge(last[c:], fin))
        for x in last: emit_group(A, x)
        stamp(A, 9)
        k2.setup()
        A(f"s_mov_b32 s51, {int(t == 'Q')}")
        for z in k2.zero(): A(z)
        stamp(A, 11)
        k2.pre()
        A("s_branch L2_start")

class K2:
    def __init__(self, A): self.A = A; self.ostores = []
    def issue(self, L):
        for pre, ins in L:
            if pre: self.A(pre)
            self.A(ins)
    def xfrag(self, slot, k, mb): return slot * 32 + (k * 2 + mb) * 4
    def reads(self, ring, nb, slot, kp):
        out = []
        for k2 in range(2):
            for h in range(2):
                r = 32 + ring * 8 + k2 * 4 + 2 * h
                imm = (slot & 1) * 32768 + (nb >> 2) * 16384 + (kp * 2 + k2) * 4096 + h * 2048
                out.append(f"ds_read_b64_tr_b16 v[{r}:{r+1}], v{4 + (slot >> 1) * 4 + (nb & 3)} offset:{imm}")
        return out
    def mfmas(self, ring, nb, slot, kp, accb):
        out = []
        for mb in range(2):
            for k2 in range(2):
                w = 32 + ring * 8 + k2 * 4; x = self.xfrag(slot, kp * 2 + k2, mb); a = accb + (nb * 2 + mb) * 4
                out.append(f"v_mfma_f32_16x16x32_bf16 v[{a}:{a+3}], v[{w}:{w+3}], a[{x}:{x+3}], v[{a}:{a+3}]")
        return out
    def wloads(self, slot, so=72, ngrp=2):
        L = []
        for j in range(4):
            for grp in range(ngrp):
                d = (32, 44)[grp]
                L.append((f"s_add_u32 m0, s78, {slot*32768 + grp*16384 + j*1024}",
                          f"buffer_load_dwordx4 v28, s[{d}:{d+3}], s{(72, 96, 97, 98)[j]} offen lds"))
        return L
    def xloads(self, slot, va=None):
        L = []
        for k in range(4):
            for mb in range(2):
                r = self.xfrag(slot, k, mb)
                L.append((None, f"buffer_load_dwordx4 a[{r}:{r+3}], v2, s[36:39], s{73 if k < 2 else 76} offen offset:{((k&1)*2+mb)*1024} {F_H}"))
        return L
    def loads(self, slot, ngrp):
        d, x = self.wloads(slot, ngrp=ngrp), self.xloads(slot)
        if opt("hk2") == "halfx": x = [(p, i if n % 2 else i.replace("s[36:39]", "s[64:67]")) for n, (p, i) in enumerate(x)]
        if opt("hk2") == "nox": x = [(p, i.replace("s[36:39]", "s[64:67]")) for n, (p, i) in enumerate(x)]
        if ngrp == 2 and opt("k2c") == "wx": return d + x
        if ngrp == 2 and opt("k2c") == "xw": return x + d
        if ngrp == 2: return [y for p in zip(d, x) for y in p]
        return [y for i in range(4) for y in (d[i], x[2*i], x[2*i+1])]
    ORDER = [0, 4, 1, 5, 8, 12, 2, 6, 3, 7, 9, 13, 10, 11]
    def advx(self):
        if opt("hk2") == "xl2": return ["s_xor_b32 s73, s73, 8192", "s_xor_b32 s76, s76, 8192"]
        return ["s_add_u32 s73, s73, 8192", "s_add_u32 s76, s76, 8192"]
    def woff(self): return [f"s_add_u32 s{95+j}, s72, {j*16384}" for j in (1, 2, 3)]
    def advw(self, perm=True):
        if perm: return ["s_lshr_b64 s[48:49], s[48:49], 4", "s_and_b32 s72, s48, 15", "s_lshl_b32 s72, s72, 16", "s_add_u32 s72, s72, s75"] + self.woff()
        return [f"s_add_u32 s72, s72, {128*2048}"] + self.woff()
    def adv(self, perm=True): return self.advx() + self.advw(perm)
    def setup_early(self):
        class Rec(list):
            def __call__(self, t): self.extend(t.split("\n"))
        it = ["v_lshrrev_b32 v29, 4, v1", "v_bfe_u32 v28, v1, 1, 2", "v_xor_b32 v28, v28, v29", "v_lshlrev_b32 v28, 5, v28",
              "v_and_b32 v29, 1, v1", "v_lshl_add_u32 v28, v29, 4, v28", "v_lshrrev_b32 v29, 3, v1", "v_lshl_add_u32 v28, v29, 11, v28"]
        def grp(f):
            r = Rec(); f(r); it.append(list(r))
        grp(lambda A: A("s_lshl_b32 s78, s24, 12\ns_and_b32 s79, s94, 0x7ff"))
        grp(lambda A: (A(f"s_sub_u32 s31, {3584*2048}, s79"), srd(A, 32, 16, "s79", "s31")))
        grp(lambda A: (A(f"s_xor_b32 s30, s79, 128\ns_sub_u32 s31, {3584*2048}, s30"), srd(A, 44, 16, "s30", "s31")))
        grp(lambda A: (A("s_lshr_b32 s30, s95, 3\ns_lshl_b32 s30, s30, 2\ns_add_u32 s30, s30, s24"),
                       A(f"s_mul_i32 s30, s30, {144*2048}\ns_add_u32 s30, s30, {ACT_OFF}"), srd(A, 36, 22, "s30", 144 * 2048)))
        grp(lambda A: (A(f"s_lshl_b32 s30, s95, 16\ns_lshl_b32 s31, s24, 14\ns_add_u32 s30, s30, s31\ns_add_u32 s30, s30, {P_OFF}"),
                       srd(A, 40, 22, "s30", 16384)))
        grp(lambda A: A("s_lshl_b32 s74, s91, 13\ns_xor_b32 s77, s74, 8192"))
        tab = sum(c << (4 * i) for i, c in enumerate(self.ORDER))
        grp(lambda A: A(f"s_mov_b32 s48, {tab & 0xffffffff:#x}\ns_mov_b32 s49, {tab >> 32:#x}"))
        grp(lambda A: A(f"s_lshl_b32 s75, s91, 2\ns_add_u32 s75, s75, s24\ns_mul_i32 s75, s75, {14*32*2048}\ns_mov_b32 s72, s75"))
        grp(lambda A: A(f"s_mul_i32 s73, s91, {14*8192}\ns_add_u32 s76, s73, 4096\ns_mov_b32 s80, 3\ns_mov_b32 s50, 32"))
        it.append(self.woff())
        it.append("v_mov_b32 v30, s92")
        if opt("hk2"): it.append("s_mov_b32 s66, 0")
        return it
    def l2pf(self):
        if not int(opt("l2w", "0")): return []
        it = [["s_bitcmp1_b32 s26, 0", "s_cselect_b32 s64, s44, s32", "s_cselect_b32 s65, s45, s33", "s_cselect_b32 s66, s46, s34"],
              ["s_lshr_b32 s81, s26, 1", "s_lshl_b32 s81, s81, 14", "s_add_u32 s81, s81, s75"]]
        n = int(opt("l2n", "14"))
        for c in reversed(self.ORDER[2:n]):
            it.append([f"s_add_u32 s82, s81, {c << 16}", "buffer_load_dwordx4 a[144:147], v28, s[64:67], s82 offen"])
        return it
    def wfirst(self):
        g = lambda LL: [[pre, "s_nop 0", ins] for pre, ins in LL]
        return g(self.wloads(0)) + [self.advw()] + g(self.wloads(1)) + [self.advw()]
    def xfirst(self):
        return [i for _, i in self.xloads(0)] + ["@tag k20", self.advx()] + [i for _, i in self.xloads(1)] + [self.advx()]
    def setup(self):
        A = self.A
        A("v_lshrrev_b32 v12, 2, v1\nv_bfe_u32 v13, v1, 3, 2\nv_and_b32 v14, 3, v1")
        for nb in range(4):
            A(f"v_xor_b32 v15, {nb}, v13\nv_lshlrev_b32 v15, 5, v15\nv_lshl_add_u32 v15, v12, 7, v15")
            A(f"v_lshl_add_u32 v{4+nb}, v14, 3, v15\nv_add_u32 v{8+nb}, 0x10000, v{4+nb}")
    @staticmethod
    def xaddr(a, b):
        return [f"v_and_b32 v{a}, 15, v1", f"v_lshlrev_b32 v{a}, 11, v{a}", f"v_bfe_u32 v{b}, v1, 4, 1", f"v_lshl_add_u32 v{a}, v{b}, 5, v{a}",
                f"v_lshrrev_b32 v{b}, 5, v1", f"v_lshl_add_u32 v{a}, v{b}, 4, v{a}", f"v_add_u32 v{a}, s94, v{a}", f"v_add_u32 v{b}, {16*2048}, v{a}"]
    @staticmethod
    def xres(a, b):
        it = []
        for mb in range(2):
            for p in range(2):
                r = 128 + (p * 2 + mb) * 4
                it.append(f"global_load_dwordx4 a[{r}:{r+3}], v{(a, b)[mb]}, s[4:5] offset:{p*64} {F_X0}")
        return it
    def zero(self):
        return [f"v_mov_b64 v[{i}:{i+1}], 0" for i in range(192, 256, 2)]
    def run(self, units, nxt, accb, ld, bar, batches=()):
        n = len(units); al = list(units) + list(nxt)
        mf, fill = [], [[] for _ in range(4 * n)]
        for u in range(n):
            if u in bar:
                fill[4 * u - 1] += [bar[u], "s_barrier"]
            if u + 3 < len(al):
                rd = self.reads((u + 3) % 4, *al[u + 3])
                if opt("hack"):
                    for i in (0, 2): fill[4 * u + i].append(rd[i])
                else:
                    for i in range(4): fill[4 * u + i].append(rd[i])
            rem = min(len(al), u + 4) - (u + 2)
            if opt("hack"):
                if u % 2 == 1: fill[4 * u + 3].append("s_waitcnt lgkmcnt(4)")
            elif u + 1 < len(al): fill[4 * u + 3].append(f"s_waitcnt lgkmcnt({4 * max(rem, 0)})")
            mf += self.mfmas(u % 4, *units[u], accb)
        for slot, ngrp, post, *pos in ([ld] if isinstance(ld, tuple) else (ld or [])):
            L = self.loads(slot, ngrp)
            p0, span = pos if pos else (0, 4 * n - 4 if n == 8 else 48)
            for i, (pre, ins) in enumerate(L):
                p = p0 + i * span // len(L)
                if pre: fill[p].append(pre)
                fill[p + 1].append(ins)
            fill[p + 1].append(f"@tag ld{slot}")
            a = self.adv(ngrp == 2)
            for i in range(0, len(a), 2): fill[min(p + 2 + i // 2, 4 * n - 1)] += a[i:i+2]
            assert not post
        emit_stream(self.A, mf, fill, list(batches))
    def pre(self):
        A = self.A
        A("v_mov_b32 v24, s92\nv_add_u32 v26, 256, v24\nv_add_u32 v27, 512, v24")
        A("@wv h2s")
        emit_sync(A, spin(30, 22, 16, 29, True, sleep=4, off=1024))
        A("s_barrier")
    def sunits(self, slot, order=range(8)): return [(nb, slot, kp) for nb in order for kp in range(2)]
    def body(self):
        A = self.A
        A("L2_start:")
        stamp(A, 12)
        for u in range(3):
            for r in self.reads(u, *self.sunits(0)[u]): A(r)
        A("s_waitcnt lgkmcnt(8)")
        A.raw(".p2align 6")
        A("L2_loop:")
        for s in range(4):
            bt = [(56, 57, ["global_load_dword v25, v26, s[22:23] sc1"])] if s == 2 else []
            if s == 0:
                l = newlab("g")
                bt = [(52, 53, [Unc(["s_lshl_b32 s30, s24, 2", "s_add_u32 s30, s30, s80", "s_cmp_lg_u32 s30, 3", f"s_cbranch_scc1 {l}",
                                     "v_mov_b32 v25, 1", "s_mov_b64 exec, 1", "global_atomic_add v26, v25, s[22:23] sc1",
                                     "s_cmp_lt_u32 s25, 4", f"s_cbranch_scc1 {l}x",
                                     "global_atomic_add v27, v25, s[22:23] sc1", f"{l}x:", "s_mov_b64 exec, -1", f"{l}:"])]),
                      (56, 57, ["global_load_dword v29, v30, s[22:23] offset:768 sc1"])]
            if s == 1: bt = [(62, 63, [Unc(spin(30, 22, 16, 29, True, sleep=2, off=768))])]
            if ODEF:
                if s == 0:
                    l = newlab("g")
                    bt[0] = (52, 53, [Unc(["s_cmp_lg_u32 s24, 0", f"s_cbranch_scc1 {l}", "s_lshr_b32 s30, s25, 2", "s_add_u32 s30, s30, s80",
                                           "s_cmp_lt_u32 s30, 3", f"s_cbranch_scc1 {l}",
                                           "v_mov_b32 v25, 1", "s_mov_b64 exec, 1", "global_atomic_add v26, v25, s[22:23] sc1",
                                           "s_mov_b64 exec, -1", f"{l}:"])])
                for j, p in enumerate((54, 59)):
                    l = newlab("o")
                    bt.append((p, p + 1, [Unc(["s_cmp_eq_u32 s51, 0", f"s_cbranch_scc1 {l}", self.ostores[2 * s + j], f"{l}:"])]))
                bt.sort(key=lambda b: b[0])
            span = int(opt("k2span", "48"))
            nb4 = sum(1 for i in range(16) if i * span // 16 + 1 < 51)
            self.run(self.sunits(s), self.sunits((s + 1) % 4)[:3], 192, ((s + 2) % 4, 2, [], 0, span), {13: f"s_waitcnt vmcnt({nb4})"}, bt)
        if STAMPS and not opt("ost"): A("s_memrealtime s[100:101]\ns_waitcnt lgkmcnt(0)\ns_sub_u32 m0, 29, s80\ns_nop 1\nv_writelane_b32 v0, s100, m0")
        emit_sync(A, spin(26, 22, "s50", 25, True))
        if STAMPS and not opt("ost"): A("s_memrealtime s[100:101]\ns_waitcnt lgkmcnt(0)\ns_sub_u32 m0, 32, s80\ns_nop 1\nv_writelane_b32 v0, s100, m0")
        A("v_mov_b32 v26, v27\ns_mov_b32 s51, 0\ns_cmp_eq_u32 s80, 3\ns_cselect_b32 s50, 0, 16")
        A("s_sub_u32 s80, s80, 1\ns_cmp_lg_u32 s80, 0\ns_cbranch_scc1 L2_loop")
        stamp(A, 13)
        A("@tag k2l")
        A(f"s_add_u32 s32, s8, s79\ns_addc_u32 s33, s9, 0\ns_sub_u32 s34, {1024*2048}, s79\ns_lshl_b32 s72, s24, 16")
        def gpart(q):
            o, p = 192 + q * 4, 128 + q * 4
            if P16:
                it = [f"@wv P{q//2}"] if q % 2 == 0 else []
                pp = 128 + q * 2
                it += [f"v_lshlrev_b32 v20, 16, v{pp}", f"v_and_b32 v21, s3, v{pp}", f"v_lshlrev_b32 v22, 16, v{pp+1}", f"v_and_b32 v23, s3, v{pp+1}"]
                it += [f"v_add_f32 v{o+i}, v{o+i}, v{20+i}" for i in range(4)]
            else:
                it = [f"@wv P{q}"]
                it += [f"v_add_f32 v{o+i}, v{o+i}, v{p+i}" for i in range(4)]
            it += [f"v_mul_f32 v{20+i}, s87, v{o+i}" for i in range(4)]
            it += [f"v_exp_f32 v{20+i}, v{20+i}" for i in range(4)]
            it += [f"v_add_f32 v{20+i}, 1.0, v{20+i}" for i in range(4)]
            it += [f"v_rcp_f32 v{20+i}, v{20+i}" for i in range(4)]
            it += [f"v_mul_f32 v{o+i}, v{o+i}, v{20+i}" for i in range(4)]
            return it
        def xpart(p, mb):
            r = 128 + (p * 2 + mb) * 4
            q0, q1 = 96 + ((2 * p) * 2 + mb) * 4, 96 + ((2 * p + 1) * 2 + mb) * 4
            it = [f"v_accvgpr_read_b32 v{12+i}, a{r+i}" for i in range(4)]
            it += ["v_permlane16_swap_b32 v12, v14", "v_permlane16_swap_b32 v13, v15"]
            for q, s in ((q0, 12), (q1, 14)):
                it += [f"v_lshlrev_b32 v{q}, 16, v{s}", f"v_and_b32 v{q+1}, s3, v{s}", f"v_lshlrev_b32 v{q+2}, 16, v{s+1}", f"v_and_b32 v{q+3}, s3, v{s+1}"]
            return it
        def fin(p, mb):
            it = []
            qs = [(2 * p) * 2 + mb, (2 * p + 1) * 2 + mb]
            for q in qs:
                it += [f"v_fmac_f32 v{96+q*4+i}, v{64+q*4+i}, v{192+q*4+i}" for i in range(4)]
            d = 192 + qs[0] * 4
            for j, q in enumerate(qs):
                it += [f"v_cvt_pk_bf16_f32 v{d+2*j}, v{96+q*4}, v{97+q*4}", f"v_cvt_pk_bf16_f32 v{d+2*j+1}, v{98+q*4}, v{99+q*4}"]
            it += [f"v_permlane16_swap_b32 v{d}, v{d+2}", f"v_permlane16_swap_b32 v{d+1}, v{d+3}",
                   f"global_store_dwordx4 v{16+mb}, v[{d}:{d+3}], s[18:19] offset:{p*64} {opt('out')}"]
            return it
        l = newlab("f")
        flag = Unc(["s_cmp_lg_u32 s24, 0", f"s_cbranch_scc1 {l}", "v_mov_b32 v25, 1", "s_mov_b64 exec, 1",
                    f"global_store_dword v27, v25, s[22:23] {SC}", "s_mov_b64 exec, -1", f"{l}:"])
        un = self.sunits(0, [0, 1, 4, 5, 6, 7]) + self.sunits(1, [4, 5, 6, 7]) + self.sunits(0, [2, 3]) + self.sunits(1, [0, 1, 2, 3])
        WL = [65536, 81920, 98304, 114688, 131072, 147456, 0, 16384]
        XR = [64, 96, 144, 176, 208, 0, 32, 64]
        def sreads(ring, t, nb, kp):
            out = []
            base = WL[t]; v = (4, 8, 160)[base >> 16] + nb
            for k2 in range(2):
                for h in range(2):
                    r = 32 + ring * 8 + k2 * 4 + 2 * h
                    out.append(f"ds_read_b64_tr_b16 v[{r}:{r+1}], v{v} offset:{(base & 0xffff) + (kp * 2 + k2) * 4096 + h * 2048}")
            return out
        def smf(ring, t, nb, kp):
            out = []
            for mb in range(2):
                for k2 in range(2):
                    w = 32 + ring * 8 + k2 * 4; x = XR[t] + ((kp * 2 + k2) * 2 + mb) * 4; a = 64 + (nb * 2 + mb) * 4
                    out.append(f"v_mfma_f32_16x16x32_bf16 v[{a}:{a+3}], v[{w}:{w+3}], a[{x}:{x+3}], v[{a}:{a+3}]")
            return out
        sun = [(t, nb, kp) for t in range(8) for nb in range(4) for kp in range(2)]
        N = 96
        rdu = lambda u: self.reads(u % 4, *un[u]) if u < 32 else sreads(u % 4, *sun[u - 32])
        mfu = lambda u: self.mfmas(u % 4, *un[u], 192) if u < 32 else smf(u % 4, *sun[u - 32])
        mf, fill = [], [[] for _ in range(4 * N)]
        bars = {9: "@wv k2l", 29: "@wv W1", 45: "@wv W3", 61: "@wv W5", 77: "@wv W7", int(opt("fb", "37")): "@wv ps"}
        for u in range(N):
            if u in bars: fill[4 * u - 1] += [bars[u], "s_barrier"] + ([flag] if bars[u] == "@wv ps" else [])
            if u >= 32 and u % 8 == 0: fill[4 * u - 1].append(f"@wv X{(u - 32) // 8}")
            if u + 3 < N:
                for i, r in enumerate(rdu(u + 3)): fill[4 * u + i].append(r)
            if u + 1 < N: fill[4 * u + 3].append(f"s_waitcnt lgkmcnt({4 * max(min(N, u + 4) - (u + 2), 0)})")
            mf += mfu(u)
        def pairbase(t): return [f"s_add_u32 s98, s75, {t//2}", "s_and_b32 s98, s98, 3", "s_lshl_b32 s97, s98, 19", "s_add_u32 s97, s97, s72",
                                 "s_lshl_b32 s98, s98, 14"]
        def wl(t): return [((pairbase(t) if (j == 0 and t % 2 == 0) else []) +
                            [f"s_add_u32 m0, s78, {WL[t] + j*1024}", f"s_add_u32 s96, s97, {(t%2)*128*2048 + j*16384}"],
                            ["buffer_load_dwordx4 v28, s[32:35], s96 offen lds"] + ([f"@tag W{t}"] if j == 3 else [])) for j in range(4)]
        def xl(t): return [([f"s_add_u32 s73, s98, {112*2048 + (t%2)*8192 + (i//4)*4096}"] if i % 4 == 0 else [],
                            [f"buffer_load_dwordx4 a[{XR[t]+i*4}:{XR[t]+i*4+3}], v2, s[36:39], s73 offen offset:{(i%4)*1024} {F_H}"] +
                            ([f"@tag X{t}"] if i == 7 else [])) for i in range(8)]
        A("s_add_u32 s75, s26, s27" if int(opt("srot", "0")) else "s_mov_b32 s75, 0")
        L = []
        for t in range(0, 8, 2): L += wl(t) + wl(t + 1) + xl(t) + xl(t + 1)
        r1, r2 = float(opt("r1", "3.6")), float(opt("r2", "3.0"))
        p = 1.0; pos = []
        for pre, ins in L:
            q = int(p); pos.append(q)
            fill[q - 1] += pre; fill[q] += ins
            p += r1 if p < 128 else r2
        assert pos[24] > 36 and pos[72] > 116 and pos[64] > 96 and pos[80] > 128 and pos[88] > 160
        for t in range(8):
            assert pos[(t // 2) * 24 + 8 + (t % 2) * 8 + 7] < 128 + 32 * t - 1
        for i, b in enumerate((29, 45, 61, 77)): assert pos[i * 24 + 7] < 4 * b - 1
        misc = (["v_mov_b32 v27, s93", "v_xor_b32 v26, 128, v27", "s_mov_b32 s3, 0xffff0000"] + self.xaddr(16, 17) +
                [f"v_add_u32 v{160+i}, 0x20000, v{4+i}" for i in range(4)] + [f"v_mov_b32 v{i}, 0" for i in range(64, 96)])
        bt = [(0, 60, misc)]
        for j in range(4):
            a = 224 + j * 8
            it = [f"v_cvt_pk_bf16_f32 v{a+i}, v{a+2*i}, v{a+2*i+1}" for i in range(4)]
            it.append([f"buffer_store_dwordx4 v[{a}:{a+3}], v2, s[40:43], s74 offen offset:{j*1024} {SC}"] + (["@tag ps"] if j == 3 else []))
            bt.append((62 + 8 * j, 62 + 8 * j + 6, it))
        pc = int(opt("pc", "224"))
        sd, gd = int(opt("sd", "32")), int(opt("gd", "36"))
        bt.append((pc - sd, pc - sd + 1, [["global_load_dword v25, v26, s[22:23] sc1", "@tag pp"]]))
        bt.append((pc - sd + 2, pc - 1, xpart(0, 0) + xpart(0, 1)))
        it = ["@wv pp", Unc(spin(26, 22, 1, 25, True))]
        for q in range(4):
            it.append([f"buffer_load_dwordx4 v[{128+q*4}:{131+q*4}], v2, s[40:43], s77 offen offset:{q*1024} sc1", f"@tag P{q}"])
        bt.append((pc, pc + 8, it))
        bt.append((pc + 9, pc + gd - 1, xpart(1, 0) + xpart(1, 1)))
        bt.append((pc + gd, 372, sum([gpart(q) for q in range(8)], [])))
        bt.append((374, 384, fin(0, 0) + fin(0, 1)))
        bt.append((390, 391, fin(1, 0) + fin(1, 1)))
        if STAMPS and not opt("tailst"):
            for t in range(9):
                fill[127 + 32 * t] += ["s_memtime s[100:101]" if opt("cyc") else "s_memrealtime s[100:101]", "s_waitcnt lgkmcnt(0)", f"v_writelane_b32 v0, s100, {17 + t}"]
        emit_stream(A, mf, fill, bt)
        if opt("padfrom"):
            A(f"s_waitcnt vmcnt(0)\nv_readlane_b32 s30, v0, {opt('padfrom')}\ns_add_u32 s30, s30, 10000")
            A("Lpad:\ns_memrealtime s[100:101]\ns_waitcnt lgkmcnt(0)\ns_sub_u32 s31, s100, s30\ns_cmp_lt_i32 s31, 0\ns_cbranch_scc1 Lpad")
        stamp_out(A, 15, "a")
        A("s_endpgm")

def kernel(A):
    name = NAME + "_kernel"
    A.raw(f".globl {name}\n.p2align 8\n.type {name},@function")
    A(f"{name}:")
    A("s_cmp_ge_u32 s2, 256\ns_cbranch_scc1 L_end")
    if STAMPS: A("s_memtime s[98:99]" if opt("cyc") else "s_memrealtime s[98:99]")
    if FAST: A("s_memrealtime s[96:97]")
    A("s_load_dwordx4 s[4:7], s[0:1], 0\ns_load_dwordx2 s[8:9], s[0:1], 16")
    A("s_load_dwordx4 s[12:15], s[0:1], 32\ns_load_dwordx4 s[16:19], s[0:1], 48\ns_load_dwordx4 s[20:23], s[0:1], 64")
    if ECPF:
        l = newlab("c")
        A(f"s_getpc_b64 s[10:11]\n{l}:\ns_sub_u32 s10, s10, {l}-{name}\ns_subb_u32 s11, s11, 0")
        A("s_lshr_b32 s30, s2, 3\ns_lshl_b32 s30, s30, 12\nv_lshl_add_u32 v28, v0, 4, s30")
        A(f"v_min_u32 v28, L_end-{name}-16, v28")
        A("global_load_dwordx4 v[120:123], v28, s[10:11]")
    A("v_and_b32 v1, 63, v0\nv_lshrrev_b32 v2, 6, v0\nv_readfirstlane_b32 s24, v2")
    A("s_and_b32 s25, s2, 7\ns_bfe_u32 s26, s2, 0x30003\ns_lshr_b32 s27, s2, 6\ns_and_b32 s29, s27, 1")
    A("s_and_b32 s28, s25, 3\ns_lshl_b32 s28, s28, 2\ns_add_u32 s28, s28, s27")
    A("s_lshl_b32 s30, s27, 3\ns_add_u32 s30, s30, s25\ns_lshl_b32 s30, s30, 3\ns_lshl_b32 s31, s26, 8\ns_add_u32 s30, s30, s31")
    A("v_lshrrev_b32 v21, 5, v0\nv_add_u32 v21, s30, v21\nv_and_b32 v22, 31, v0")
    A("v_lshlrev_b32 v20, 11, v21\nv_lshl_add_u32 v20, v22, 4, v20")
    A(f"v_lshlrev_b32 v31, 7, v22\ns_lshl_b32 s30, s26, 12\ns_add_u32 s30, s30, {XFL_OFF}\nv_add_u32 v31, s30, v31\nv_mov_b32 v24, 0")
    A("s_or_b32 s3, s25, s27\ns_xor_b32 s30, s24, 3\ns_or_b32 s3, s3, s30")
    A("s_waitcnt lgkmcnt(0)")
    if FAST:
        l = newlab("z")
        n = A.nvm
        A(f"s_cmp_lg_u32 s3, 0\ns_cbranch_scc1 {l}\ns_or_b32 s30, s96, 1\nv_mov_b32 v24, s30\ns_lshl_b32 s30, s26, 5\nv_mov_b32 v25, s30")
        A(f"s_mov_b64 exec, 1\nglobal_store_dword v25, v24, s[20:21] {SC}\ns_mov_b64 exec, -1\n{l}:")
        A.nvm = n
    elif NSY:
        l = newlab("z")
        A(f"s_cmp_lg_u32 s3, 0\ns_cbranch_scc1 {l}\nglobal_store_dword v31, v24, s[22:23] {SC}\n{l}:")
    for j in range(4):
        A(f"global_load_dwordx4 v[{64+4*j}:{67+4*j}], v20, s[4:5] offset:{512*j} {F_X0}")
    if FAST:
        A("s_lshl_b32 s30, s26, 2\ns_add_u32 s30, s30, s24\ns_lshl_b32 s30, s30, 6\nv_and_b32 v24, 15, v1\nv_add_u32 v24, s30, v24")
        A(f"v_lshlrev_b32 v125, 3, v24\nv_add_u32 v125, {STAT_OFF}, v125")
        A("v_lshlrev_b32 v24, 11, v24\nv_lshrrev_b32 v25, 4, v1\nv_lshl_add_u32 v127, v25, 4, v24")
        A(f"v_lshlrev_b32 v20, 3, v21\nv_add_u32 v20, {STAT_OFF}, v20")
    if opt("tlb"):
        A("v_lshlrev_b32 v29, 20, v1")
        A("global_load_dword v124, v29, s[22:23]")
        A("v_and_b32 v30, 3, v1\nv_lshlrev_b32 v30, 20, v30")
        A("global_load_dword v125, v30, s[18:19]")
        A("v_min_u32 v30, 6, v1\nv_lshlrev_b32 v30, 20, v30")
        A("global_load_dword v126, v30, s[16:17]\nglobal_load_dword v126, v30, s[12:13]\nglobal_load_dword v126, v30, s[14:15]")
        A("v_min_u32 v30, 5, v1\nv_lshlrev_b32 v30, 20, v30\nglobal_load_dword v126, v30, s[6:7]")
        A("v_min_u32 v30, 1, v1\nv_lshlrev_b32 v30, 20, v30\nglobal_load_dword v126, v30, s[8:9]")
    if STAMPS: A("v_writelane_b32 v0, s98, 0")
    A("v_lshlrev_b32 v2, 4, v1")
    A("v_lshrrev_b32 v24, 3, v1\ns_lshl_b32 s30, s24, 3\nv_add_u32 v24, s30, v24")
    A("v_bfe_u32 v25, v1, 4, 1\ns_and_b32 s30, s24, 1\ns_lshl_b32 s30, s30, 1\nv_or_b32 v25, s30, v25")
    A("v_bfe_u32 v26, v1, 1, 2\nv_xor_b32 v26, v26, v25\nv_lshlrev_b32 v26, 5, v26")
    A("v_and_b32 v27, 1, v1\nv_lshl_add_u32 v26, v27, 4, v26")
    A(f"v_mul_u32_u24 v{K1.VO6}, 6144, v24\nv_add_u32 v{K1.VO6}, v{K1.VO6}, v26")
    A(f"v_mul_u32_u24 v{K1.VO7}, 7168, v24\nv_add_u32 v{K1.VO7}, v{K1.VO7}, v26")
    A("v_lshrrev_b32 v24, 2, v1\ns_and_b32 s30, s24, 1\ns_lshl_b32 s30, s30, 4\nv_add_u32 v24, s30, v24")
    A("v_bfe_u32 v25, v1, 1, 1\nv_lshrrev_b32 v26, 5, v1\nv_xor_b32 v25, v25, v26\nv_lshlrev_b32 v25, 5, v25")
    A("v_lshl_add_u32 v25, v27, 4, v25")
    A(f"v_mul_u32_u24 v{K1.VOH}, 7168, v24\nv_add_u32 v{K1.VOH}, v{K1.VOH}, v25")
    A(f"v_add_u32 v{K1.VX1}, 4096, v2\nv_add_u32 v3, {144*2048}, v2")
    A(f"s_mov_b32 s72, 0\ns_mov_b32 s74, 0\ns_mov_b32 s73, {32*6144}\ns_mov_b32 s75, {32*7168}\ns_mov_b32 s76, 0")
    A("s_lshl_b32 s78, s24, 10")
    A("s_lshr_b32 s79, s24, 1\ns_lshl_b32 s79, s79, 12\ns_and_b32 s30, s24, 1\ns_lshl_b32 s30, s30, 10\ns_add_u32 s79, s79, s30")
    A("s_lshl_b32 s10, s26, 2\ns_add_u32 s10, s10, s24\ns_lshl_b32 s30, s10, 17")
    srd(A, 52, 22, "s30", 131072)
    A(f"s_mul_i32 s30, s10, {2*144*2048}\ns_add_u32 s30, s30, {ACT_OFF}")
    srd(A, 56, 22, "s30", 2 * 144 * 2048)
    A(f"s_mul_i32 s30, s28, {8*KVP_STRIDE}\ns_add_u32 s30, s30, {KVP_OFF}")
    srd(A, 60, 22, "s30", 8 * KVP_STRIDE)
    srd(A, 64, 16, 0, 3584 * 2048); srd(A, 68, 8, 0, 1024 * 2048)
    A("s_lshl_b32 s81, s2, 2\ns_add_u32 s81, s81, s24\ns_lshl_b32 s81, s81, 10\ns_mov_b32 s82, s81")
    A(f"s_mov_b32 s86, {LOG2E:#x}\ns_mov_b32 s87, {NLOG2E:#x}\ns_mov_b32 s88, {EPS6:#x}")
    A("s_lshl_b32 s89, s28, 4\ns_add_u32 s89, s89, 8")
    ob = [b for b in range(3) if b != RB]
    A(f"s_lshl_b32 s95, s26, 1\ns_bfe_u32 s30, s25, {0x10000 + ob[0]:#x}\ns_add_u32 s95, s95, s30\ns_lshl_b32 s95, s95, 3")
    A(f"s_bfe_u32 s30, s25, {0x10000 + ob[1]:#x}\ns_lshl_b32 s30, s30, 2\ns_add_u32 s95, s95, s30\ns_add_u32 s95, s95, s27")
    A(f"s_bfe_u32 s91, s25, {0x10000 + RB:#x}")
    if RINV: A("s_xor_b32 s91, s91, 1")
    A("s_lshr_b32 s94, s95, 3\ns_lshl_b32 s94, s94, 2\ns_add_u32 s94, s94, s24\ns_lshl_b32 s94, s94, 16")
    A("s_and_b32 s30, s95, 7\ns_lshl_b32 s30, s30, 8\ns_add_u32 s94, s94, s30\ns_lshl_b32 s31, s91, 7\ns_add_u32 s94, s94, s31")
    A(f"s_lshl_b32 s92, s26, 11\ns_add_u32 s92, s92, {FLAG_OFF}")
    A(f"s_lshl_b32 s93, s95, 8\ns_add_u32 s93, s93, {FLAG_OFF + 16384}\ns_add_u32 s93, s93, s31")
    l = newlab("z")
    A(f"s_cmp_lg_u32 s24, 0\ns_cbranch_scc1 {l}")
    A("v_mov_b32 v24, 0\nv_lshl_add_u32 v25, v1, 8, s92\nv_subrev_u32 v25, 256, v25\nv_mov_b32 v26, s93")
    A("v_cmp_eq_u32 vcc, 0, v1\nv_cndmask_b32 v25, v25, v26, vcc")
    A("s_or_b32 s30, s25, s27\ns_cmp_eq_u32 s30, 0\ns_cselect_b32 s30, 63, 1\ns_mov_b32 s31, 0\ns_mov_b64 exec, s[30:31]")
    A(f"global_store_dword v25, v24, s[22:23] {SC}")
    A("s_mov_b64 exec, -1")
    A(f"{l}:")
    A("v_xor_b32 v24, v21, v22\nv_and_b32 v24, 7, v24\nv_lshlrev_b32 v24, 4, v24\nv_lshl_add_u32 v22, v22, 7, v24")
    A("v_readfirstlane_b32 s30, v21")
    A("s_lshr_b32 s31, s30, 6\ns_lshl_b32 s31, s31, 17\ns_bfe_u32 s3, s30, 0x20004\ns_lshl_b32 s3, s3, 10\ns_add_u32 s31, s31, s3")
    A("s_and_b32 s30, s30, 8\ns_lshl_b32 s30, s30, 4\ns_add_u32 s31, s31, s30\ns_lshl_b32 s30, s24, 15\ns_add_u32 s31, s31, s30")
    A("v_lshrrev_b32 v23, 5, v1\nv_lshlrev_b32 v23, 12, v23\nv_bfe_u32 v24, v1, 3, 2\nv_lshl_add_u32 v23, v24, 8, v23")
    A("v_lshrrev_b32 v24, 3, v1\nv_xor_b32 v24, v24, v1\nv_and_b32 v24, 7, v24\nv_lshl_add_u32 v23, v24, 4, v23\nv_add_u32 v23, s31, v23")
    A("s_lshr_b32 s30, s24, 1\ns_lshl_b32 s30, s30, 15\ns_and_b32 s31, s24, 1\ns_lshl_b32 s31, s31, 12\ns_add_u32 s30, s30, s31\nv_add_u32 v21, s30, v2")
    A("v_lshrrev_b32 v24, 4, v1\nv_bfe_u32 v25, v1, 2, 2\nv_and_b32 v26, 3, v1")
    A("v_lshl_add_u32 v27, v24, 3, v25")
    A("v_lshrrev_b32 v28, 1, v25\nv_and_b32 v29, 1, v24\nv_lshl_or_b32 v28, v29, 1, v28")
    for nb in range(4):
        A(f"v_xor_b32 v30, {nb}, v28\nv_lshlrev_b32 v30, 5, v30\nv_lshl_add_u32 v30, v27, 7, v30")
        A(f"v_lshl_add_u32 v{4+nb}, v26, 3, v30\nv_add_u32 v{8+nb}, 0x10000, v{4+nb}\nv_add_u32 v{12+nb}, 0x20000, v{4+nb}")
    A("s_lshr_b32 s83, s28, 3\ns_mul_i32 s83, s83, 56\ns_bfe_u32 s30, s28, 0x20001\ns_add_u32 s83, s83, s30\ns_lshl_b32 s83, s83, 11")
    A("s_lshr_b32 s10, s28, 1\ns_mul_i32 s10, s10, 896\ns_lshl_b32 s11, s28, 7")
    NQ, NF = 1024 * 6144, 1024 * 7168
    def wsrd(d, lo, off, tot):
        A(f"s_sub_u32 s31, {tot}, {off}")
        srd(A, d, lo, off, "s31")
    k2 = K2(A)
    A("s_cmp_ge_u32 s25, 4\ns_cbranch_scc1 L1_typeQ")
    for nb in range(2):
        A(f"v_xor_b32 v30, {nb}, v29\nv_lshlrev_b32 v30, 5, v30\nv_lshl_add_u32 v30, v27, 6, v30")
        A(f"v_lshl_add_u32 v30, v26, 3, v30\nv_add_u32 v{12+nb}, 0x20000, v30")
    A("s_add_u32 s30, s11, 2048"); wsrd(32, 6, "s30", NQ)
    A("s_add_u32 s30, s11, 4096"); wsrd(36, 6, "s30", NQ)
    A("s_lshl_b32 s30, s29, 8\ns_add_u32 s30, s30, 512\ns_add_u32 s30, s30, s10")
    wsrd(40, 12, "s30", NF); wsrd(44, 14, "s30", NF)
    A("s_lshl_b32 s31, s29, 13\ns_add_u32 s83, s83, s31")
    A("s_lshl_b32 s30, s29, 6\ns_add_u32 s30, s30, 640\ns_add_u32 s30, s30, s10")
    A("s_cmp_ge_u32 s24, 2\ns_cselect_b32 s10, s14, s12\ns_cselect_b32 s11, s15, s13")
    wsrd(48, 10, "s30", NF)
    K1(A, "KV").body(k2)
    A("L1_typeQ:")
    wsrd(40, 6, "s11", NQ)
    A("s_lshl_b32 s30, s29, 8\ns_add_u32 s30, s30, s10")
    wsrd(32, 12, "s30", NF); wsrd(36, 14, "s30", NF)
    A("s_lshl_b32 s31, s29, 13\ns_add_u32 s83, s83, s31")
    A("s_add_u32 s30, s30, 128")
    wsrd(44, 12, "s30", NF); wsrd(48, 14, "s30", NF)
    A(f"s_lshl_b32 s85, s28, 12\ns_add_u32 s85, s85, {112*2048}")
    K1(A, "Q").body(k2)
    k2.body()
    A("L_end:")
    A("s_endpgm")
    A.raw('.section .rodata,"a"\n.p2align 6')
    A.raw(f".amdhsa_kernel {name}")
    for l in (".amdhsa_next_free_vgpr 512", ".amdhsa_next_free_sgpr 102", ".amdhsa_accum_offset 256", ".amdhsa_group_segment_fixed_size 0",
              ".amdhsa_kernarg_size 80", ".amdhsa_user_sgpr_count 2", ".amdhsa_user_sgpr_kernarg_segment_ptr 1",
              ".amdhsa_system_sgpr_workgroup_id_x 1", ".amdhsa_float_denorm_mode_32 3", ".end_amdhsa_kernel"):
        A.raw(l)

def main(out):
    A = Asm()
    for l in open("cdna_kernels/" + NAME + ".s.ref").read().split("\n"):
        if l.startswith("; @launch") or l.startswith("; Override") or l.startswith("; grid=ceil"): continue
        if not l.startswith(";"): break
        A.raw(l)
    if "--list" in sys.argv:
        A.raw(f"; @launch kernel={NAME}_kernel grid=(256,1,1) block=(256,1,1) lds=163840")
    else:
        A.raw("; @launch grid=(256,1,1) block=(256,1,1) lds=163840")
    A.raw('.amdgcn_target "amdgcn-amd-amdhsa--gfx950"')
    A.raw(MAC)
    A.raw(".text")
    kernel(A)
    open(out, "w").write(A.finalize())
main(sys.argv[1])
```

```python
import sys
from asmlib import Asm, MAC, cost

NAME = "recurrent_scan__linear_attn_block__glu_gated_swiglu__prompt"
XN_OFF = 0
ACT_OFF = 4 << 20
KVP_OFF = 24 << 20
KVP_STRIDE = 8448
P_OFF = 32 << 20
FLAG_OFF = 48 << 20
XFL_OFF = 49 << 20
STAT_OFF = 50 << 20
STAMP_OFF = 56 << 20
LOG2E = 0x3fb8aa3b
NLOG2E = 0xbfb8aa3b
EPS6 = 0x358637bd
EPS5 = 0x3727c5ac
SPIN = 0x40000

def opt(name, default=""):
    for a in sys.argv:
        if a.startswith("--" + name + "="): return a.split("=", 1)[1].replace("+", " ")
    return default
STAMPS = "--stamps" in sys.argv
ROT = int(opt("rot", "0"))
L2PF = int(opt("l2pf", "0"))
XFIRST = int(opt("xfirst", "1"))
WU = int(opt("wu", "10"))
RB = int(opt("rb", "2"))
RINV = int(opt("rinv", "0"))
CPF = int(opt("cpf", "1"))
ECPF = int(opt("ecpf", "1"))
W1E = int(opt("w1e", "0"))
W1J = int(opt("w1j", "4"))
NSY = int(opt("nsy", "1"))
ODEF = int(opt("odef", "0"))
FAST = int(opt("fast", "0"))
PKB = int(opt("pkb", "1"))
DYN = int(opt("dyn", "1"))
NKV = int(opt("nkv", "14"))
P16 = int(opt("p16", "1"))

NA = int(opt("na", "12"))
F_X0 = opt("x0", "nt")
F_W1P = opt("w1p", "nt")
F_W1 = opt("w1", "nt")
SC = "sc0 sc1"
F_XN = opt("xn", "sc1")
F_H = opt("h", "sc1")
F_HST = opt("hst", SC)

def stamp(A, idx, tail=False):
    if not STAMPS: return
    if opt("tailst") and 16 <= idx < 26 and not tail: return
    A("s_memtime s[100:101]" if opt("cyc") else "s_memrealtime s[100:101]")
    A("s_waitcnt lgkmcnt(0)")
    A(f"v_writelane_b32 v0, s100, {idx}")
def stamp_out(A, idx, tag):
    if not STAMPS: return
    A("s_waitcnt vmcnt(0)")
    stamp(A, idx)
    A(f"s_cmp_lg_u32 s24, 0\ns_cbranch_scc1 LS_{tag}")
    A(f"s_lshl_b32 s100, s2, 7\ns_add_u32 s100, s100, {STAMP_OFF}")
    A("v_lshl_add_u32 v20, v1, 2, s100")
    A("s_mov_b64 exec, 0xffffffff")
    A("global_store_dword v20, v0, s[22:23]")
    if opt("dbgst"):
        A(f"s_cmp_lg_u32 s2, 0\ns_cbranch_scc1 LS_{tag}")
        A("v_readlane_b32 s30, v0, 0\ns_mov_b64 exec, 1")
        for w, idx in zip((1, 3, 4, 5, 7, 9, 11, 12, 13, 15), (1, 3, 5, 6, 8, 9, 11, 12, 13, 15)):
            A(f"v_readlane_b32 s31, v0, {idx}\ns_sub_u32 s31, s31, s30\nv_mov_b32 v21, s31\nv_mov_b32 v22, {w*4}")
            A("global_store_dword v22, v21, s[20:21]")
    A(f"LS_{tag}:")

def srd(A, d, lo, off, nrec):
    A(f"s_add_u32 s{d}, s{lo}, {off}")
    A(f"s_addc_u32 s{d+1}, s{lo+1}, 0")
    A(f"s_mov_b32 s{d+2}, {nrec}")
    A(f"s_mov_b32 s{d+3}, 0x20000")

_lab = [0]
def newlab(p):
    _lab[0] += 1
    return f"L{p}{_lab[0]}"

def spin(vaddr, base, target, vtmp, first_loaded=False, sleep=1, off=0):
    l, d = newlab("p"), newlab("d")
    g = []
    if first_loaded:
        g += [f"v_readfirstlane_b32 s30, v{vtmp}", f"s_cmp_ge_u32 s30, {target}", f"s_cbranch_scc1 {d}"]
    g += [f"s_mov_b32 s31, {SPIN}", f"{l}:",
          f"global_load_dword v{vtmp}, v{vaddr}, s[{base}:{base+1}] offset:{off} sc1", "s_waitcnt vmcnt(0)",
          f"v_readfirstlane_b32 s30, v{vtmp}", f"s_cmp_ge_u32 s30, {target}", f"s_cbranch_scc1 {d}",
          f"s_sleep {sleep}", "s_sub_u32 s31, s31, 1", "s_cmp_lg_u32 s31, 0", f"s_cbranch_scc1 {l}", f"{d}:"]
    return g

def signal(vaddr, base, v1, off=0):
    l = newlab("s")
    return ["s_cmp_lg_u32 s24, 0", f"s_cbranch_scc1 {l}", f"v_mov_b32 v{v1}, 1", "s_mov_b64 exec, 1",
            f"global_atomic_add v{vaddr}, v{v1}, s[{base}:{base+1}] offset:{off} sc1", "s_mov_b64 exec, -1", f"{l}:"]

def emit_group(A, it, uncounted=False):
    if isinstance(it, str): it = [it]
    for t in it: A(t)

def emit_stream(A, mf, fill, batches):
    bi = 0; pos = 0; done = 0
    def icost(it):
        if isinstance(it, str): return cost(it)
        if it and it[0].startswith('v_pk_'): return 0
        return sum(cost(t) for t in it[:6])
    tot = [sum(icost(x) for x in b[2]) for b in batches]
    for i, m in enumerate(mf):
        A(m)
        for t in fill[i]: emit_group(A, t)
        while bi < len(batches) and batches[bi][0] <= i:
            st, en, items = batches[bi]
            want = tot[bi] * min(1.0, (i - st + 1) / max(1, en - st))
            while pos < len(items) and done < want:
                emit_group(A, items[pos]); done += icost(items[pos]); pos += 1
            while pos < len(items) and icost(items[pos]) == 0:
                emit_group(A, items[pos]); pos += 1
            if pos >= len(items):
                bi += 1; pos = 0; done = 0
            else:
                break
    while bi < len(batches):
        items = batches[bi][2]
        while pos < len(items):
            emit_group(A, items[pos]); pos += 1
        bi += 1; pos = 0

def emit_sync(A, g):
    n = A.nvm
    for t in g: A(t)
    A.nvm = n
class Unc(list):
    pass
def emit_group(A, it):
    if isinstance(it, str): A(it)
    elif isinstance(it, Unc): emit_sync(A, it)
    else:
        for t in it: A(t)

class Inject:
    def __init__(self, A, L, every, skip=0): self.A, self.L, self.every, self.n = A, list(L), every, -skip
    def __call__(self, text):
        for t in text.split("\n"):
            self.A(t); self.n += 1
            if self.n <= 0: continue
            if self.L and self.n % self.every == self.every - 2 and self.L[0][0]: self.A(self.L[0][0])
            if self.L and self.n % self.every == 0: self.A(self.L.pop(0)[1])

def ln_part(A, publish=None):
    X, F, S, Vv = 64, 80, 112, 116
    A("s_mov_b32 s3, 0xffff0000")
    for i in range(16):
        A(f"v_lshlrev_b32 v{F+2*i}, 16, v{X+i}")
        A(f"v_and_b32 v{F+1+2*i}, s3, v{X+i}")
    def reduce32(r, t):
        for m in ("quad_perm:[1,0,3,2]", "quad_perm:[2,3,0,1]", "row_half_mirror", "row_mirror"):
            A(f"v_add_f32_dpp v{r}, v{r}, v{r} {m} row_mask:0xf bank_mask:0xf")
        A(f"v_mov_b32 v{t}, v{r}")
        A(f"v_permlane16_swap_b32 v{t}, v{r}")
        A(f"v_add_f32 v{r}, v{r}, v{t}")
    for i in range(2):
        A(f"v_pk_add_f32 v[{S+2*i}:{S+2*i+1}], v[{F+2*i}:{F+2*i+1}], v[{F+4+2*i}:{F+5+2*i}]")
    for b in range(2, 8):
        for i in range(2):
            A(f"v_pk_add_f32 v[{S+2*i}:{S+2*i+1}], v[{S+2*i}:{S+2*i+1}], v[{F+4*b+2*i}:{F+4*b+2*i+1}]")
    A(f"v_pk_add_f32 v[{S}:{S+1}], v[{S}:{S+1}], v[{S+2}:{S+3}]")
    A(f"v_add_f32 v{S}, v{S}, v{S+1}")
    reduce32(S, S + 1)
    A(f"v_mul_f32 v{S}, 0xba800000, v{S}")
    A(f"v_mov_b32 v{S+1}, v{S}")
    for i in range(16):
        t = X + 2 * (i % 4)
        A(f"v_pk_add_f32 v[{t}:{t+1}], v[{F+2*i}:{F+2*i+1}], v[{S}:{S+1}]")
        a = Vv + 2 * (i % 2)
        if i < 2:
            A(f"v_pk_mul_f32 v[{a}:{a+1}], v[{t}:{t+1}], v[{t}:{t+1}]")
        else:
            A(f"v_pk_fma_f32 v[{a}:{a+1}], v[{t}:{t+1}], v[{t}:{t+1}], v[{a}:{a+1}]")
    A(f"v_pk_add_f32 v[{Vv}:{Vv+1}], v[{Vv}:{Vv+1}], v[{Vv+2}:{Vv+3}]")
    A(f"v_add_f32 v{Vv}, v{Vv}, v{Vv+1}")
    A(f"v_cvt_pk_bf16_f32 v{S}, v{S}, v{S}\nv_and_b32 v{S}, s3, v{S}\nv_mov_b32 v{S+1}, v{S}")
    reduce32(Vv, Vv + 1)
    chain = [f"v_mul_f32 v{Vv}, 0x3a800000, v{Vv}", f"v_cvt_pk_bf16_f32 v{Vv}, v{Vv}, v{Vv}", f"v_and_b32 v{Vv}, s3, v{Vv}",
             f"v_add_f32 v{Vv}, {EPS5:#x}, v{Vv}", f"v_cvt_pk_bf16_f32 v{Vv}, v{Vv}, v{Vv}", f"v_and_b32 v{Vv}, s3, v{Vv}",
             f"v_sqrt_f32 v{Vv}, v{Vv}", f"v_cvt_pk_bf16_f32 v{Vv}, v{Vv}, v{Vv}", f"v_and_b32 v{Vv}, s3, v{Vv}",
             f"v_rcp_f32 v{Vv}, v{Vv}", f"v_mov_b32 v{Vv+1}, v{Vv}"]
    if publish:
        for c in chain[:8]: A(c)
        chain = chain[8:]
        publish(S, Vv)
    for i in range(16):
        a = F + 2 * i
        A(f"v_pk_add_f32 v[{a}:{a+1}], v[{a}:{a+1}], v[{S}:{S+1}]")
        if chain: A(chain.pop(0))
        A(f"v_cvt_pk_bf16_f32 v{a+1}, v{a}, v{a+1}")
        A(f"v_lshlrev_b32 v{a}, 16, v{a+1}\nv_and_b32 v{a+1}, s3, v{a+1}")
    for i in range(16):
        a = F + 2 * i
        A(f"v_pk_mul_f32 v[{a}:{a+1}], v[{a}:{a+1}], v[{Vv}:{Vv+1}]")
        A(f"v_cvt_pk_bf16_f32 v{X+i}, v{a}, v{a+1}")

def merge(a, b, f0=0.0, f1=1.0):
    i0, i1 = int(len(a) * f0), int(len(a) * f1)
    out = list(a[:i0]); b = list(b); n = len(b); done = 0
    for i, x in enumerate(a[i0:i1]):
        out.append(x)
        while b and done < n * (i + 1) // (i1 - i0):
            out.append(b.pop(0)); done += 1
    return out + b + list(a[i1:])

class K1:
    VO6, VO7, VOH, VX1 = 16, 17, 18, 19
    def __init__(self, A, typ):
        self.A = A; self.typ = typ
        ag = [4, 5, 6, 7, 16, 17, 18, 19] if typ == "Q" else [4, 5, 6, 7, 12, 13, 14, 15]
        self.acc = {}
        na = nv = 0
        for nb in range(20):
            for mb in range(4):
                if nb in ag: self.acc[(nb, mb)] = ("a", na); na += 4
                else: self.acc[(nb, mb)] = ("v", 64 + nv); nv += 4
        self.u = 0
    def q(self, nb, mb):
        f, r = self.acc[(nb, mb)]; assert f == "v"; return r
    def xfrag(self, xs, kh, mb): return 128 + xs * 32 + (kh * 4 + mb) * 4
    def reads(self, ring, nb, slot):
        out = []
        grp, sub = nb // 4, nb % 4
        for kh in range(2):
            for h4 in range(2):
                r = 32 + ring * 8 + kh * 4 + 2 * h4
                if self.typ == "KV" and grp == 4:
                    v, imm = 12 + sub % 2, slot * 8192 + (sub // 2) * 4096 + kh * 2048 + h4 * 256
                else:
                    v, imm = 4 + (grp // 2) * 4 + sub, (grp % 2) * 32768 + slot * 8192 + kh * 4096 + h4 * 512
                out.append(f"ds_read_b64_tr_b16 v[{r}:{r+1}], v{v} offset:{imm}")
        return out
    def mfmas(self, ring, nb, slot, first=False):
        out = []
        sw = self.typ == "KV" and nb < 8
        for mb in range(4):
            for kh in range(2):
                w = 32 + ring * 8 + kh * 4; x = self.xfrag(slot, kh, mb)
                wa, xa = f"v[{w}:{w+3}]", f"a[{x}:{x+3}]"
                f, r = self.acc[(nb, mb)]; acc = f"{f}[{r}:{r+3}]"
                out.append(f"v_mfma_f32_16x16x32_bf16 {acc}, {xa if sw else wa}, {wa if sw else xa}, {'0' if first and kh == 0 else acc}")
        return out
    def wloads(self, slot, fl):
        dma = []
        for grp in range(5):
            for half in range(2):
                s = 32 + 4 * grp
                isqkv = (grp == 2) if self.typ == "Q" else (grp < 2)
                if self.typ == "KV" and grp == 4:
                    pre = f"s_add_u32 m0, s79, {131072 + slot*8192 + half*2048}"
                    ins = f"buffer_load_dwordx4 v{self.VOH}, s[{s}:{s+3}], s{74+half} offen {fl} lds"
                else:
                    pre = f"s_add_u32 m0, s78, {grp*32768 + slot*8192 + half*4096}"
                    ins = f"buffer_load_dwordx4 v{self.VO6 if isqkv else self.VO7}, s[{s}:{s+3}], s{(72 if isqkv else 74)+half} offen {fl} lds"
                dma.append((pre, ins))
        return dma
    def xloads(self, slot, so=76):
        xl = []
        for kh in range(2):
            for mb in range(4):
                r = self.xfrag(slot, kh, mb)
                xl.append((None, f"buffer_load_dwordx4 a[{r}:{r+3}], v{2 if kh == 0 else self.VX1}, s[52:55], s{so} offen offset:{mb*1024} {F_XN}"))
        return xl
    def loads(self, slot):
        d, x = self.wloads(slot, F_W1), self.xloads(slot)
        L = []
        while d or x:
            if d: L.append(d.pop(0))
            if x: L.append(x.pop(0))
        return L
    def adv(self):
        return [f"s_add_u32 s72, s72, {64*6144}", f"s_add_u32 s73, s73, {64*6144}", f"s_add_u32 s74, s74, {64*7168}",
                f"s_add_u32 s75, s75, {64*7168}", "s_add_u32 s76, s76, 8192"]
    def l2pf(self):
        l = newlab("f")
        g = ["s_cmp_ge_u32 s90, 1024", f"s_cbranch_scc1 {l}", "s_mul_i32 s10, s90, 6144", "s_mul_i32 s30, s90, 7168",
             f"s_add_u32 s11, s10, {32*6144}", f"s_add_u32 s31, s30, {32*7168}"]
        for pre, ins in self.wloads(0, "nt"):
            ins = ins.replace("buffer_load_dwordx4 ", "buffer_load_dwordx4 v[28:31], ").replace(" lds", "")
            ins = ins.replace("s72", "s10").replace("s73", "s11").replace("s74", "s30").replace("s75", "s31")
            g.append(ins)
        g += [f"{l}:", "s_add_u32 s90, s90, 512"]
        return g
    def stage(self, slot, nxt_units, vmw, pf=(), lastld=False):
        ls = (slot + 3) % 4
        units = [(nb, slot) for nb in range(20)] + list(nxt_units)
        mf, fill = [], []
        for u in range(20):
            f = [[] for _ in range(8)]
            rd = self.reads((u + 2) % 4, *units[u + 2])
            if u == 18:
                f[1] += (["@wv x14", "s_waitcnt lgkmcnt(0)"] if lastld else [f"s_waitcnt vmcnt({vmw}) lgkmcnt(0)"]) + ["s_barrier"]
                for i, j in enumerate((2, 3, 4, 5)): f[j].append(rd[i])
                f[5].append("@tag t0")
            else:
                for i, j in enumerate((0, 2, 4, 6)): f[j].append(rd[i])
                if u == 19: f[6].append("@tag t1")
                f[7].append("s_waitcnt lgkmcnt(4)")
            if u == 19 and not lastld:
                a = self.adv()
                f[1] += a[0:2]; f[3] += a[2:4]; f[5] += a[4:5]
            mf += self.mfmas(u % 4, *units[u]); fill += f
        def odd(p): return p | 1
        W, X = self.wloads(ls, F_W1), self.xloads((slot + 2) % 4)
        wu = WU
        if lastld:
            X += [("s_add_u32 s76, s76, 8192" if i == 0 else None, ins) for i, (_, ins) in enumerate(self.xloads(ls))]
            wu = 10
        nx = len(X)
        if XFIRST:
            xu = 18 - wu
            pos = [odd(xu * 8 + 2 + i * (wu * 8 - 2) // 10) for i in range(10)] + [odd(2 + 2 * len(pf) + i * (xu * 8 - 2 * len(pf)) // nx) for i in range(nx)]
        else:
            pos = [odd(2 + 2 * len(pf) + i * (wu * 8 - 2 * len(pf)) // 10) for i in range(10)] + [odd(wu * 8 + 2 + i * ((18 - wu) * 8 - 2) // nx) for i in range(nx)]
        L = W + X
        for i, p in enumerate(pf): fill[1 + 2 * i] += p
        for (pre, ins), p in zip(L, pos):
            assert p < 145
            if pre: fill[p - 1].append(pre)
            fill[p].append(ins)
        fill[max(pos)].append("@tag kld")
        if lastld: fill[pos[17]].append("@tag x14")
        emit_stream(self.A, mf, fill, [])
    def stage0(self):
        units = [(nb, 0) for nb in range(20)] + [(0, 1), (1, 1)]
        mf, fill = [], []
        for u in range(20):
            f = [[] for _ in range(8)]
            rd = self.reads((u + 2) % 4, *units[u + 2])
            if u == 18:
                f[1] += ["@wv wp", "s_waitcnt lgkmcnt(0)", "s_barrier"]
                for i, j in enumerate((2, 3, 4, 5)): f[j].append(rd[i])
            else:
                for i, j in enumerate((0, 2, 4, 6)): f[j].append(rd[i])
                f[7].append("s_waitcnt lgkmcnt(4)")
            mf += self.mfmas(u % 4, *units[u], first=True); fill += f
        for i, (pre, ins) in enumerate(self.wloads(3, F_W1)):
            p = 3 + 6 * i
            fill[p - 1].append(pre); fill[p].append(ins)
        fill[61] += self.adv()[:4]
        ps, pc = int(opt("f0s", "63")), int(opt("f0c", "93"))
        fill[ps] += ["global_load_dword v25, v31, s[22:23] sc1", "@tag fs"]
        p, d = newlab("p"), newlab("d")
        chk = ["v_cmp_ne_u32 vcc, s90, v25", "s_cmp_eq_u64 vcc, 0", f"s_cbranch_scc1 {d}"]
        fill[pc] += ["@wv fs", Unc(chk + [f"s_mov_b32 s31, {SPIN}", f"{p}:", "global_load_dword v25, v31, s[22:23] sc1", "s_waitcnt vmcnt(0)"] + chk +
                                   ["s_sleep 2", "s_sub_u32 s31, s31, 1", "s_cmp_lg_u32 s31, 0", f"s_cbranch_scc1 {p}", f"{d}:"])]
        st = (158 - pc - 2) // 16
        for i, (_, ins) in enumerate(self.xloads(1) + self.xloads(2)):
            q = pc + 2 + (2 * i if i < 8 else 16 + (i - 8) * ((158 - pc - 20) // 8))
            fill[q].append(ins)
            if i in (7, 15): fill[q] += (["@tag x1"] if i == 7 else []) + ["s_add_u32 s76, s76, 8192"]
        fill[159].append("@wv x1")
        emit_stream(self.A, mf, fill, [])
    def fast_start(self):
        A = self.A; t = self.typ
        def issue(L):
            for pre, ins in L:
                if pre: A(pre)
                A(ins)
        R, U, ST = 128, 160, 224
        A("s_mul_i32 s30, s26, 24\ns_mul_i32 s31, s24, 6\ns_add_u32 s31, s31, s30\nv_add_u32 v24, s31, v1")
        A("v_mul_u32_u24 v25, 6144, v24\nv_mul_u32_u24 v24, 7168, v24")
        if t == "KV":
            A("s_and_b32 s31, s24, 1\ns_mul_i32 s31, s31, 12\ns_add_u32 s31, s31, s30\nv_add_u32 v26, s31, v1\nv_mul_u32_u24 v26, 7168, v26")
            A("s_mov_b64 exec, 0xfff")
            A(f"buffer_load_dword v124, v26, s[48:51], 0 offen {F_W1P}")
        A("s_mov_b64 exec, 63")
        for grp in range(5 if t == "Q" else 4):
            q = (grp == 2) if t == "Q" else (grp < 2)
            A(f"buffer_load_dword v124, v{25 if q else 24}, s[{32+4*grp}:{35+4*grp}], 0 offen {F_W1P}")
        A("s_mov_b64 exec, -1")
        raw = []
        for mb in range(4):
            for kh in range(2):
                r = R + (kh * 4 + mb) * 4
                raw.append(("v_add_u32 v127, 0x8000, v127" if (kh == 0 and mb) else None,
                            f"global_load_dwordx4 v[{r}:{r+3}], v127, s[4:5] offset:{kh*64}" + ("\n@tag raw" if (mb, kh) == (3, 1) else "")))
        RE = int(opt("rawe", "8"))
        issue(raw[:RE])
        A("s_lshl_b32 s10, s26, 5\ns_add_u32 s10, s20, s10\ns_addc_u32 s11, s21, 0")
        A("s_lshl_b32 s30, s26, 5\nv_mov_b32 v30, s30")
        A(f"s_waitcnt vmcnt({5 + RE})")
        stamp(A, 1)
        A("s_load_dword s90, s[10:11], 0")
        def publish(S, Vv):
            p, d = newlab("p"), newlab("d")
            A(f"v_bfi_b32 v{Vv+2}, s3, v{S}, v{Vv}")
            A(f"s_waitcnt lgkmcnt(0)\ns_cmp_lg_u32 s90, 0\ns_cbranch_scc1 {d}")
            emit_sync(A, spin(30, 20, 1, 126) + ["s_mov_b32 s90, s30", f"{d}:"])
            A(f"v_mov_b32 v{Vv+3}, s90\ns_mov_b32 s30, 1\ns_mov_b32 s31, 1\ns_mov_b64 exec, s[30:31]")
            A(f"global_store_dwordx2 v20, v[{Vv+2}:{Vv+3}], s[22:23] {SC}\ns_mov_b64 exec, -1")
            stamp(A, 10)
        def nxt(L): return [("\n".join(self.adv()[:4] + [L[0][0]]), L[0][1])] + L[1:]
        rest = raw[RE:] + self.wloads(0, F_W1P) + nxt(self.wloads(1, F_W1P)) + nxt(self.wloads(2, F_W1P))
        n1, n2 = 18 - RE, int(opt("fn2", "8"))
        inj = Inject(A, rest[:n1], 5, skip=104)
        ln_part(inj, publish)
        assert not inj.L
        for j in range(4):
            A(f"ds_write_b128 v22, v[{64+4*j}:{67+4*j}] offset:{24576 + (j%2)*4096 + (j//2)*32768}")
        A("s_waitcnt lgkmcnt(0)\ns_barrier")
        for j in range(4):
            A(f"ds_read_b128 v[{64+4*j}:{67+4*j}], v21 offset:{24576 + j*1024}")
        for j in range(4):
            A(f"s_waitcnt lgkmcnt({3-j})")
            A(f"global_store_dwordx4 v23, v[{64+4*j}:{67+4*j}], s[22:23] {SC}")
            if j < 3: A("v_add_u32 v23, 0x2000, v23")
        stamp(A, 2)
        A("@wv raw")
        inj = Inject(A, rest[n1:n1+n2], 8)
        for i in range(32):
            inj(f"v_lshlrev_b32 v{U+2*i}, 16, v{R+i}\nv_and_b32 v{U+2*i+1}, s3, v{R+i}")
        assert not inj.L
        if CPF:
            l = newlab("c")
            A(f"s_getpc_b64 s[10:11]\n{l}:\ns_sub_u32 s10, s10, {l}-{NAME}_kernel\ns_subb_u32 s11, s11, 0")
            A("s_lshr_b32 s30, s2, 3\ns_lshl_b32 s30, s30, 2\ns_add_u32 s30, s30, s24\ns_lshl_b32 s30, s30, 10")
            A(f"s_min_u32 s30, s30, L_end-{NAME}_kernel-1024\nv_add_u32 v28, s30, v2")
        A("s_mov_b32 s80, 3\ns_mov_b32 s76, 8192")
        if int(opt("fsl", "0")): A(f"s_sleep {opt('fsl')}")
        p, d = newlab("p"), newlab("d")
        A(f"s_mov_b32 s31, {SPIN}\n{p}:")
        n = A.nvm
        for mb in range(4):
            A(f"global_load_dwordx2 v[{ST+2*mb}:{ST+2*mb+1}], v125, s[22:23] offset:{mb*128} sc1")
        A.nvm = n
        A("s_waitcnt vmcnt(0)")
        A(f"v_xor_b32 v24, s90, v{ST+1}\nv_xor_b32 v25, s90, v{ST+3}\nv_xor_b32 v26, s90, v{ST+5}\nv_xor_b32 v27, s90, v{ST+7}")
        A("v_or3_b32 v24, v24, v25, v26\nv_or_b32 v24, v24, v27\nv_cmp_ne_u32 vcc, 0, v24\ns_cmp_eq_u64 vcc, 0")
        A(f"s_cbranch_scc1 {d}\ns_sleep 1\ns_sub_u32 s31, s31, 1\ns_cmp_lg_u32 s31, 0\ns_cbranch_scc1 {p}\n{d}:")
        stamp(A, 4)
        A("s_barrier")
        l = newlab("a")
        emit_sync(A, ["s_cmp_lg_u32 s24, 0", f"s_cbranch_scc1 {l}", "s_lshl_b32 s30, s27, 3", "s_add_u32 s30, s30, s25",
                      "s_lshl_b64 exec, 1, s30", "v_mov_b32 v25, s90", f"global_store_dword v31, v25, s[22:23] {SC}", "s_mov_b64 exec, -1", f"{l}:"])
        stamp(A, 3)
        for u in range(2):
            for r in self.reads(u, u, 0): A(r)
        inj = Inject(A, rest[n1+n2:], 240 // max(1, len(rest) - n1 - n2))
        for mb in range(4):
            m, r = ST + 8 + 4 * mb, ST + 10 + 4 * mb
            inj(f"v_lshlrev_b32 v{r}, 16, v{ST+2*mb}\nv_and_b32 v{m}, s3, v{ST+2*mb}\nv_rcp_f32 v{r}, v{r}\nv_mov_b32 v{m+1}, v{m}\nv_mov_b32 v{r+1}, v{r}")
        for f in range(8):
            mb = f % 4; m, r = ST + 8 + 4 * mb, ST + 10 + 4 * mb
            P = lambda x: f"v[{x}:{x+1}]"
            a = [U + 8 * f + 2 * i for i in range(4)]
            for x in a: inj(f"v_pk_add_f32 {P(x)}, {P(x)}, {P(m)}")
            for x in a: inj(f"v_cvt_pk_bf16_f32 v{x+1}, v{x}, v{x+1}")
            for x in a: inj(f"v_lshlrev_b32 v{x}, 16, v{x+1}\nv_and_b32 v{x+1}, s3, v{x+1}")
            for x in a: inj(f"v_pk_mul_f32 {P(x)}, {P(x)}, {P(r)}")
            for x in a: inj(f"v_cvt_pk_bf16_f32 v{x}, v{x}, v{x+1}")
            for i, x in enumerate(a): inj(f"v_accvgpr_write_b32 a{128+4*f+i}, v{x}")
        assert not inj.L
        A("@tag wp")
        for a in self.adv()[:4]: A(a)
        A("s_waitcnt lgkmcnt(4)")
        stamp(A, 5)
        self.stage0()
        A(f"s_branch L1{t}_s1")
    def phi(self, r, d0):
        it = [f"v_mul_f32 v{20+i}, s86, v{r+i}" for i in range(4)]
        for i in range(4):
            it += [f"v_exp_f32_e64 v{20+i}, v{20+i} clamp", f"v_max_f32 v{r+i}, s88, v{r+i}"]
        it += [f"v_add_f32 v{r+i}, v{r+i}, v{20+i}" for i in range(4)]
        it += [f"v_cvt_pk_bf16_f32 v{d0}, v{r}, v{r+1}", f"v_cvt_pk_bf16_f32 v{d0+1}, v{r+2}, v{r+3}"]
        return it
    def store_act(self, d, mb, ks, imm_k, fl):
        return f"buffer_store_dwordx4 v[{d}:{d+3}], v{2 if mb < 2 else 31 if False else 3}, s[56:59], s{ks} offen offset:{imm_k*2048 + (mb&1)*1024} {fl}"
    def gu(self, gb, ub, pos, pk=False):
        it = [f"s_add_u32 s84, s83, {pos*8192}"]
        if pk: it += ["v_mov_b32 v36, s87", "v_mov_b32 v37, s87", "v_mov_b32 v38, 1.0", "v_mov_b32 v39, 1.0"]
        P = lambda r: f"v[{r}:{r+1}]"
        for mb in range(4):
            d = self.q(gb, mb)
            for p in range(2):
                g = self.q(gb + p, mb); fu, u = self.acc[(ub + p, mb)]
                rd = [[f"v_accvgpr_read_b32 v{24+i}, a{u+i}"] if fu == "a" else [] for i in range(4)]
                if fu == "a": u = 24
                if pk: it += [f"v_pk_mul_f32 {P(20+i)}, {P(g+i)}, {P(36)}" for i in (0, 2)]
                else: it += [f"v_mul_f32 v{20+i}, s87, v{g+i}" for i in range(4)]
                for i in range(4):
                    it += [f"v_exp_f32 v{20+i}, v{20+i}"] + rd[i]
                if pk:
                    it += [f"v_pk_mul_f32 {P(g+i)}, {P(g+i)}, {P(u+i)}" for i in (0, 2)]
                    it += [f"v_pk_add_f32 {P(20+i)}, {P(20+i)}, {P(38)}" for i in (0, 2)]
                    it += [f"v_rcp_f32 v{20+i}, v{20+i}" for i in range(4)]
                    it += [f"v_pk_mul_f32 {P(g+i)}, {P(g+i)}, {P(20+i)}" for i in (0, 2)]
                else:
                    it += [f"v_add_f32 v{20+i}, 1.0, v{20+i}" for i in range(4)]
                    for i in range(4):
                        it += [f"v_rcp_f32 v{20+i}, v{20+i}", f"v_mul_f32 v{g+i}, v{g+i}, v{u+i}"]
                    it += [f"v_mul_f32 v{g+i}, v{g+i}, v{20+i}" for i in range(4)]
                it += [f"v_cvt_pk_bf16_f32 v{d+2*p}, v{g}, v{g+1}", f"v_cvt_pk_bf16_f32 v{d+2*p+1}, v{g+2}, v{g+3}"]
            it.append(self.store_act(d, mb, 84, 0, F_HST))
        return it
    def gub(self, gb, ub, pos, U):
        it = [f"s_add_u32 s84, s83, {pos*8192}"]
        P = lambda r: f"v[{r}:{r+1}]"
        T = list(range(20, 28)); carry = []; tailq = []
        for mb in range(4):
            g = [self.q(gb + p, mb) + i for p in range(2) for i in range(4)]
            src = [(self.acc[(ub + p, mb)][0], self.acc[(ub + p, mb)][1] + i) for p in range(2) for i in range(4)]
            u = [U[i // 4] + i % 4 if f == "a" else r for i, (f, r) in enumerate(src)]
            it.append(carry + [f"v_pk_mul_f32 {P(T[i])}, {P(g[i])}, s[86:87] op_sel:[0,1] op_sel_hi:[1,1]" for i in range(0, 8, 2)])
            ex = []
            for i in range(8):
                ex.append(f"v_exp_f32 v{T[i]}, v{T[i]}")
                if src[i][0] == "a": ex.append(f"v_accvgpr_read_b32 v{u[i]}, a{src[i][1]}")
            it += tailq + ex
            it.append([f"v_pk_mul_f32 {P(g[i])}, {P(g[i])}, {P(u[i])}" for i in range(0, 8, 2)] +
                      [f"v_pk_add_f32 {P(T[i])}, {P(T[i])}, s[52:53]" for i in range(0, 8, 2)])
            it += [f"v_rcp_f32 v{T[i]}, v{T[i]}" for i in range(8)]
            carry = [f"v_pk_mul_f32 {P(g[i])}, {P(g[i])}, {P(T[i])}" for i in range(0, 8, 2)]
            d = g[0]
            tailq = [f"v_cvt_pk_bf16_f32 v{d+i}, v{g[2*i]}, v{g[2*i+1]}" for i in range(4)] + [self.store_act(d, mb, 84, 0, F_HST)]
        return it + [carry] + tailq
    def phib(self, pairs):
        P = lambda r: f"v[{r}:{r+1}]"
        it = []; carry = []; tailq = []
        for k in range(0, len(pairs), 2):
            r = [pairs[k + p][0] + i for p in range(2) for i in range(4)]
            it.append(carry + [f"v_pk_mul_f32 {P(20+i)}, {P(r[i])}, s[86:87] op_sel:[0,0] op_sel_hi:[1,0]" for i in range(0, 8, 2)])
            it += tailq
            for i in range(8):
                it += [f"v_exp_f32_e64 v{20+i}, v{20+i} clamp", f"v_max_f32 v{r[i]}, s88, v{r[i]}"]
            carry = [f"v_pk_add_f32 {P(r[i])}, {P(r[i])}, {P(20+i)}" for i in range(0, 8, 2)]
            tailq = [f"v_cvt_pk_bf16_f32 v{pairs[k+p][1]+j}, v{r[4*p+2*j]}, v{r[4*p+2*j+1]}" for p in range(2) for j in range(2)]
        return it + [carry] + tailq
    def tail_units(self):
        if self.typ == "KV":
            nbs = [0,1,2,3, 4,5,6,7, 8,9,12,13, 10,11,14,15, 16,17,18,19]
        else:
            nbs = [0,1,4,5, 2,3,6,7, 8,9,10,11, 12,13,16,17, 14,15,18,19]
        return [(nb, s) for nb in nbs[:4] for s in (1, 2)] + [(nb, 3) for nb in nbs[:4]] + [(nb, s) for nb in nbs[4:] for s in (1, 2, 3)]
    def tail(self, batches):
        units = self.tail_units()
        mf, fill = [], []
        for u in range(60):
            f = [[] for _ in range(8)]
            if u == 5: f[7] += ["@wv kld", "s_barrier"]
            if u + 2 < 60:
                rd = self.reads((u + 2) % 4, *units[u + 2])
                for i, j in enumerate((0, 2, 4, 6)): f[j].append(rd[i])
                f[6].append(f"@tag t{u+2}")
            if u + 1 < 60: f[7].append(f"@wl t{u+1}")
            if STAMPS and opt("tailst") and u % 6 == 5:
                f[7] += ["s_memtime s[100:101]" if opt("cyc") else "s_memrealtime s[100:101]", "s_waitcnt lgkmcnt(0)", f"v_writelane_b32 v0, s100, {16 + u // 6}"]
            mf += self.mfmas(u % 4, *units[u]); fill += f
        emit_stream(self.A, mf, fill, batches)
    def batches_kv(self):
        B = []
        def ph(db):
            pr = [(self.q(db, mb), self.q(db, mb & 2) + 2 * (mb & 1)) for mb in range(4)]
            return self.phib(pr) if PKB else sum([self.phi(*x) for x in pr], [])
        def vp(eb):
            it = []
            for mb in range(4):
                f, r = self.acc[(4 + eb, mb)]
                d = self.q(eb, (mb & 2) + 1) + 2 * (mb & 1)
                if f == "a":
                    it += [f"v_accvgpr_read_b32 v{24+i}, a{r+i}" for i in range(4)]; r = 24
                it += [f"v_cvt_pk_bf16_f32 v{d}, v{r}, v{r+1}", f"v_cvt_pk_bf16_f32 v{d+1}, v{r+2}, v{r+3}"]
            return it
        pre = [f"v_mov_b32 v{28+i}, 0x3f803f80" for i in range(4)]
        pre += [["s_lshl_b32 s30, s24, 15", "v_add_u32 v16, s30, v2"],
                "v_lshrrev_b32 v19, 4, v1", "v_lshlrev_b32 v19, 4, v19",
                ["s_lshl_b32 s30, s24, 8", "s_add_u32 s30, s30, 0x20000", "v_add_u32 v17, s30, v19"],
                ["s_lshl_b32 s30, s24, 11", "v_add_u32 v18, s30, v2"],
                ["s_lshl_b32 s30, s24, 6", "v_add_u32 v19, s30, v19"]]
        B.append((0, 24, pre + ["s_mov_b32 s52, 1.0", "s_mov_b32 s53, 1.0"]))
        B.append((50, 78, K2.xaddr(24, 25) + K2.xres(24, 25)))
        B += [(78, 104, ph(0)), (104, 130, ph(1)), (130, 156, ph(2)), (156, 162, vp(0)), (162, 186, ph(3)),
              (186, 191, vp(1)), (191, 196, vp(2)), (198, 204, vp(3))]
        Z = 32
        it = []
        for sg in range(2):
            for hd in range(2):
                for db in range(2):
                    pk = self.q(hd * 2 + db, 2 * sg)
                    for eb in range(2):
                        vv = self.q(hd * 2 + eb, 2 * sg + 1)
                        d = ((hd * 2 + eb) * 2 + db) * 4
                        it.append(f"v_mfma_f32_16x16x32_bf16 a[{d}:{d+3}], v[{pk}:{pk+3}], v[{vv}:{vv+3}], {'0' if sg == 0 else f'a[{d}:{d+3}]'}")
                    d = Z + (hd * 2 + db) * 4
                    it.append(f"v_mfma_f32_16x16x32_bf16 a[{d}:{d+3}], v[{pk}:{pk+3}], v[28:31], {'0' if sg == 0 else f'a[{d}:{d+3}]'}")
        B.append((205, 215, it))
        it = [f"ds_write_b128 v16, a[{q*4}:{3+q*4}] offset:{q*1024}" for q in range(8)]
        it.append(["s_mov_b32 s30, 0x00010001", "s_mov_b32 s31, 0x00010001", "s_mov_b64 exec, s[30:31]"] +
                  [f"ds_write_b128 v17, a[{Z+q*4}:{Z+q*4+3}] offset:{q*64}" for q in range(4)] + ["s_mov_b64 exec, -1", "@tag kvw"])
        B.append((219, 225, it))
        it = [["@wl kvw", "s_barrier"], "v_add_u32 v16, 0x10000, v18", "v_add_u32 v17, 0x20000, v19"]
        for w in range(4):
            va = 18 if w < 2 else 16
            it.append(f"ds_read_b128 v[{64+w*12}:{67+w*12}], v{va} offset:{(w%2)*32768}")
            it.append(f"ds_read_b128 v[{68+w*12}:{71+w*12}], v{va} offset:{(w%2)*32768+1024}")
            it.append(f"ds_read_b128 v[{72+w*12}:{75+w*12}], v17 offset:{w*256}")
        it.append("@tag kvr")
        B.append((230, 237, it))
        it = ["@wl kvr"]
        for i in range(12):
            it += [f"v_add_f32 v{64+i}, v{64+i}, v{76+i}", f"v_add_f32 v{88+i}, v{88+i}, v{100+i}"]
        it += [f"v_add_f32 v{64+i}, v{64+i}, v{88+i}" for i in range(12)]
        it += [f"s_mul_i32 s10, s26, {KVP_STRIDE}", "s_add_u32 s11, s10, 8192",
               f"buffer_store_dwordx4 v[64:67], v18, s[60:63], s10 offen {SC}",
               f"buffer_store_dwordx4 v[68:71], v18, s[60:63], s10 offen offset:1024 {SC}",
               ["s_mov_b32 s30, 0x00010001", "s_mov_b32 s31, 0x00010001", "s_mov_b64 exec, s[30:31]",
                f"buffer_store_dwordx4 v[72:75], v19, s[60:63], s11 offen {SC}", "s_mov_b64 exec, -1", "@tag kvs"]]
        B.append((243, 254, it))
        g0 = self.gub(8, 12, 4, (112, 116)) if PKB else self.gu(8, 12, 4)
        k = len(g0) // 3
        pub = [["@wv kvs", "s_barrier"], "v_mov_b32 v16, s89", Unc(signal(16, 20, 17))]
        B.append((256, 286, self.k2.setup_early()))
        smp, chk = self.hA()
        xf = self.k2.xfirst()
        fa, fb = float(opt("ka", "0.2")), float(opt("kb", "0.5"))
        k = int(len(g0) * fa)
        g0 = g0 + ["@tag hA"]
        B.append((294, 384, smp + g0[:k] + pub + merge(g0[k:], self.k2.wfirst(), 0, 0.95)))
        g1 = self.gub(10, 14, 10, (112, 116)) if PKB else self.gu(10, 14, 10)
        B.append((390, 480, merge(self.h1mix(g1, 768, f=fb), chk + xf, 0.0, 0.9)))
        self.last = self.gu(16, 18, 12, pk=True)
        self.lastld = []
        return B
    def hA(self):
        return ([["global_load_dword v29, v30, s[22:23] sc1", "@tag h1s"]],
                ["@wv h1s", Unc(spin(30, 22, 16, 29, True, sleep=4))])
    def h1mix(self, g, off, after=(), f=0.3, f1=1.0):
        k = int(len(g) * f)
        pub = [["@wv hA", "s_barrier"], Unc(signal(30, 22, 31, off))]
        return g[:k] + pub + merge(g[k:], after, 0, f1)
    def pquads(self):
        return [self.q(nb, mb) for nb in (0, 1, 2, 3) for mb in range(4)] + [self.q(nb, mb) for nb in (9, 11) for mb in range(4)]
    def batches_q(self):
        B = []
        def ph(nb):
            pr = [(self.q(8 + nb, mb), self.q(8 + (nb & 2), mb) + 2 * (nb & 1)) for mb in range(4)]
            return self.phib(pr) if PKB else sum([self.phi(*x) for x in pr], [])
        pre = ["v_mov_b32 v16, s89",
               "v_lshrrev_b32 v19, 4, v1", "v_lshlrev_b32 v19, 4, v19",
               ["s_lshl_b32 s30, s24, 11", "v_add_u32 v18, s30, v2"],
               ["s_lshl_b32 s30, s24, 6", "s_add_u32 s30, s30, 8192", "v_add_u32 v19, s30, v19"]]
        B.append((0, 24, pre + ["s_mov_b32 s52, 1.0", "s_mov_b32 s53, 1.0"]))
        B.append((50, 78, K2.xaddr(24, 25) + K2.xres(24, 25)))
        B.append((78, 102, self.k2.setup_early()))
        B.append((102, 192, merge(self.gu(0, 4, 0), self.k2.l2pf(), 0, 0.8) + ["@tag hA"]))
        qa, qb, qc = float(opt("qa", "0.5")), float(opt("qb", "0.5")), float(opt("qc", "0.45"))
        wf = self.k2.wfirst()
        g1 = (self.gub(2, 6, 2, (self.q(1, 0), self.q(1, 1))) if PKB else self.gu(2, 6, 2))
        B.append((198, 288, self.h1mix(g1, 0, wf[:9], f=qa, f1=0.95) + ["@tag hA"]))
        smp, chk = self.hA()
        phq = ph(0) + ph(1) + ph(2) + ph(3)
        b = merge(self.h1mix(phq, 1024, f=qb), wf[9:] + smp, 0, qc - 0.2)
        xf = self.k2.xfirst()
        B.append((294, 388, merge(b, chk + xf[:int(opt("qx", "19"))], qc + 0.1, 1.0)))
        self.xrest = xf[int(opt("qx", "19")):]
        P = self.pquads()
        ld = []
        for p in range(8):
            ld.append([f"s_mov_b32 s10, {p*KVP_STRIDE}",
                       f"buffer_load_dwordx4 v[{P[3*p]}:{P[3*p]+3}], v18, s[60:63], s10 offen sc1"])
            ld.append(f"buffer_load_dwordx4 v[{P[3*p+1]}:{P[3*p+1]+3}], v18, s[60:63], s10 offen offset:1024 sc1")
            ld.append(f"buffer_load_dwordx4 v[{P[3*p+2]}:{P[3*p+2]+3}], v19, s[60:63], s10 offen sc1")
        ld.append("@tag kvl")
        chk = ["@wv kvp", Unc(spin(16, 20, 8, 17, True))]
        smp = ["global_load_dword v17, v16, s[20:21] sc1", "@tag kvp"]
        g2 = self.gu(12, 16, 6)
        f = float(opt("kvk", "0.3"))
        k0, k = int(len(g2) * (f - 0.25)), int(len(g2) * f)
        nl = int(opt("kvn", "25"))
        B.append((390, 480, g2[:k0] + smp + merge(g2[k0:k], self.xrest) + chk + merge(g2[k:], ld[:nl], 0, float(opt('kve', '0.7')))))
        self.lastld = ld[nl:]
        self.last = self.gu(14, 18, 8, pk=True)
        return B
    def opath1(self):
        P = self.pquads()
        it = ["@wv kvl"]
        for st in (4, 2, 1):
            for p in range(st):
                for j in range(3):
                    for i in (0, 2):
                        a, b = P[3 * p + j] + i, P[3 * (p + st) + j] + i
                        it.append(f"v_pk_add_f32 v[{a}:{a+1}], v[{a}:{a+1}], v[{b}:{b+1}]")
        for j in range(3):
            it += [f"v_cvt_pk_bf16_f32 v{40+2*j}, v{P[j]}, v{P[j]+1}", f"v_cvt_pk_bf16_f32 v{41+2*j}, v{P[j]+2}, v{P[j]+3}"]
        it += [["s_lshl_b32 s30, s24, 10", "s_add_u32 s30, s30, 0x20000", "v_add_u32 v18, s30, v2"], "ds_write_b128 v18, v[40:43]",
               ["s_lshr_b32 s30, s24, 1", "s_lshl_b32 s30, s30, 10", "s_and_b32 s31, s24, 1", "s_lshl_b32 s31, s31, 3",
                "s_add_u32 s30, s30, s31", "s_add_u32 s30, s30, 0x21000", "v_add_u32 v19, s30, v2"], "ds_write_b64 v19, v[44:45]",
               "v_add_u32 v18, 0x20000, v2"]
        return it
    def opath2(self):
        rd = [["s_waitcnt lgkmcnt(0)", "s_barrier"]] + [f"ds_read_b128 v[{40+i*4}:{43+i*4}], v18 offset:{i*1024}" for i in range(6)]
        den = lambda t: self.q(8 + 2 * (t // 4) + 1, t % 4)
        mm = ["s_waitcnt lgkmcnt(0)"]
        for t in range(8):
            pq = self.q(8 + 2 * (t // 4), t % 4); zf = 56 + (t // 4) * 4
            mm.append(f"v_mfma_f32_16x16x32_bf16 v[{den(t)}:{den(t)+3}], v[{zf}:{zf+3}], v[{pq}:{pq+3}], 0")
        side = [f"v_add_f32 v{den(t)}, s88, v{den(t)}" for t in range(8)] + [f"v_rcp_f32 v{den(t)}, v{den(t)}" for t in range(8)]
        side += [f"v_mov_b32 v{den(t)+1}, v{den(t)}" for t in range(8)]
        for t in range(8):
            pq = self.q(8 + 2 * (t // 4), t % 4); d = 64 + t * 8
            for eb in range(2):
                kf = 40 + ((t // 4) * 2 + eb) * 4
                mm.append(f"v_mfma_f32_16x16x32_bf16 v[{d+eb*4}:{d+eb*4+3}], v[{kf}:{kf+3}], v[{pq}:{pq+3}], 0")
                if t > 0:
                    for _ in range(2):
                        if side: mm.append(side.pop(0))
        mm += side
        fin = []
        for t in range(8):
            d = 64 + t * 8
            fin += [f"v_pk_mul_f32 v[{d+i}:{d+i+1}], v[{d+i}:{d+i+1}], v[{den(t)}:{den(t)+1}]" for i in range(0, 8, 2)]
            fin += [f"v_cvt_pk_bf16_f32 v{d+i}, v{d+2*i}, v{d+2*i+1}" for i in range(4)]
            if ODEF: self.k2.ostores.append(self.store_act(d, t % 4, 85, t // 4, F_HST))
            else: fin.append(self.store_act(d, t % 4, 85, t // 4, F_HST))
        return rd, mm, fin
    def body(self, k2):
        A = self.A; t = self.typ; self.k2 = k2
        def issue(L):
            for pre, ins in L:
                if pre: A(pre)
                A(ins)
        if FAST: self.fast_start()
        else:
            A("s_lshl_b32 s30, s26, 5\nv_mov_b32 v30, s30")
            if NSY:
                l = newlab("m")
                A(f"s_or_b32 s30, s25, s27\ns_xor_b32 s31, s24, 3\ns_or_b32 s30, s30, s31\ns_cmp_lg_u32 s30, 0\ns_cbranch_scc1 {l}")
                emit_sync(A, ["s_waitcnt vmcnt(4)", "v_mov_b32 v25, 1", "s_mov_b64 exec, 1", f"global_store_dword v30, v25, s[20:21] {SC}", "s_mov_b64 exec, -1", f"{l}:"])
            if int(opt("wpf", "0")):
                A("s_lshl_b32 s30, s26, 4\ns_lshl_b32 s31, s24, 2\ns_add_u32 s31, s31, s30\ns_add_u32 s31, s31, 64\nv_add_u32 v24, s31, v1")
                A("v_mul_u32_u24 v25, 6144, v24\nv_mul_u32_u24 v24, 7168, v24")
                if t == "KV":
                    A("s_and_b32 s31, s24, 1\ns_lshl_b32 s31, s31, 3\ns_add_u32 s31, s31, s30\ns_add_u32 s31, s31, 64\nv_add_u32 v26, s31, v1\nv_mul_u32_u24 v26, 7168, v26")
                    A("s_mov_b64 exec, 0xff")
                    A(f"buffer_load_dword v124, v26, s[48:51], 0 offen {F_W1P}")
                A("s_mov_b64 exec, 15")
                for grp in range(5 if t == "Q" else 4):
                    q = (grp == 2) if t == "Q" else (grp < 2)
                    A(f"buffer_load_dword v124, v{25 if q else 24}, s[{32+4*grp}:{35+4*grp}], 0 offen {F_W1P}")
                A("s_mov_b64 exec, -1")
            issue(self.wloads(0, F_W1P))
            for a in self.adv()[:4]: A(a)
            if W1E:
                issue(self.wloads(1, F_W1P))
                for a in self.adv()[:4]: A(a)
            A("s_waitcnt vmcnt(%d)" % (15 if int(opt("wpf", "0")) else 10))
            stamp(A, 1)
            inj = Inject(A, self.wloads(1, F_W1P)[:W1J], 10, skip=int(opt("w1s", "110")))
            ln_part(inj)
            assert not inj.L
            if NSY: A("global_load_dword v29, v30, s[20:21] sc1")
            for j in range(4):
                A(f"ds_write_b128 v22, v[{64+4*j}:{67+4*j}] offset:{24576 + (j%2)*4096 + (j//2)*32768}")
            A("s_waitcnt lgkmcnt(0)\ns_barrier")
            for j in range(4):
                A(f"ds_read_b128 v[{64+4*j}:{67+4*j}], v21 offset:{24576 + j*1024}")
            for j in range(4):
                A(f"s_waitcnt lgkmcnt({3-j})")
                A(f"global_store_dwordx4 v23, v[{64+4*j}:{67+4*j}], s[22:23] {SC}")
                if j < 3: A("v_add_u32 v23, 0x2000, v23")
            stamp(A, 2)
            zero = []
            for (nb, mb), (f, r) in self.acc.items():
                for i in range(4):
                    zero.append(f"v_accvgpr_write_b32 a{r+i}, 0" if f == "a" else f"v_mov_b32 v{r+i}, 0")
            zero.reverse()
            A("@tag xns")
            w2 = self.wloads(2, F_W1P)
            rest = self.wloads(1, F_W1P)[W1J:] + [("\n".join(self.adv()[:4] + [w2[0][0]]), w2[0][1])] + w2[1:]
            W1K = int(opt("w1k", "6"))
            inj = Inject(A, rest[:W1K], 6)
            for z in zero[:64]: inj(z)
            assert not inj.L
            A("@wv xns\ns_barrier")
            if NSY:
                l = newlab("a")
                emit_sync(A, ["s_cmp_lg_u32 s24, 0", f"s_cbranch_scc1 {l}"] + spin(30, 20, 1, 29, True) +
                          ["s_lshl_b32 s30, s27, 3", "s_add_u32 s30, s30, s25", "s_lshl_b64 exec, 1, s30", "v_mov_b32 v25, 1",
                           f"global_store_dword v31, v25, s[22:23] {SC}", "s_mov_b64 exec, -1", f"{l}:"])
            else:
                emit_sync(A, signal(30, 20, 25))
            stamp(A, 3)
            inj = Inject(A, rest[W1K:], 8)
            for z in zero[64:]: inj(z)
            assert not inj.L
            for a in self.adv()[:4]: A(a)
            l = newlab("w")
            A(f"s_cmp_lg_u32 s24, 0\ns_cbranch_scc1 {l}")
            if NSY:
                p, d = newlab("p"), newlab("d")
                emit_sync(A, [f"s_mov_b32 s31, {SPIN}", f"{p}:", "global_load_dword v25, v31, s[22:23] sc1", "s_waitcnt vmcnt(0)",
                              "v_cmp_ne_u32 vcc, 1, v25", "s_cmp_eq_u64 vcc, 0", f"s_cbranch_scc1 {d}", f"s_sleep {opt('nsl', '2')}",
                              "s_sub_u32 s31, s31, 1", "s_cmp_lg_u32 s31, 0", f"s_cbranch_scc1 {p}", f"{d}:"])
            else:
                A("s_waitcnt vmcnt(0)")
                emit_sync(A, spin(30, 20, 32, 25, sleep=4))
            A(f"{l}:")
            A("s_barrier")
            stamp(A, 4)
            issue(self.xloads(0))
            A("s_add_u32 s76, s76, 8192")
            issue(self.xloads(1))
            A("s_add_u32 s76, s76, 8192")
            A("s_waitcnt vmcnt(8)")
            stamp(A, 5)
            for u in range(2):
                for r in self.reads(u, u, 0): A(r)
            A("s_mov_b32 s80, 3")
            if CPF:
                l = newlab("c")
                A(f"s_getpc_b64 s[10:11]\n{l}:\ns_sub_u32 s10, s10, {l}-{NAME}_kernel\ns_subb_u32 s11, s11, 0")
                A("s_lshr_b32 s30, s2, 3\ns_lshl_b32 s30, s30, 2\ns_add_u32 s30, s30, s24\ns_lshl_b32 s30, s30, 10")
                A(f"s_min_u32 s30, s30, L_end-{NAME}_kernel-1024\nv_add_u32 v28, s30, v2")
            A("s_waitcnt lgkmcnt(4)")
        A.raw(".p2align 6")
        A(f"L1{t}_loop:")
        pw2 = ["buffer_load_dwordx4 v[20:23], v2, s[64:67], s81 offen", "s_add_u32 s81, s81, 0x100000"]
        pwo = ["buffer_load_dwordx4 v[20:23], v2, s[68:71], s82 offen", "s_add_u32 s82, s82, 0x100000"]
        px = ["buffer_load_dwordx4 v[24:27], v2, s[96:99], s94 offen", "s_add_u32 s94, s94, 0x100000"]
        pfs = [[pw2], [pw2], [pw2], [pwo]]
        if opt("nopf"): pfs = [[], [], [], []]
        if CPF: pfs[1].append(["global_load_dwordx4 v[28:31], v31, s[100:101]" if False else "global_load_dwordx4 v[24:27], v28, s[10:11]"])
        for s in range(4):
            n = (s + 1) % 4
            if s == 1: A(f"L1{t}_s1:")
            self.stage(s, [(0, n), (1, n)], 18 + len(pfs[s]), pf=pfs[s])
        A(f"s_sub_u32 s80, s80, 1\ns_cmp_lg_u32 s80, 0\ns_cbranch_scc1 L1{t}_loop")
        stamp(A, 6)
        self.stage(0, self.tail_units()[:2], 18, lastld=True)
        stamp(A, 7)
        self.tail(self.batches_kv() if t == "KV" else self.batches_q())
        stamp(A, 8)
        last = [["global_load_dword v29, v30, s[22:23] offset:1024 sc1", "@tag h2s"]] + self.last
        if t == "Q":
            n = len(last); rd, mm, fin = self.opath2()
            a, b, c = int(n * float(opt("oa", "0.05"))), int(n * float(opt("ob", "0.2"))), int(n * float(opt("oc", "0.35")))
            st = lambda i: [["s_memtime s[100:101]", "s_waitcnt lgkmcnt(0)", f"v_writelane_b32 v0, s100, {i}"]] if (STAMPS and opt("ost")) else []
            o1 = self.opath1()
            last = (merge(last[:a], self.lastld, 0, 0.6) + st(26) + o1[:1] + st(27) + o1[1:] + st(28) + last[a:b] + rd + st(29) + last[b:c] + mm + st(30) +
                    merge(last[c:], fin))
        for x in last: emit_group(A, x)
        stamp(A, 9)
        k2.setup()
        A(f"s_mov_b32 s51, {int(t == 'Q')}")
        for z in k2.zero(): A(z)
        stamp(A, 11)
        k2.pre()
        A("s_branch L2_start")

class K2:
    def __init__(self, A): self.A = A; self.ostores = []
    def issue(self, L):
        for pre, ins in L:
            if pre: self.A(pre)
            self.A(ins)
    def xfrag(self, slot, k, mb): return slot * 32 + (k * 2 + mb) * 4
    def reads(self, ring, nb, slot, kp):
        out = []
        for k2 in range(2):
            for h in range(2):
                r = 32 + ring * 8 + k2 * 4 + 2 * h
                imm = (slot & 1) * 32768 + (nb >> 2) * 16384 + (kp * 2 + k2) * 4096 + h * 2048
                out.append(f"ds_read_b64_tr_b16 v[{r}:{r+1}], v{4 + (slot >> 1) * 4 + (nb & 3)} offset:{imm}")
        return out
    def mfmas(self, ring, nb, slot, kp, accb):
        out = []
        for mb in range(2):
            for k2 in range(2):
                w = 32 + ring * 8 + k2 * 4; x = self.xfrag(slot, kp * 2 + k2, mb); a = accb + (nb * 2 + mb) * 4
                out.append(f"v_mfma_f32_16x16x32_bf16 v[{a}:{a+3}], v[{w}:{w+3}], a[{x}:{x+3}], v[{a}:{a+3}]")
        return out
    def wloads(self, slot, so=72, ngrp=2):
        L = []
        for j in range(4):
            for grp in range(ngrp):
                d = (32, 44)[grp]
                L.append((f"s_add_u32 m0, s78, {slot*32768 + grp*16384 + j*1024}",
                          f"buffer_load_dwordx4 v28, s[{d}:{d+3}], s{(72, 96, 97, 98)[j]} offen lds"))
        return L
    def xloads(self, slot, va=None):
        L = []
        for k in range(4):
            for mb in range(2):
                r = self.xfrag(slot, k, mb)
                L.append((None, f"buffer_load_dwordx4 a[{r}:{r+3}], v2, s[36:39], s{73 if k < 2 else 76} offen offset:{((k&1)*2+mb)*1024} {F_H}"))
        return L
    def loads(self, slot, ngrp):
        d, x = self.wloads(slot, ngrp=ngrp), self.xloads(slot)
        if opt("hk2") == "halfx": x = [(p, i if n % 2 else i.replace("s[36:39]", "s[64:67]")) for n, (p, i) in enumerate(x)]
        if opt("hk2") == "nox": x = [(p, i.replace("s[36:39]", "s[64:67]")) for n, (p, i) in enumerate(x)]
        if ngrp == 2 and opt("k2c") == "wx": return d + x
        if ngrp == 2 and opt("k2c") == "xw": return x + d
        if ngrp == 2: return [y for p in zip(d, x) for y in p]
        return [y for i in range(4) for y in (d[i], x[2*i], x[2*i+1])]
    ORDER = [0, 4, 1, 5, 8, 12, 2, 6, 3, 7, 9, 13, 10, 11]
    def advx(self):
        if opt("hk2") == "xl2": return ["s_xor_b32 s73, s73, 8192", "s_xor_b32 s76, s76, 8192"]
        return ["s_add_u32 s73, s73, 8192", "s_add_u32 s76, s76, 8192"]
    def woff(self): return [f"s_add_u32 s{95+j}, s72, {j*16384}" for j in (1, 2, 3)]
    def advw(self, perm=True):
        if perm: return ["s_lshr_b64 s[48:49], s[48:49], 4", "s_and_b32 s72, s48, 15", "s_lshl_b32 s72, s72, 16", "s_add_u32 s72, s72, s75"] + self.woff()
        return [f"s_add_u32 s72, s72, {128*2048}"] + self.woff()
    def adv(self, perm=True):
        return ["s_add_u32 s99, s99, 1", "s_add_u32 s73, s73, s66",
                ["s_cmp_eq_u32 s99, 14", "s_cselect_b32 s75, s64, s75", "s_cselect_b32 s73, s65, s73", "s_cselect_b32 s66, s68, s66"],
                "s_add_u32 s76, s73, 4096"] + self.advw(perm)
    def setup_early(self):
        class Rec(list):
            def __call__(self, t): self.extend(t.split("\n"))
        it = ["v_lshrrev_b32 v29, 4, v1", "v_bfe_u32 v28, v1, 1, 2", "v_xor_b32 v28, v28, v29", "v_lshlrev_b32 v28, 5, v28",
              "v_and_b32 v29, 1, v1", "v_lshl_add_u32 v28, v29, 4, v28", "v_lshrrev_b32 v29, 3, v1", "v_lshl_add_u32 v28, v29, 11, v28"]
        def grp(f):
            r = Rec(); f(r); it.append(list(r))
        grp(lambda A: A("s_lshl_b32 s78, s24, 12\ns_and_b32 s79, s94, 0x7ff"))
        grp(lambda A: (A(f"s_sub_u32 s31, {3584*2048}, s79"), srd(A, 32, 16, "s79", "s31")))
        grp(lambda A: (A(f"s_xor_b32 s30, s79, 128\ns_sub_u32 s31, {3584*2048}, s30"), srd(A, 44, 16, "s30", "s31")))
        grp(lambda A: (A("s_lshr_b32 s30, s95, 3\ns_lshl_b32 s30, s30, 2\ns_add_u32 s30, s30, s24"),
                       A(f"s_mul_i32 s30, s30, {144*2048}\ns_add_u32 s30, s30, {ACT_OFF}"), srd(A, 36, 22, "s30", 144 * 2048)))
        grp(lambda A: (A(f"s_lshl_b32 s30, s95, 16\ns_lshl_b32 s31, s24, 14\ns_add_u32 s30, s30, s31\ns_add_u32 s30, s30, {P_OFF}"),
                       srd(A, 40, 22, "s30", 16384)))
        grp(lambda A: A("s_lshl_b32 s74, s91, 13\ns_xor_b32 s77, s74, 8192"))
        tab = sum(c << (4 * i) for i, c in enumerate(self.ORDER + self.ORDER[:11:-1]))
        grp(lambda A: A(f"s_mov_b32 s48, {tab & 0xffffffff:#x}\ns_mov_b32 s49, {tab >> 32:#x}"))
        grp(lambda A: A(f"s_lshl_b32 s75, s91, 2\ns_add_u32 s75, s75, s24\ns_mul_i32 s75, s75, {14*32*2048}\ns_mov_b32 s72, s75"))
        grp(lambda A: A(f"s_mul_i32 s73, s91, {14*8192}\ns_add_u32 s76, s73, 4096\ns_mov_b32 s80, 3\ns_mov_b32 s50, 32"))
        grp(lambda A: A(f"s_xor_b32 s30, s91, 1\ns_lshl_b32 s64, s30, 2\ns_add_u32 s64, s64, s24\ns_mul_i32 s64, s64, {14*32*2048}"
                        f"\ns_mul_i32 s65, s30, {14*8192}\ns_add_u32 s65, s65, {13*8192}"))
        grp(lambda A: A("s_mov_b32 s66, 8192\ns_mov_b32 s68, -8192\ns_mov_b32 s99, 2"))
        grp(lambda A: A("s_mov_b32 s67, 12" if DYN else f"s_cmp_lt_u32 s25, 4\ns_cselect_b32 s67, {NKV}, {28-NKV}"))
        it.append(self.woff())
        it.append("v_mov_b32 v30, s92")
        if opt("hk2"): it.append("s_mov_b32 s66, 0")
        return it
    def l2pf(self):
        if not int(opt("l2w", "0")): return []
        it = [["s_bitcmp1_b32 s26, 0", "s_cselect_b32 s64, s44, s32", "s_cselect_b32 s65, s45, s33", "s_cselect_b32 s66, s46, s34"],
              ["s_lshr_b32 s81, s26, 1", "s_lshl_b32 s81, s81, 14", "s_add_u32 s81, s81, s75"]]
        n = int(opt("l2n", "14"))
        for c in reversed(self.ORDER[2:n]):
            it.append([f"s_add_u32 s82, s81, {c << 16}", "buffer_load_dwordx4 a[144:147], v28, s[64:67], s82 offen"])
        return it
    def wfirst(self):
        g = lambda LL: [[pre, "s_nop 0", ins] for pre, ins in LL]
        return g(self.wloads(0)) + [self.advw()] + g(self.wloads(1)) + [self.advw()]
    def xfirst(self):
        return [i for _, i in self.xloads(0)] + ["@tag k20", self.advx()] + [i for _, i in self.xloads(1)] + [self.advx()]
    def setup(self):
        A = self.A
        A("v_lshrrev_b32 v12, 2, v1\nv_bfe_u32 v13, v1, 3, 2\nv_and_b32 v14, 3, v1")
        for nb in range(4):
            A(f"v_xor_b32 v15, {nb}, v13\nv_lshlrev_b32 v15, 5, v15\nv_lshl_add_u32 v15, v12, 7, v15")
            A(f"v_lshl_add_u32 v{4+nb}, v14, 3, v15\nv_add_u32 v{8+nb}, 0x10000, v{4+nb}")
    @staticmethod
    def xaddr(a, b):
        return [f"v_and_b32 v{a}, 15, v1", f"v_lshlrev_b32 v{a}, 11, v{a}", f"v_bfe_u32 v{b}, v1, 4, 1", f"v_lshl_add_u32 v{a}, v{b}, 5, v{a}",
                f"v_lshrrev_b32 v{b}, 5, v1", f"v_lshl_add_u32 v{a}, v{b}, 4, v{a}", f"v_add_u32 v{a}, s94, v{a}", f"v_add_u32 v{b}, {16*2048}, v{a}"]
    @staticmethod
    def xres(a, b):
        it = []
        for mb in range(2):
            for p in range(2):
                r = 128 + (p * 2 + mb) * 4
                it.append(f"global_load_dwordx4 a[{r}:{r+3}], v{(a, b)[mb]}, s[4:5] offset:{p*64} {F_X0}")
        return it
    def zero(self):
        return [f"v_mov_b64 v[{i}:{i+1}], 0" for i in range(192, 256, 2)]
    def run(self, units, nxt, accb, ld, bar, batches=()):
        n = len(units); al = list(units) + list(nxt)
        mf, fill = [], [[] for _ in range(4 * n)]
        for u in range(n):
            if u in bar:
                fill[4 * u - 1] += [bar[u], "s_barrier"] if isinstance(bar[u], str) else list(bar[u])
            if u + 3 < len(al):
                rd = self.reads((u + 3) % 4, *al[u + 3])
                if opt("hack"):
                    for i in (0, 2): fill[4 * u + i].append(rd[i])
                else:
                    for i in range(4): fill[4 * u + i].append(rd[i])
            rem = min(len(al), u + 4) - (u + 2)
            if opt("hack"):
                if u % 2 == 1: fill[4 * u + 3].append("s_waitcnt lgkmcnt(4)")
            elif u + 1 < len(al): fill[4 * u + 3].append(f"s_waitcnt lgkmcnt({4 * max(rem, 0)})")
            mf += self.mfmas(u % 4, *units[u], accb)
        for slot, ngrp, post, *pos in ([ld] if isinstance(ld, tuple) else (ld or [])):
            L = self.loads(slot, ngrp)
            p0, span = pos if pos else (0, 4 * n - 4 if n == 8 else 48)
            for i, (pre, ins) in enumerate(L):
                p = p0 + i * span // len(L)
                if pre: fill[p].append(pre)
                fill[p + 1].append(ins)
            fill[p + 1].append(f"@tag ld{slot}")
            a = self.adv(ngrp == 2)
            for i in range(0, len(a), 2): fill[min(p + 2 + i // 2, 4 * n - 1)] += a[i:i+2]
            assert not post
        emit_stream(self.A, mf, fill, list(batches))
    def pre(self):
        A = self.A
        A("v_mov_b32 v24, s92\nv_add_u32 v26, 256, v24\nv_add_u32 v27, 512, v24")
        if int(opt("cpf2", "0")):
            l = newlab("c")
            A(f"s_getpc_b64 s[10:11]\n{l}:\ns_add_u32 s10, s10, L2_loop-{l}\ns_addc_u32 s11, s11, 0")
            A("s_bfe_u32 s30, s2, 0x30003\ns_lshl_b32 s30, s30, 2\ns_add_u32 s30, s30, s24\ns_lshl_b32 s30, s30, 10")
            A("s_min_u32 s30, s30, L_end-L2_loop-1024\nv_add_u32 v18, s30, v2")
        if DYN:
            A("s_andn2_b32 s30, s93, 128\ns_add_u32 s30, s30, 64\nv_mov_b32 v22, s30\nv_mov_b32 v21, 1\nv_mov_b32 v23, 99")
            A("v_lshlrev_b32 v20, 2, v1\nv_add_u32 v20, 0x27000, v20")
        A("@wv h2s")
        emit_sync(A, spin(30, 22, 16, 29, True, sleep=4, off=1024))
        A("s_barrier")
    def sunits(self, slot, order=range(8)): return [(nb, slot, kp) for nb in order for kp in range(2)]
    def body(self):
        A = self.A
        A("L2_start:")
        stamp(A, 12)
        for u in range(3):
            for r in self.reads(u, *self.sunits(0)[u]): A(r)
        A("s_waitcnt lgkmcnt(8)")
        A.raw(".p2align 6")
        A("L2_loop:")
        for s in range(4):
            bt = [(56, 57, ["global_load_dword v25, v26, s[22:23] sc1"])] if s == 2 else []
            if s == 0:
                l = newlab("g")
                bt = [(52, 53, [Unc(["s_lshl_b32 s30, s24, 2", "s_add_u32 s30, s30, s80", "s_cmp_lg_u32 s30, 3", f"s_cbranch_scc1 {l}",
                                     "v_mov_b32 v25, 1", "s_mov_b64 exec, 1", "global_atomic_add v26, v25, s[22:23] sc1",
                                     "s_cmp_lt_u32 s25, 4", f"s_cbranch_scc1 {l}x",
                                     "global_atomic_add v27, v25, s[22:23] sc1", f"{l}x:", "s_mov_b64 exec, -1", f"{l}:"])]),
                      (56, 57, ["global_load_dword v29, v30, s[22:23] offset:768 sc1"])]
            if s == 1: bt = [(62, 63, [Unc(spin(30, 22, 16, 29, True, sleep=2, off=768))])]
            if s == 3 and int(opt("cpf2", "0")):
                bt.append((54, 55, ["global_load_dwordx4 v[12:15], v18, s[10:11]"]))
            bar = ["s_waitcnt vmcnt(16)", "s_barrier"]
            if DYN:
                l1, l2 = newlab("a"), newlab("b")
                g = ["s_lshl_b32 s30, s24, 8", "s_sub_i32 s30, s99, s30", "s_cmp_lt_i32 s30, 11"]
                bt.insert(0, (0, 1, [Unc(g + [f"s_cbranch_scc1 {l1}", "s_mov_b64 exec, 1", "global_atomic_add v23, v22, v21, s[22:23] sc0 sc1",
                                              "s_mov_b64 exec, -1", f"{l1}:"])]))
                bar = ["s_waitcnt vmcnt(16)",
                       g[:2] + ["s_cmp_lt_i32 s30, 12", f"s_cbranch_scc1 {l2}", f"ds_write_b32 v20, v23 offset:{(s % 2) * 256}", "s_waitcnt lgkmcnt(0)", f"{l2}:"],
                       "s_barrier", f"ds_read_b32 v19, v20 offset:{(s % 2) * 256}"]
            self.run(self.sunits(s), self.sunits((s + 1) % 4)[:3], 192, ((s + 2) % 4, 2, [], 1, 47), {13: bar}, bt)
            if s == 3:
                emit_sync(A, spin(26, 22, "s50", 25, True))
                A("v_mov_b32 v26, v27\ns_mov_b32 s50, 16\ns_mov_b32 s80, 0")
            if DYN:
                A("v_readfirstlane_b32 s30, v19\ns_cmp_lt_u32 s30, 4\ns_cselect_b32 s30, s99, 0\ns_cmp_eq_u32 s30, s67\ns_addc_u32 s67, s67, 0")
            A(f"s_cmp_ge_u32 s99, s67\ns_cbranch_scc1 L2_fin{(s + 1) % 4}")
        A("s_branch L2_loop")
        for ph in range(4): self.final(ph)
    def final(self, ph):
        A = self.A
        A(f"L2_fin{ph}:")
        stamp(A, 13)
        if STAMPS: A("s_mul_i32 s30, s67, 100\nv_readlane_b32 s31, v0, 0\ns_add_u32 s30, s30, s31\nv_writelane_b32 v0, s30, 14")
        A("@tag k2l")
        A(f"s_add_u32 s32, s8, s79\ns_addc_u32 s33, s9, 0\ns_sub_u32 s34, {1024*2048}, s79\ns_lshl_b32 s72, s24, 16")
        def gpart(q):
            o, p = 192 + q * 4, 128 + q * 4
            if P16:
                it = [f"@wv P{q//2}"] if q % 2 == 0 else []
                pp = 128 + q * 2
                it += [f"v_lshlrev_b32 v20, 16, v{pp}", f"v_and_b32 v21, s3, v{pp}", f"v_lshlrev_b32 v22, 16, v{pp+1}", f"v_and_b32 v23, s3, v{pp+1}"]
                it += [f"v_add_f32 v{o+i}, v{o+i}, v{20+i}" for i in range(4)]
            else:
                it = [f"@wv P{q}"]
                it += [f"v_add_f32 v{o+i}, v{o+i}, v{p+i}" for i in range(4)]
            it += [f"v_mul_f32 v{20+i}, s87, v{o+i}" for i in range(4)]
            it += [f"v_exp_f32 v{20+i}, v{20+i}" for i in range(4)]
            it += [f"v_add_f32 v{20+i}, 1.0, v{20+i}" for i in range(4)]
            it += [f"v_rcp_f32 v{20+i}, v{20+i}" for i in range(4)]
            it += [f"v_mul_f32 v{o+i}, v{o+i}, v{20+i}" for i in range(4)]
            return it
        def xpart(p, mb):
            r = 128 + (p * 2 + mb) * 4
            q0, q1 = 96 + ((2 * p) * 2 + mb) * 4, 96 + ((2 * p + 1) * 2 + mb) * 4
            it = [f"v_accvgpr_read_b32 v{12+i}, a{r+i}" for i in range(4)]
            it += ["v_permlane16_swap_b32 v12, v14", "v_permlane16_swap_b32 v13, v15"]
            for q, s in ((q0, 12), (q1, 14)):
                it += [f"v_lshlrev_b32 v{q}, 16, v{s}", f"v_and_b32 v{q+1}, s3, v{s}", f"v_lshlrev_b32 v{q+2}, 16, v{s+1}", f"v_and_b32 v{q+3}, s3, v{s+1}"]
            return it
        def fin(p, mb):
            it = []
            qs = [(2 * p) * 2 + mb, (2 * p + 1) * 2 + mb]
            for q in qs:
                it += [f"v_fmac_f32 v{96+q*4+i}, v{64+q*4+i}, v{192+q*4+i}" for i in range(4)]
            d = 192 + qs[0] * 4
            for j, q in enumerate(qs):
                it += [f"v_cvt_pk_bf16_f32 v{d+2*j}, v{96+q*4}, v{97+q*4}", f"v_cvt_pk_bf16_f32 v{d+2*j+1}, v{98+q*4}, v{99+q*4}"]
            it += [f"v_permlane16_swap_b32 v{d}, v{d+2}", f"v_permlane16_swap_b32 v{d+1}, v{d+3}",
                   f"global_store_dwordx4 v{16+mb}, v[{d}:{d+3}], s[18:19] offset:{p*64} {opt('out', 'nt')}"]
            return it
        l = newlab("f")
        flag = Unc(["s_cmp_lg_u32 s24, 0", f"s_cbranch_scc1 {l}", "v_mov_b32 v25, 1", "s_mov_b64 exec, 1",
                    f"global_store_dword v27, v25, s[22:23] {SC}", "s_mov_b64 exec, -1", f"{l}:"])
        S = [(ph + i) % 4 for i in range(4)]
        un = self.sunits(S[0], [0, 1, 4, 5, 6, 7]) + self.sunits(S[1], [4, 5, 6, 7]) + self.sunits(S[0], [2, 3]) + self.sunits(S[1], [0, 1, 2, 3])
        WL = [S[2]*32768, S[2]*32768+16384, S[3]*32768, S[3]*32768+16384, 131072, 147456, S[0]*32768, S[0]*32768+16384]
        XR = [S[2]*32, S[3]*32, 144, 176, 208, S[0]*32, S[1]*32, S[2]*32]
        def sreads(ring, t, nb, kp):
            out = []
            base = WL[t]; v = (4, 8, 160)[base >> 16] + nb
            for k2 in range(2):
                for h in range(2):
                    r = 32 + ring * 8 + k2 * 4 + 2 * h
                    out.append(f"ds_read_b64_tr_b16 v[{r}:{r+1}], v{v} offset:{(base & 0xffff) + (kp * 2 + k2) * 4096 + h * 2048}")
            return out
        def smf(ring, t, nb, kp):
            out = []
            for mb in range(2):
                for k2 in range(2):
                    w = 32 + ring * 8 + k2 * 4; x = XR[t] + ((kp * 2 + k2) * 2 + mb) * 4; a = 64 + (nb * 2 + mb) * 4
                    out.append(f"v_mfma_f32_16x16x32_bf16 v[{a}:{a+3}], v[{w}:{w+3}], a[{x}:{x+3}], v[{a}:{a+3}]")
            return out
        sun = [(t, nb, kp) for t in range(8) for nb in range(4) for kp in range(2)]
        N = 96
        rdu = lambda u: self.reads(u % 4, *un[u]) if u < 32 else sreads(u % 4, *sun[u - 32])
        mfu = lambda u: self.mfmas(u % 4, *un[u], 192) if u < 32 else smf(u % 4, *sun[u - 32])
        mf, fill = [], [[] for _ in range(4 * N)]
        bars = {9: "@wv k2l", 29: "@wv W1", 45: "@wv W3", 61: "@wv W5", 77: "@wv W7", int(opt("fb", "37")): "@wv ps"}
        for u in range(N):
            if u in bars: fill[4 * u - 1] += [bars[u], "s_barrier"] + ([flag] if bars[u] == "@wv ps" else [])
            if u >= 32 and u % 8 == 0: fill[4 * u - 1].append(f"@wv X{(u - 32) // 8}")
            if u + 3 < N:
                for i, r in enumerate(rdu(u + 3)): fill[4 * u + i].append(r)
            if u + 1 < N: fill[4 * u + 3].append(f"s_waitcnt lgkmcnt({4 * max(min(N, u + 4) - (u + 2), 0)})")
            mf += mfu(u)
        def pairbase(t): return [f"s_add_u32 s98, s75, {t//2}", "s_and_b32 s98, s98, 3", "s_lshl_b32 s97, s98, 19", "s_add_u32 s97, s97, s72",
                                 "s_lshl_b32 s98, s98, 14"]
        def wl(t): return [((pairbase(t) if (j == 0 and t % 2 == 0) else []) +
                            [f"s_add_u32 m0, s78, {WL[t] + j*1024}", f"s_add_u32 s96, s97, {(t%2)*128*2048 + j*16384}"],
                            ["buffer_load_dwordx4 v28, s[32:35], s96 offen lds"] + ([f"@tag W{t}"] if j == 3 else [])) for j in range(4)]
        def xl(t): return [([f"s_add_u32 s73, s98, {112*2048 + (t%2)*8192 + (i//4)*4096}"] if i % 4 == 0 else [],
                            [f"buffer_load_dwordx4 a[{XR[t]+i*4}:{XR[t]+i*4+3}], v2, s[36:39], s73 offen offset:{(i%4)*1024} {F_H}"] +
                            ([f"@tag X{t}"] if i == 7 else [])) for i in range(8)]
        A("s_add_u32 s75, s26, s27" if int(opt("srot", "0")) else "s_mov_b32 s75, 0")
        L = []
        for t in range(0, 8, 2): L += wl(t) + wl(t + 1) + xl(t) + xl(t + 1)
        r1, r2 = float(opt("r1", "3.6")), float(opt("r2", "3.0"))
        p = 1.0; pos = []
        for pre, ins in L:
            q = int(p); pos.append(q)
            fill[q - 1] += pre; fill[q] += ins
            p += r1 if p < 128 else r2
        assert pos[24] > 36 and pos[72] > 116 and pos[64] > 96 and pos[80] > 128 and pos[88] > 160
        for t in range(8):
            assert pos[(t // 2) * 24 + 8 + (t % 2) * 8 + 7] < 128 + 32 * t - 1
        for i, b in enumerate((29, 45, 61, 77)): assert pos[i * 24 + 7] < 4 * b - 1
        misc = (["v_mov_b32 v27, s93", "v_xor_b32 v26, 128, v27", "s_mov_b32 s3, 0xffff0000"] + self.xaddr(16, 17) +
                [f"v_add_u32 v{160+i}, 0x20000, v{4+i}" for i in range(4)] + [f"v_mov_b32 v{i}, 0" for i in range(64, 96)])
        bt = [(0, 60, misc)]
        for j in range(4):
            a = 224 + j * 8
            it = [f"v_cvt_pk_bf16_f32 v{a+i}, v{a+2*i}, v{a+2*i+1}" for i in range(4)]
            it.append([f"buffer_store_dwordx4 v[{a}:{a+3}], v2, s[40:43], s74 offen offset:{j*1024} {SC}"] + (["@tag ps"] if j == 3 else []))
            bt.append((62 + 8 * j, 62 + 8 * j + 6, it))
        pc = int(opt("pc", "224"))
        sd, gd = int(opt("sd", "32")), int(opt("gd", "36"))
        bt.append((pc - sd, pc - sd + 1, [["global_load_dword v25, v26, s[22:23] sc1", "@tag pp"]]))
        bt.append((pc - sd + 2, pc - 1, xpart(0, 0) + xpart(0, 1)))
        it = ["@wv pp", Unc(spin(26, 22, 1, 25, True))]
        for q in range(4):
            it.append([f"buffer_load_dwordx4 v[{128+q*4}:{131+q*4}], v2, s[40:43], s77 offen offset:{q*1024} sc1", f"@tag P{q}"])
        bt.append((pc, pc + 8, it))
        bt.append((pc + 9, pc + gd - 1, xpart(1, 0) + xpart(1, 1)))
        bt.append((pc + gd, 372, sum([gpart(q) for q in range(8)], [])))
        bt.append((374, 384, fin(0, 0) + fin(0, 1)))
        bt.append((390, 391, fin(1, 0) + fin(1, 1)))
        if STAMPS and not opt("tailst"):
            for t in range(9):
                fill[127 + 32 * t] += ["s_memtime s[100:101]" if opt("cyc") else "s_memrealtime s[100:101]", "s_waitcnt lgkmcnt(0)", f"v_writelane_b32 v0, s100, {17 + t}"]
        emit_stream(A, mf, fill, bt)
        if opt("padfrom"):
            A(f"s_waitcnt vmcnt(0)\nv_readlane_b32 s30, v0, {opt('padfrom')}\ns_add_u32 s30, s30, 10000")
            A(f"Lpad{ph}:\ns_memrealtime s[100:101]\ns_waitcnt lgkmcnt(0)\ns_sub_u32 s31, s100, s30\ns_cmp_lt_i32 s31, 0\ns_cbranch_scc1 Lpad{ph}")
        stamp_out(A, 15, f"a{ph}")
        A("s_endpgm")

def kernel(A):
    name = NAME + "_kernel"
    A.raw(f".globl {name}\n.p2align 8\n.type {name},@function")
    A(f"{name}:")
    A("s_cmp_ge_u32 s2, 256\ns_cbranch_scc1 L_end")
    if STAMPS: A("s_memtime s[98:99]" if opt("cyc") else "s_memrealtime s[98:99]")
    if FAST: A("s_memrealtime s[96:97]")
    A("s_load_dwordx4 s[4:7], s[0:1], 0\ns_load_dwordx2 s[8:9], s[0:1], 16")
    A("s_load_dwordx4 s[12:15], s[0:1], 32\ns_load_dwordx4 s[16:19], s[0:1], 48\ns_load_dwordx4 s[20:23], s[0:1], 64")
    if ECPF:
        l = newlab("c")
        A(f"s_getpc_b64 s[10:11]\n{l}:\ns_sub_u32 s10, s10, {l}-{name}\ns_subb_u32 s11, s11, 0")
        A("s_lshr_b32 s30, s2, 3\ns_lshl_b32 s30, s30, 12\nv_lshl_add_u32 v28, v0, 4, s30")
        A(f"v_min_u32 v28, L_end-{name}-16, v28")
        A("global_load_dwordx4 v[120:123], v28, s[10:11]")
    A("v_and_b32 v1, 63, v0\nv_lshrrev_b32 v2, 6, v0\nv_readfirstlane_b32 s24, v2")
    A("s_and_b32 s25, s2, 7\ns_bfe_u32 s26, s2, 0x30003\ns_lshr_b32 s27, s2, 6\ns_and_b32 s29, s27, 1")
    A("s_and_b32 s28, s25, 3\ns_lshl_b32 s28, s28, 2\ns_add_u32 s28, s28, s27")
    A("s_lshl_b32 s30, s27, 3\ns_add_u32 s30, s30, s25\ns_lshl_b32 s30, s30, 3\ns_lshl_b32 s31, s26, 8\ns_add_u32 s30, s30, s31")
    A("v_lshrrev_b32 v21, 5, v0\nv_add_u32 v21, s30, v21\nv_and_b32 v22, 31, v0")
    A("v_lshlrev_b32 v20, 11, v21\nv_lshl_add_u32 v20, v22, 4, v20")
    A(f"v_lshlrev_b32 v31, 7, v22\ns_lshl_b32 s30, s26, 12\ns_add_u32 s30, s30, {XFL_OFF}\nv_add_u32 v31, s30, v31\nv_mov_b32 v24, 0")
    A("s_or_b32 s3, s25, s27\ns_xor_b32 s30, s24, 3\ns_or_b32 s3, s3, s30")
    A("s_waitcnt lgkmcnt(0)")
    if FAST:
        l = newlab("z")
        n = A.nvm
        A(f"s_cmp_lg_u32 s3, 0\ns_cbranch_scc1 {l}\ns_or_b32 s30, s96, 1\nv_mov_b32 v24, s30\ns_lshl_b32 s30, s26, 5\nv_mov_b32 v25, s30")
        A(f"s_mov_b64 exec, 1\nglobal_store_dword v25, v24, s[20:21] {SC}\ns_mov_b64 exec, -1\n{l}:")
        A.nvm = n
    elif NSY:
        l = newlab("z")
        A(f"s_cmp_lg_u32 s3, 0\ns_cbranch_scc1 {l}\nglobal_store_dword v31, v24, s[22:23] {SC}\n{l}:")
    for j in range(4):
        A(f"global_load_dwordx4 v[{64+4*j}:{67+4*j}], v20, s[4:5] offset:{512*j} {F_X0}")
    if FAST:
        A("s_lshl_b32 s30, s26, 2\ns_add_u32 s30, s30, s24\ns_lshl_b32 s30, s30, 6\nv_and_b32 v24, 15, v1\nv_add_u32 v24, s30, v24")
        A(f"v_lshlrev_b32 v125, 3, v24\nv_add_u32 v125, {STAT_OFF}, v125")
        A("v_lshlrev_b32 v24, 11, v24\nv_lshrrev_b32 v25, 4, v1\nv_lshl_add_u32 v127, v25, 4, v24")
        A(f"v_lshlrev_b32 v20, 3, v21\nv_add_u32 v20, {STAT_OFF}, v20")
    if opt("tlb"):
        A("v_lshlrev_b32 v29, 20, v1")
        A("global_load_dword v124, v29, s[22:23]")
        A("v_and_b32 v30, 3, v1\nv_lshlrev_b32 v30, 20, v30")
        A("global_load_dword v125, v30, s[18:19]")
        A("v_min_u32 v30, 6, v1\nv_lshlrev_b32 v30, 20, v30")
        A("global_load_dword v126, v30, s[16:17]\nglobal_load_dword v126, v30, s[12:13]\nglobal_load_dword v126, v30, s[14:15]")
        A("v_min_u32 v30, 5, v1\nv_lshlrev_b32 v30, 20, v30\nglobal_load_dword v126, v30, s[6:7]")
        A("v_min_u32 v30, 1, v1\nv_lshlrev_b32 v30, 20, v30\nglobal_load_dword v126, v30, s[8:9]")
    if STAMPS: A("v_writelane_b32 v0, s98, 0")
    A("v_lshlrev_b32 v2, 4, v1")
    A("v_lshrrev_b32 v24, 3, v1\ns_lshl_b32 s30, s24, 3\nv_add_u32 v24, s30, v24")
    A("v_bfe_u32 v25, v1, 4, 1\ns_and_b32 s30, s24, 1\ns_lshl_b32 s30, s30, 1\nv_or_b32 v25, s30, v25")
    A("v_bfe_u32 v26, v1, 1, 2\nv_xor_b32 v26, v26, v25\nv_lshlrev_b32 v26, 5, v26")
    A("v_and_b32 v27, 1, v1\nv_lshl_add_u32 v26, v27, 4, v26")
    A(f"v_mul_u32_u24 v{K1.VO6}, 6144, v24\nv_add_u32 v{K1.VO6}, v{K1.VO6}, v26")
    A(f"v_mul_u32_u24 v{K1.VO7}, 7168, v24\nv_add_u32 v{K1.VO7}, v{K1.VO7}, v26")
    A("v_lshrrev_b32 v24, 2, v1\ns_and_b32 s30, s24, 1\ns_lshl_b32 s30, s30, 4\nv_add_u32 v24, s30, v24")
    A("v_bfe_u32 v25, v1, 1, 1\nv_lshrrev_b32 v26, 5, v1\nv_xor_b32 v25, v25, v26\nv_lshlrev_b32 v25, 5, v25")
    A("v_lshl_add_u32 v25, v27, 4, v25")
    A(f"v_mul_u32_u24 v{K1.VOH}, 7168, v24\nv_add_u32 v{K1.VOH}, v{K1.VOH}, v25")
    A(f"v_add_u32 v{K1.VX1}, 4096, v2\nv_add_u32 v3, {144*2048}, v2")
    A(f"s_mov_b32 s72, 0\ns_mov_b32 s74, 0\ns_mov_b32 s73, {32*6144}\ns_mov_b32 s75, {32*7168}\ns_mov_b32 s76, 0")
    A("s_lshl_b32 s78, s24, 10")
    A("s_lshr_b32 s79, s24, 1\ns_lshl_b32 s79, s79, 12\ns_and_b32 s30, s24, 1\ns_lshl_b32 s30, s30, 10\ns_add_u32 s79, s79, s30")
    A("s_lshl_b32 s10, s26, 2\ns_add_u32 s10, s10, s24\ns_lshl_b32 s30, s10, 17")
    srd(A, 52, 22, "s30", 131072)
    A(f"s_mul_i32 s30, s10, {2*144*2048}\ns_add_u32 s30, s30, {ACT_OFF}")
    srd(A, 56, 22, "s30", 2 * 144 * 2048)
    A(f"s_mul_i32 s30, s28, {8*KVP_STRIDE}\ns_add_u32 s30, s30, {KVP_OFF}")
    srd(A, 60, 22, "s30", 8 * KVP_STRIDE)
    srd(A, 64, 16, 0, 3584 * 2048); srd(A, 68, 8, 0, 1024 * 2048)
    A("s_lshl_b32 s81, s2, 2\ns_add_u32 s81, s81, s24\ns_lshl_b32 s81, s81, 10\ns_mov_b32 s82, s81")
    A(f"s_mov_b32 s86, {LOG2E:#x}\ns_mov_b32 s87, {NLOG2E:#x}\ns_mov_b32 s88, {EPS6:#x}")
    A("s_lshl_b32 s89, s28, 4\ns_add_u32 s89, s89, 8")
    ob = [b for b in range(3) if b != RB]
    A(f"s_lshl_b32 s95, s26, 1\ns_bfe_u32 s30, s25, {0x10000 + ob[0]:#x}")
    if int(opt("xp", "1")): A(f"s_bfe_u32 s31, s25, {0x10000 + RB:#x}\ns_xor_b32 s30, s30, s31")
    A("s_add_u32 s95, s95, s30\ns_lshl_b32 s95, s95, 3")
    A(f"s_bfe_u32 s30, s25, {0x10000 + ob[1]:#x}\ns_lshl_b32 s30, s30, 2\ns_add_u32 s95, s95, s30\ns_add_u32 s95, s95, s27")
    A(f"s_bfe_u32 s91, s25, {0x10000 + RB:#x}")
    if RINV: A("s_xor_b32 s91, s91, 1")
    A("s_lshr_b32 s94, s95, 3\ns_lshl_b32 s94, s94, 2\ns_add_u32 s94, s94, s24\ns_lshl_b32 s94, s94, 16")
    A("s_and_b32 s30, s95, 7\ns_lshl_b32 s30, s30, 8\ns_add_u32 s94, s94, s30\ns_lshl_b32 s31, s91, 7\ns_add_u32 s94, s94, s31")
    A(f"s_lshl_b32 s92, s26, 11\ns_add_u32 s92, s92, {FLAG_OFF}")
    A(f"s_lshl_b32 s93, s95, 8\ns_add_u32 s93, s93, {FLAG_OFF + 16384}\ns_add_u32 s93, s93, s31")
    l = newlab("z")
    A(f"s_cmp_lg_u32 s24, 0\ns_cbranch_scc1 {l}")
    A("v_mov_b32 v24, 0\nv_lshl_add_u32 v25, v1, 8, s92\nv_subrev_u32 v25, 256, v25\nv_mov_b32 v26, s93")
    A("v_cmp_eq_u32 vcc, 0, v1\nv_cndmask_b32 v25, v25, v26, vcc")
    A("s_or_b32 s30, s25, s27\ns_cmp_eq_u32 s30, 0\ns_cselect_b32 s30, 63, 1\ns_mov_b32 s31, 0\ns_mov_b64 exec, s[30:31]")
    A(f"global_store_dword v25, v24, s[22:23] {SC}")
    if DYN:
        A(f"s_mov_b64 exec, 1\nv_and_b32 v26, 0xffffff7f, v26\nglobal_store_dword v26, v24, s[22:23] offset:64 {SC}")
    A("s_mov_b64 exec, -1")
    A(f"{l}:")
    A("v_xor_b32 v24, v21, v22\nv_and_b32 v24, 7, v24\nv_lshlrev_b32 v24, 4, v24\nv_lshl_add_u32 v22, v22, 7, v24")
    A("v_readfirstlane_b32 s30, v21")
    A("s_lshr_b32 s31, s30, 6\ns_lshl_b32 s31, s31, 17\ns_bfe_u32 s3, s30, 0x20004\ns_lshl_b32 s3, s3, 10\ns_add_u32 s31, s31, s3")
    A("s_and_b32 s30, s30, 8\ns_lshl_b32 s30, s30, 4\ns_add_u32 s31, s31, s30\ns_lshl_b32 s30, s24, 15\ns_add_u32 s31, s31, s30")
    A("v_lshrrev_b32 v23, 5, v1\nv_lshlrev_b32 v23, 12, v23\nv_bfe_u32 v24, v1, 3, 2\nv_lshl_add_u32 v23, v24, 8, v23")
    A("v_lshrrev_b32 v24, 3, v1\nv_xor_b32 v24, v24, v1\nv_and_b32 v24, 7, v24\nv_lshl_add_u32 v23, v24, 4, v23\nv_add_u32 v23, s31, v23")
    A("s_lshr_b32 s30, s24, 1\ns_lshl_b32 s30, s30, 15\ns_and_b32 s31, s24, 1\ns_lshl_b32 s31, s31, 12\ns_add_u32 s30, s30, s31\nv_add_u32 v21, s30, v2")
    A("v_lshrrev_b32 v24, 4, v1\nv_bfe_u32 v25, v1, 2, 2\nv_and_b32 v26, 3, v1")
    A("v_lshl_add_u32 v27, v24, 3, v25")
    A("v_lshrrev_b32 v28, 1, v25\nv_and_b32 v29, 1, v24\nv_lshl_or_b32 v28, v29, 1, v28")
    for nb in range(4):
        A(f"v_xor_b32 v30, {nb}, v28\nv_lshlrev_b32 v30, 5, v30\nv_lshl_add_u32 v30, v27, 7, v30")
        A(f"v_lshl_add_u32 v{4+nb}, v26, 3, v30\nv_add_u32 v{8+nb}, 0x10000, v{4+nb}\nv_add_u32 v{12+nb}, 0x20000, v{4+nb}")
    A("s_lshr_b32 s83, s28, 3\ns_mul_i32 s83, s83, 56\ns_bfe_u32 s30, s28, 0x20001\ns_add_u32 s83, s83, s30\ns_lshl_b32 s83, s83, 11")
    A("s_lshr_b32 s10, s28, 1\ns_mul_i32 s10, s10, 896\ns_lshl_b32 s11, s28, 7")
    NQ, NF = 1024 * 6144, 1024 * 7168
    def wsrd(d, lo, off, tot):
        A(f"s_sub_u32 s31, {tot}, {off}")
        srd(A, d, lo, off, "s31")
    k2 = K2(A)
    A("s_cmp_ge_u32 s25, 4\ns_cbranch_scc1 L1_typeQ")
    for nb in range(2):
        A(f"v_xor_b32 v30, {nb}, v29\nv_lshlrev_b32 v30, 5, v30\nv_lshl_add_u32 v30, v27, 6, v30")
        A(f"v_lshl_add_u32 v30, v26, 3, v30\nv_add_u32 v{12+nb}, 0x20000, v30")
    A("s_add_u32 s30, s11, 2048"); wsrd(32, 6, "s30", NQ)
    A("s_add_u32 s30, s11, 4096"); wsrd(36, 6, "s30", NQ)
    A("s_lshl_b32 s30, s29, 8\ns_add_u32 s30, s30, 512\ns_add_u32 s30, s30, s10")
    wsrd(40, 12, "s30", NF); wsrd(44, 14, "s30", NF)
    A("s_lshl_b32 s31, s29, 13\ns_add_u32 s83, s83, s31")
    A("s_lshl_b32 s30, s29, 6\ns_add_u32 s30, s30, 640\ns_add_u32 s30, s30, s10")
    A("s_cmp_ge_u32 s24, 2\ns_cselect_b32 s10, s14, s12\ns_cselect_b32 s11, s15, s13")
    wsrd(48, 10, "s30", NF)
    K1(A, "KV").body(k2)
    A("L1_typeQ:")
    wsrd(40, 6, "s11", NQ)
    A("s_lshl_b32 s30, s29, 8\ns_add_u32 s30, s30, s10")
    wsrd(32, 12, "s30", NF); wsrd(36, 14, "s30", NF)
    A("s_lshl_b32 s31, s29, 13\ns_add_u32 s83, s83, s31")
    A("s_add_u32 s30, s30, 128")
    wsrd(44, 12, "s30", NF); wsrd(48, 14, "s30", NF)
    A(f"s_lshl_b32 s85, s28, 12\ns_add_u32 s85, s85, {112*2048}")
    K1(A, "Q").body(k2)
    k2.body()
    A("L_end:")
    A("s_endpgm")
    A.raw('.section .rodata,"a"\n.p2align 6')
    A.raw(f".amdhsa_kernel {name}")
    for l in (".amdhsa_next_free_vgpr 512", ".amdhsa_next_free_sgpr 102", ".amdhsa_accum_offset 256", ".amdhsa_group_segment_fixed_size 0",
              ".amdhsa_kernarg_size 80", ".amdhsa_user_sgpr_count 2", ".amdhsa_user_sgpr_kernarg_segment_ptr 1",
              ".amdhsa_system_sgpr_workgroup_id_x 1", ".amdhsa_float_denorm_mode_32 3", ".end_amdhsa_kernel"):
        A.raw(l)

def main(out):
    A = Asm()
    for l in open("cdna_kernels/" + NAME + ".s.ref").read().split("\n"):
        if l.startswith("; @launch") or l.startswith("; Override") or l.startswith("; grid=ceil"): continue
        if not l.startswith(";"): break
        A.raw(l)
    if "--list" in sys.argv:
        A.raw(f"; @launch kernel={NAME}_kernel grid=(256,1,1) block=(256,1,1) lds=163840")
    else:
        A.raw("; @launch grid=(256,1,1) block=(256,1,1) lds=163840")
    A.raw('.amdgcn_target "amdgcn-amd-amdhsa--gfx950"')
    A.raw(MAC)
    A.raw(".text")
    kernel(A)
    open(out, "w").write(A.finalize())
main(sys.argv[1])
```

```python
import sys
from asmlib import Asm, MAC, cost

NAME = "recurrent_scan__linear_attn_block__glu_gated_swiglu__prompt"
XN_OFF = 0
ACT_OFF = 4 << 20
KVP_OFF = 24 << 20
KVP_STRIDE = 8448
P_OFF = 32 << 20
FLAG_OFF = (48 << 20) + (int([a for a in sys.argv if a.startswith('--fo=')][0][5:]) if any(a.startswith('--fo=') for a in sys.argv) else 0)
XFL_OFF = 49 << 20
STAT_OFF = 50 << 20
STAMP_OFF = 56 << 20
LOG2E = 0x3fb8aa3b
NLOG2E = 0xbfb8aa3b
EPS6 = 0x358637bd
EPS5 = 0x3727c5ac
SPIN = 0x40000

def opt(name, default=""):
    for a in sys.argv:
        if a.startswith("--" + name + "="): return a.split("=", 1)[1].replace("+", " ")
    return default
STAMPS = "--stamps" in sys.argv
ROT = int(opt("rot", "0"))
L2PF = int(opt("l2pf", "0"))
XFIRST = int(opt("xfirst", "1"))
WU = int(opt("wu", "10"))
RB = int(opt("rb", "2"))
RINV = int(opt("rinv", "0"))
CPF = int(opt("cpf", "1"))
ECPF = int(opt("ecpf", "1"))
W1E = int(opt("w1e", "0"))
W1J = int(opt("w1j", "4"))
NSY = int(opt("nsy", "1"))
ODEF = int(opt("odef", "0"))
FAST = int(opt("fast", "0"))
PKB = int(opt("pkb", "1"))
DYN = int(opt("dyn", "0"))
CMAP = int(opt("cmap", "0"))
NKV = int(opt("nkv", "15"))
P16 = int(opt("p16", "1"))

NA = int(opt("na", "12"))
F_X0 = opt("x0", "nt")
F_W1P = opt("w1p", "nt")
F_W1 = opt("w1", "nt")
SC = "sc0 sc1"
F_XN = opt("xn", "sc1")
F_H = opt("h", "sc1")
F_HST = opt("hst", SC)

def stamp(A, idx, tail=False):
    if not STAMPS: return
    if opt("tailst") and 16 <= idx < 26 and not tail: return
    A("s_memtime s[100:101]" if opt("cyc") else "s_memrealtime s[100:101]")
    A("s_waitcnt lgkmcnt(0)")
    A(f"v_writelane_b32 v0, s100, {idx}")
def stamp_out(A, idx, tag):
    if not STAMPS: return
    A("s_waitcnt vmcnt(0)")
    stamp(A, idx)
    A(f"s_cmp_lg_u32 s24, 0\ns_cbranch_scc1 LS_{tag}")
    A(f"s_lshl_b32 s100, s2, 7\ns_add_u32 s100, s100, {STAMP_OFF}")
    A("v_lshl_add_u32 v20, v1, 2, s100")
    A("s_mov_b64 exec, 0xffffffff")
    A("global_store_dword v20, v0, s[22:23]")
    if opt("dbgst"):
        A(f"s_cmp_lg_u32 s2, 0\ns_cbranch_scc1 LS_{tag}")
        A("v_readlane_b32 s30, v0, 0\ns_mov_b64 exec, 1")
        for w, idx in zip((1, 3, 4, 5, 7, 9, 11, 12, 13, 15), (1, 3, 5, 6, 8, 9, 11, 12, 13, 15)):
            A(f"v_readlane_b32 s31, v0, {idx}\ns_sub_u32 s31, s31, s30\nv_mov_b32 v21, s31\nv_mov_b32 v22, {w*4}")
            A("global_store_dword v22, v21, s[20:21]")
    A(f"LS_{tag}:")

def srd(A, d, lo, off, nrec):
    A(f"s_add_u32 s{d}, s{lo}, {off}")
    A(f"s_addc_u32 s{d+1}, s{lo+1}, 0")
    A(f"s_mov_b32 s{d+2}, {nrec}")
    A(f"s_mov_b32 s{d+3}, 0x20000")

_lab = [0]
def newlab(p):
    _lab[0] += 1
    return f"L{p}{_lab[0]}"

def spin(vaddr, base, target, vtmp, first_loaded=False, sleep=1, off=0):
    l, d = newlab("p"), newlab("d")
    g = []
    if first_loaded:
        g += [f"v_readfirstlane_b32 s30, v{vtmp}", f"s_cmp_ge_u32 s30, {target}", f"s_cbranch_scc1 {d}"]
    g += [f"s_mov_b32 s31, {SPIN}", f"{l}:",
          f"global_load_dword v{vtmp}, v{vaddr}, s[{base}:{base+1}] offset:{off} sc1", "s_waitcnt vmcnt(0)",
          f"v_readfirstlane_b32 s30, v{vtmp}", f"s_cmp_ge_u32 s30, {target}", f"s_cbranch_scc1 {d}",
          f"s_sleep {sleep}", "s_sub_u32 s31, s31, 1", "s_cmp_lg_u32 s31, 0", f"s_cbranch_scc1 {l}", f"{d}:"]
    return g

def signal(vaddr, base, v1, off=0):
    l = newlab("s")
    return ["s_cmp_lg_u32 s24, 0", f"s_cbranch_scc1 {l}", f"v_mov_b32 v{v1}, 1", "s_mov_b64 exec, 1",
            f"global_atomic_add v{vaddr}, v{v1}, s[{base}:{base+1}] offset:{off} sc1", "s_mov_b64 exec, -1", f"{l}:"]

def emit_group(A, it, uncounted=False):
    if isinstance(it, str): it = [it]
    for t in it: A(t)

def emit_stream(A, mf, fill, batches):
    bi = 0; pos = 0; done = 0
    def icost(it):
        if isinstance(it, str): return cost(it)
        if it and it[0].startswith('v_pk_'): return 0
        return sum(cost(t) for t in it[:6])
    tot = [sum(icost(x) for x in b[2]) for b in batches]
    for i, m in enumerate(mf):
        A(m)
        for t in fill[i]: emit_group(A, t)
        while bi < len(batches) and batches[bi][0] <= i:
            st, en, items = batches[bi]
            want = tot[bi] * min(1.0, (i - st + 1) / max(1, en - st))
            while pos < len(items) and done < want:
                emit_group(A, items[pos]); done += icost(items[pos]); pos += 1
            while pos < len(items) and icost(items[pos]) == 0:
                emit_group(A, items[pos]); pos += 1
            if pos >= len(items):
                bi += 1; pos = 0; done = 0
            else:
                break
    while bi < len(batches):
        items = batches[bi][2]
        while pos < len(items):
            emit_group(A, items[pos]); pos += 1
        bi += 1; pos = 0

def emit_sync(A, g):
    n = A.nvm
    for t in g: A(t)
    A.nvm = n
class Unc(list):
    pass
def emit_group(A, it):
    if isinstance(it, str): A(it)
    elif isinstance(it, Unc): emit_sync(A, it)
    else:
        for t in it: A(t)

class Inject:
    def __init__(self, A, L, every, skip=0): self.A, self.L, self.every, self.n = A, list(L), every, -skip
    def __call__(self, text):
        for t in text.split("\n"):
            self.A(t); self.n += 1
            if self.n <= 0: continue
            if self.L and self.n % self.every == self.every - 2 and self.L[0][0]: self.A(self.L[0][0])
            if self.L and self.n % self.every == 0: self.A(self.L.pop(0)[1])

def ln_part(A, publish=None):
    X, F, S, Vv = 64, 80, 112, 116
    A("s_mov_b32 s3, 0xffff0000")
    for i in range(16):
        A(f"v_lshlrev_b32 v{F+2*i}, 16, v{X+i}")
        A(f"v_and_b32 v{F+1+2*i}, s3, v{X+i}")
    def reduce32(r, t):
        for m in ("quad_perm:[1,0,3,2]", "quad_perm:[2,3,0,1]", "row_half_mirror", "row_mirror"):
            A(f"v_add_f32_dpp v{r}, v{r}, v{r} {m} row_mask:0xf bank_mask:0xf")
        A(f"v_mov_b32 v{t}, v{r}")
        A(f"v_permlane16_swap_b32 v{t}, v{r}")
        A(f"v_add_f32 v{r}, v{r}, v{t}")
    for i in range(2):
        A(f"v_pk_add_f32 v[{S+2*i}:{S+2*i+1}], v[{F+2*i}:{F+2*i+1}], v[{F+4+2*i}:{F+5+2*i}]")
    for b in range(2, 8):
        for i in range(2):
            A(f"v_pk_add_f32 v[{S+2*i}:{S+2*i+1}], v[{S+2*i}:{S+2*i+1}], v[{F+4*b+2*i}:{F+4*b+2*i+1}]")
    A(f"v_pk_add_f32 v[{S}:{S+1}], v[{S}:{S+1}], v[{S+2}:{S+3}]")
    A(f"v_add_f32 v{S}, v{S}, v{S+1}")
    reduce32(S, S + 1)
    A(f"v_mul_f32 v{S}, 0xba800000, v{S}")
    A(f"v_mov_b32 v{S+1}, v{S}")
    for i in range(16):
        t = X + 2 * (i % 4)
        A(f"v_pk_add_f32 v[{t}:{t+1}], v[{F+2*i}:{F+2*i+1}], v[{S}:{S+1}]")
        a = Vv + 2 * (i % 2)
        if i < 2:
            A(f"v_pk_mul_f32 v[{a}:{a+1}], v[{t}:{t+1}], v[{t}:{t+1}]")
        else:
            A(f"v_pk_fma_f32 v[{a}:{a+1}], v[{t}:{t+1}], v[{t}:{t+1}], v[{a}:{a+1}]")
    A(f"v_pk_add_f32 v[{Vv}:{Vv+1}], v[{Vv}:{Vv+1}], v[{Vv+2}:{Vv+3}]")
    A(f"v_add_f32 v{Vv}, v{Vv}, v{Vv+1}")
    A(f"v_cvt_pk_bf16_f32 v{S}, v{S}, v{S}\nv_and_b32 v{S}, s3, v{S}\nv_mov_b32 v{S+1}, v{S}")
    reduce32(Vv, Vv + 1)
    chain = [f"v_mul_f32 v{Vv}, 0x3a800000, v{Vv}", f"v_cvt_pk_bf16_f32 v{Vv}, v{Vv}, v{Vv}", f"v_and_b32 v{Vv}, s3, v{Vv}",
             f"v_add_f32 v{Vv}, {EPS5:#x}, v{Vv}", f"v_cvt_pk_bf16_f32 v{Vv}, v{Vv}, v{Vv}", f"v_and_b32 v{Vv}, s3, v{Vv}",
             f"v_sqrt_f32 v{Vv}, v{Vv}", f"v_cvt_pk_bf16_f32 v{Vv}, v{Vv}, v{Vv}", f"v_and_b32 v{Vv}, s3, v{Vv}",
             f"v_rcp_f32 v{Vv}, v{Vv}", f"v_mov_b32 v{Vv+1}, v{Vv}"]
    if publish:
        for c in chain[:8]: A(c)
        chain = chain[8:]
        publish(S, Vv)
    for i in range(16):
        a = F + 2 * i
        A(f"v_pk_add_f32 v[{a}:{a+1}], v[{a}:{a+1}], v[{S}:{S+1}]")
        if chain: A(chain.pop(0))
        A(f"v_cvt_pk_bf16_f32 v{a+1}, v{a}, v{a+1}")
        A(f"v_lshlrev_b32 v{a}, 16, v{a+1}\nv_and_b32 v{a+1}, s3, v{a+1}")
    for i in range(16):
        a = F + 2 * i
        A(f"v_pk_mul_f32 v[{a}:{a+1}], v[{a}:{a+1}], v[{Vv}:{Vv+1}]")
        A(f"v_cvt_pk_bf16_f32 v{X+i}, v{a}, v{a+1}")

def merge(a, b, f0=0.0, f1=1.0):
    i0, i1 = int(len(a) * f0), int(len(a) * f1)
    out = list(a[:i0]); b = list(b); n = len(b); done = 0
    for i, x in enumerate(a[i0:i1]):
        out.append(x)
        while b and done < n * (i + 1) // (i1 - i0):
            out.append(b.pop(0)); done += 1
    return out + b + list(a[i1:])

class K1:
    VO6, VO7, VOH, VX1 = 16, 17, 18, 19
    def __init__(self, A, typ):
        self.A = A; self.typ = typ
        ag = [4, 5, 6, 7, 16, 17, 18, 19] if typ == "Q" else [4, 5, 6, 7, 12, 13, 14, 15]
        self.acc = {}
        na = nv = 0
        for nb in range(20):
            for mb in range(4):
                if nb in ag: self.acc[(nb, mb)] = ("a", na); na += 4
                else: self.acc[(nb, mb)] = ("v", 64 + nv); nv += 4
        self.u = 0
    def q(self, nb, mb):
        f, r = self.acc[(nb, mb)]; assert f == "v"; return r
    def xfrag(self, xs, kh, mb): return 128 + xs * 32 + (kh * 4 + mb) * 4
    def reads(self, ring, nb, slot):
        out = []
        grp, sub = nb // 4, nb % 4
        for kh in range(2):
            for h4 in range(2):
                r = 32 + ring * 8 + kh * 4 + 2 * h4
                if self.typ == "KV" and grp == 4:
                    v, imm = 12 + sub % 2, slot * 8192 + (sub // 2) * 4096 + kh * 2048 + h4 * 256
                else:
                    v, imm = 4 + (grp // 2) * 4 + sub, (grp % 2) * 32768 + slot * 8192 + kh * 4096 + h4 * 512
                out.append(f"ds_read_b64_tr_b16 v[{r}:{r+1}], v{v} offset:{imm}")
        return out
    def mfmas(self, ring, nb, slot, first=False):
        out = []
        sw = self.typ == "KV" and nb < 8
        for mb in range(4):
            for kh in range(2):
                w = 32 + ring * 8 + kh * 4; x = self.xfrag(slot, kh, mb)
                wa, xa = f"v[{w}:{w+3}]", f"a[{x}:{x+3}]"
                f, r = self.acc[(nb, mb)]; acc = f"{f}[{r}:{r+3}]"
                out.append(f"v_mfma_f32_16x16x32_bf16 {acc}, {xa if sw else wa}, {wa if sw else xa}, {'0' if first and kh == 0 else acc}")
        return out
    def wloads(self, slot, fl):
        dma = []
        for grp in range(5):
            for half in range(2):
                s = 32 + 4 * grp
                isqkv = (grp == 2) if self.typ == "Q" else (grp < 2)
                if self.typ == "KV" and grp == 4:
                    pre = f"s_add_u32 m0, s79, {131072 + slot*8192 + half*2048}"
                    ins = f"buffer_load_dwordx4 v{self.VOH}, s[{s}:{s+3}], s{74+half} offen {fl} lds"
                else:
                    pre = f"s_add_u32 m0, s78, {grp*32768 + slot*8192 + half*4096}"
                    ins = f"buffer_load_dwordx4 v{self.VO6 if isqkv else self.VO7}, s[{s}:{s+3}], s{(72 if isqkv else 74)+half} offen {fl} lds"
                dma.append((pre, ins))
        return dma
    def xloads(self, slot, so=76):
        xl = []
        for kh in range(2):
            for mb in range(4):
                r = self.xfrag(slot, kh, mb)
                xl.append((None, f"buffer_load_dwordx4 a[{r}:{r+3}], v{2 if kh == 0 else self.VX1}, s[52:55], s{so} offen offset:{mb*1024} {F_XN}"))
        return xl
    def loads(self, slot):
        d, x = self.wloads(slot, F_W1), self.xloads(slot)
        L = []
        while d or x:
            if d: L.append(d.pop(0))
            if x: L.append(x.pop(0))
        return L
    def adv(self):
        return [f"s_add_u32 s72, s72, {64*6144}", f"s_add_u32 s73, s73, {64*6144}", f"s_add_u32 s74, s74, {64*7168}",
                f"s_add_u32 s75, s75, {64*7168}", "s_add_u32 s76, s76, 8192"]
    def l2pf(self):
        l = newlab("f")
        g = ["s_cmp_ge_u32 s90, 1024", f"s_cbranch_scc1 {l}", "s_mul_i32 s10, s90, 6144", "s_mul_i32 s30, s90, 7168",
             f"s_add_u32 s11, s10, {32*6144}", f"s_add_u32 s31, s30, {32*7168}"]
        for pre, ins in self.wloads(0, "nt"):
            ins = ins.replace("buffer_load_dwordx4 ", "buffer_load_dwordx4 v[28:31], ").replace(" lds", "")
            ins = ins.replace("s72", "s10").replace("s73", "s11").replace("s74", "s30").replace("s75", "s31")
            g.append(ins)
        g += [f"{l}:", "s_add_u32 s90, s90, 512"]
        return g
    def stage(self, slot, nxt_units, vmw, pf=(), lastld=False):
        ls = (slot + 3) % 4
        units = [(nb, slot) for nb in range(20)] + list(nxt_units)
        mf, fill = [], []
        for u in range(20):
            f = [[] for _ in range(8)]
            rd = self.reads((u + 2) % 4, *units[u + 2])
            if u == 18:
                f[1] += (["@wv x14", "s_waitcnt lgkmcnt(0)"] if lastld else [f"s_waitcnt vmcnt({vmw}) lgkmcnt(0)"]) + ["s_barrier"]
                for i, j in enumerate((2, 3, 4, 5)): f[j].append(rd[i])
                f[5].append("@tag t0")
            else:
                for i, j in enumerate((0, 2, 4, 6)): f[j].append(rd[i])
                if u == 19: f[6].append("@tag t1")
                f[7].append("s_waitcnt lgkmcnt(4)")
            if u == 19 and not lastld:
                a = self.adv()
                f[1] += a[0:2]; f[3] += a[2:4]; f[5] += a[4:5]
            mf += self.mfmas(u % 4, *units[u]); fill += f
        def odd(p): return p | 1
        W, X = self.wloads(ls, F_W1), self.xloads((slot + 2) % 4)
        wu = WU
        if lastld:
            X += [("s_add_u32 s76, s76, 8192" if i == 0 else None, ins) for i, (_, ins) in enumerate(self.xloads(ls))]
            wu = 10
        nx = len(X)
        if XFIRST:
            xu = 18 - wu
            pos = [odd(xu * 8 + 2 + i * (wu * 8 - 2) // 10) for i in range(10)] + [odd(2 + 2 * len(pf) + i * (xu * 8 - 2 * len(pf)) // nx) for i in range(nx)]
        else:
            pos = [odd(2 + 2 * len(pf) + i * (wu * 8 - 2 * len(pf)) // 10) for i in range(10)] + [odd(wu * 8 + 2 + i * ((18 - wu) * 8 - 2) // nx) for i in range(nx)]
        L = W + X
        for i, p in enumerate(pf): fill[1 + 2 * i] += p
        for (pre, ins), p in zip(L, pos):
            assert p < 145
            if pre: fill[p - 1].append(pre)
            fill[p].append(ins)
        fill[max(pos)].append("@tag kld")
        if lastld: fill[pos[17]].append("@tag x14")
        emit_stream(self.A, mf, fill, [])
    def stage0(self):
        units = [(nb, 0) for nb in range(20)] + [(0, 1), (1, 1)]
        mf, fill = [], []
        for u in range(20):
            f = [[] for _ in range(8)]
            rd = self.reads((u + 2) % 4, *units[u + 2])
            if u == 18:
                f[1] += ["@wv wp", "s_waitcnt lgkmcnt(0)", "s_barrier"]
                for i, j in enumerate((2, 3, 4, 5)): f[j].append(rd[i])
            else:
                for i, j in enumerate((0, 2, 4, 6)): f[j].append(rd[i])
                f[7].append("s_waitcnt lgkmcnt(4)")
            mf += self.mfmas(u % 4, *units[u], first=True); fill += f
        for i, (pre, ins) in enumerate(self.wloads(3, F_W1)):
            p = 3 + 6 * i
            fill[p - 1].append(pre); fill[p].append(ins)
        fill[61] += self.adv()[:4]
        ps, pc = int(opt("f0s", "63")), int(opt("f0c", "93"))
        fill[ps] += ["global_load_dword v25, v31, s[22:23] sc1", "@tag fs"]
        p, d = newlab("p"), newlab("d")
        chk = ["v_cmp_ne_u32 vcc, s90, v25", "s_cmp_eq_u64 vcc, 0", f"s_cbranch_scc1 {d}"]
        fill[pc] += ["@wv fs", Unc(chk + [f"s_mov_b32 s31, {SPIN}", f"{p}:", "global_load_dword v25, v31, s[22:23] sc1", "s_waitcnt vmcnt(0)"] + chk +
                                   ["s_sleep 2", "s_sub_u32 s31, s31, 1", "s_cmp_lg_u32 s31, 0", f"s_cbranch_scc1 {p}", f"{d}:"])]
        st = (158 - pc - 2) // 16
        for i, (_, ins) in enumerate(self.xloads(1) + self.xloads(2)):
            q = pc + 2 + (2 * i if i < 8 else 16 + (i - 8) * ((158 - pc - 20) // 8))
            fill[q].append(ins)
            if i in (7, 15): fill[q] += (["@tag x1"] if i == 7 else []) + ["s_add_u32 s76, s76, 8192"]
        fill[159].append("@wv x1")
        emit_stream(self.A, mf, fill, [])
    def fast_start(self):
        A = self.A; t = self.typ
        def issue(L):
            for pre, ins in L:
                if pre: A(pre)
                A(ins)
        R, U, ST = 128, 160, 224
        A("s_mul_i32 s30, s26, 24\ns_mul_i32 s31, s24, 6\ns_add_u32 s31, s31, s30\nv_add_u32 v24, s31, v1")
        A("v_mul_u32_u24 v25, 6144, v24\nv_mul_u32_u24 v24, 7168, v24")
        if t == "KV":
            A("s_and_b32 s31, s24, 1\ns_mul_i32 s31, s31, 12\ns_add_u32 s31, s31, s30\nv_add_u32 v26, s31, v1\nv_mul_u32_u24 v26, 7168, v26")
            A("s_mov_b64 exec, 0xfff")
            A(f"buffer_load_dword v124, v26, s[48:51], 0 offen {F_W1P}")
        A("s_mov_b64 exec, 63")
        for grp in range(5 if t == "Q" else 4):
            q = (grp == 2) if t == "Q" else (grp < 2)
            A(f"buffer_load_dword v124, v{25 if q else 24}, s[{32+4*grp}:{35+4*grp}], 0 offen {F_W1P}")
        A("s_mov_b64 exec, -1")
        raw = []
        for mb in range(4):
            for kh in range(2):
                r = R + (kh * 4 + mb) * 4
                raw.append(("v_add_u32 v127, 0x8000, v127" if (kh == 0 and mb) else None,
                            f"global_load_dwordx4 v[{r}:{r+3}], v127, s[4:5] offset:{kh*64}" + ("\n@tag raw" if (mb, kh) == (3, 1) else "")))
        RE = int(opt("rawe", "8"))
        issue(raw[:RE])
        A("s_lshl_b32 s10, s26, 5\ns_add_u32 s10, s20, s10\ns_addc_u32 s11, s21, 0")
        A("s_lshl_b32 s30, s26, 5\nv_mov_b32 v30, s30")
        A(f"s_waitcnt vmcnt({5 + RE})")
        stamp(A, 1)
        A("s_load_dword s90, s[10:11], 0")
        def publish(S, Vv):
            p, d = newlab("p"), newlab("d")
            A(f"v_bfi_b32 v{Vv+2}, s3, v{S}, v{Vv}")
            A(f"s_waitcnt lgkmcnt(0)\ns_cmp_lg_u32 s90, 0\ns_cbranch_scc1 {d}")
            emit_sync(A, spin(30, 20, 1, 126) + ["s_mov_b32 s90, s30", f"{d}:"])
            A(f"v_mov_b32 v{Vv+3}, s90\ns_mov_b32 s30, 1\ns_mov_b32 s31, 1\ns_mov_b64 exec, s[30:31]")
            A(f"global_store_dwordx2 v20, v[{Vv+2}:{Vv+3}], s[22:23] {SC}\ns_mov_b64 exec, -1")
            stamp(A, 10)
        def nxt(L): return [("\n".join(self.adv()[:4] + [L[0][0]]), L[0][1])] + L[1:]
        rest = raw[RE:] + self.wloads(0, F_W1P) + nxt(self.wloads(1, F_W1P)) + nxt(self.wloads(2, F_W1P))
        n1, n2 = 18 - RE, int(opt("fn2", "8"))
        inj = Inject(A, rest[:n1], 5, skip=104)
        ln_part(inj, publish)
        assert not inj.L
        for j in range(4):
            A(f"ds_write_b128 v22, v[{64+4*j}:{67+4*j}] offset:{24576 + (j%2)*4096 + (j//2)*32768}")
        A("s_waitcnt lgkmcnt(0)\ns_barrier")
        for j in range(4):
            A(f"ds_read_b128 v[{64+4*j}:{67+4*j}], v21 offset:{24576 + j*1024}")
        for j in range(4):
            A(f"s_waitcnt lgkmcnt({3-j})")
            A(f"global_store_dwordx4 v23, v[{64+4*j}:{67+4*j}], s[22:23] {SC}")
            if j < 3: A("v_add_u32 v23, 0x2000, v23")
        stamp(A, 2)
        A("@wv raw")
        inj = Inject(A, rest[n1:n1+n2], 8)
        for i in range(32):
            inj(f"v_lshlrev_b32 v{U+2*i}, 16, v{R+i}\nv_and_b32 v{U+2*i+1}, s3, v{R+i}")
        assert not inj.L
        if CPF:
            l = newlab("c")
            A(f"s_getpc_b64 s[10:11]\n{l}:\ns_sub_u32 s10, s10, {l}-{NAME}_kernel\ns_subb_u32 s11, s11, 0")
            A("s_lshr_b32 s30, s2, 3\ns_lshl_b32 s30, s30, 2\ns_add_u32 s30, s30, s24\ns_lshl_b32 s30, s30, 10")
            A(f"s_min_u32 s30, s30, L_end-{NAME}_kernel-1024\nv_add_u32 v28, s30, v2")
        A("s_mov_b32 s80, 3\ns_mov_b32 s76, 8192")
        if int(opt("fsl", "0")): A(f"s_sleep {opt('fsl')}")
        p, d = newlab("p"), newlab("d")
        A(f"s_mov_b32 s31, {SPIN}\n{p}:")
        n = A.nvm
        for mb in range(4):
            A(f"global_load_dwordx2 v[{ST+2*mb}:{ST+2*mb+1}], v125, s[22:23] offset:{mb*128} sc1")
        A.nvm = n
        A("s_waitcnt vmcnt(0)")
        A(f"v_xor_b32 v24, s90, v{ST+1}\nv_xor_b32 v25, s90, v{ST+3}\nv_xor_b32 v26, s90, v{ST+5}\nv_xor_b32 v27, s90, v{ST+7}")
        A("v_or3_b32 v24, v24, v25, v26\nv_or_b32 v24, v24, v27\nv_cmp_ne_u32 vcc, 0, v24\ns_cmp_eq_u64 vcc, 0")
        A(f"s_cbranch_scc1 {d}\ns_sleep 1\ns_sub_u32 s31, s31, 1\ns_cmp_lg_u32 s31, 0\ns_cbranch_scc1 {p}\n{d}:")
        stamp(A, 4)
        A("s_barrier")
        l = newlab("a")
        emit_sync(A, ["s_cmp_lg_u32 s24, 0", f"s_cbranch_scc1 {l}", "s_lshl_b32 s30, s27, 3", "s_add_u32 s30, s30, s25",
                      "s_lshl_b64 exec, 1, s30", "v_mov_b32 v25, s90", f"global_store_dword v31, v25, s[22:23] {SC}", "s_mov_b64 exec, -1", f"{l}:"])
        stamp(A, 3)
        for u in range(2):
            for r in self.reads(u, u, 0): A(r)
        inj = Inject(A, rest[n1+n2:], 240 // max(1, len(rest) - n1 - n2))
        for mb in range(4):
            m, r = ST + 8 + 4 * mb, ST + 10 + 4 * mb
            inj(f"v_lshlrev_b32 v{r}, 16, v{ST+2*mb}\nv_and_b32 v{m}, s3, v{ST+2*mb}\nv_rcp_f32 v{r}, v{r}\nv_mov_b32 v{m+1}, v{m}\nv_mov_b32 v{r+1}, v{r}")
        for f in range(8):
            mb = f % 4; m, r = ST + 8 + 4 * mb, ST + 10 + 4 * mb
            P = lambda x: f"v[{x}:{x+1}]"
            a = [U + 8 * f + 2 * i for i in range(4)]
            for x in a: inj(f"v_pk_add_f32 {P(x)}, {P(x)}, {P(m)}")
            for x in a: inj(f"v_cvt_pk_bf16_f32 v{x+1}, v{x}, v{x+1}")
            for x in a: inj(f"v_lshlrev_b32 v{x}, 16, v{x+1}\nv_and_b32 v{x+1}, s3, v{x+1}")
            for x in a: inj(f"v_pk_mul_f32 {P(x)}, {P(x)}, {P(r)}")
            for x in a: inj(f"v_cvt_pk_bf16_f32 v{x}, v{x}, v{x+1}")
            for i, x in enumerate(a): inj(f"v_accvgpr_write_b32 a{128+4*f+i}, v{x}")
        assert not inj.L
        A("@tag wp")
        for a in self.adv()[:4]: A(a)
        A("s_waitcnt lgkmcnt(4)")
        stamp(A, 5)
        self.stage0()
        A(f"s_branch L1{t}_s1")
    def phi(self, r, d0):
        it = [f"v_mul_f32 v{20+i}, s86, v{r+i}" for i in range(4)]
        for i in range(4):
            it += [f"v_exp_f32_e64 v{20+i}, v{20+i} clamp", f"v_max_f32 v{r+i}, s88, v{r+i}"]
        it += [f"v_add_f32 v{r+i}, v{r+i}, v{20+i}" for i in range(4)]
        it += [f"v_cvt_pk_bf16_f32 v{d0}, v{r}, v{r+1}", f"v_cvt_pk_bf16_f32 v{d0+1}, v{r+2}, v{r+3}"]
        return it
    def store_act(self, d, mb, ks, imm_k, fl):
        return f"buffer_store_dwordx4 v[{d}:{d+3}], v{2 if mb < 2 else 31 if False else 3}, s[56:59], s{ks} offen offset:{imm_k*2048 + (mb&1)*1024} {fl}"
    def gu(self, gb, ub, pos, pk=False):
        it = [f"s_add_u32 s84, s83, {pos*8192}"]
        if pk: it += ["v_mov_b32 v36, s87", "v_mov_b32 v37, s87", "v_mov_b32 v38, 1.0", "v_mov_b32 v39, 1.0"]
        P = lambda r: f"v[{r}:{r+1}]"
        for mb in range(4):
            d = self.q(gb, mb)
            for p in range(2):
                g = self.q(gb + p, mb); fu, u = self.acc[(ub + p, mb)]
                rd = [[f"v_accvgpr_read_b32 v{24+i}, a{u+i}"] if fu == "a" else [] for i in range(4)]
                if fu == "a": u = 24
                if pk: it += [f"v_pk_mul_f32 {P(20+i)}, {P(g+i)}, {P(36)}" for i in (0, 2)]
                else: it += [f"v_mul_f32 v{20+i}, s87, v{g+i}" for i in range(4)]
                for i in range(4):
                    it += [f"v_exp_f32 v{20+i}, v{20+i}"] + rd[i]
                if pk:
                    it += [f"v_pk_mul_f32 {P(g+i)}, {P(g+i)}, {P(u+i)}" for i in (0, 2)]
                    it += [f"v_pk_add_f32 {P(20+i)}, {P(20+i)}, {P(38)}" for i in (0, 2)]
                    it += [f"v_rcp_f32 v{20+i}, v{20+i}" for i in range(4)]
                    it += [f"v_pk_mul_f32 {P(g+i)}, {P(g+i)}, {P(20+i)}" for i in (0, 2)]
                else:
                    it += [f"v_add_f32 v{20+i}, 1.0, v{20+i}" for i in range(4)]
                    for i in range(4):
                        it += [f"v_rcp_f32 v{20+i}, v{20+i}", f"v_mul_f32 v{g+i}, v{g+i}, v{u+i}"]
                    it += [f"v_mul_f32 v{g+i}, v{g+i}, v{20+i}" for i in range(4)]
                it += [f"v_cvt_pk_bf16_f32 v{d+2*p}, v{g}, v{g+1}", f"v_cvt_pk_bf16_f32 v{d+2*p+1}, v{g+2}, v{g+3}"]
            it.append(self.store_act(d, mb, 84, 0, F_HST))
        return it
    def gub(self, gb, ub, pos, U):
        it = [f"s_add_u32 s84, s83, {pos*8192}"]
        P = lambda r: f"v[{r}:{r+1}]"
        T = list(range(20, 28)); carry = []; tailq = []
        for mb in range(4):
            g = [self.q(gb + p, mb) + i for p in range(2) for i in range(4)]
            src = [(self.acc[(ub + p, mb)][0], self.acc[(ub + p, mb)][1] + i) for p in range(2) for i in range(4)]
            u = [U[i // 4] + i % 4 if f == "a" else r for i, (f, r) in enumerate(src)]
            it.append(carry + [f"v_pk_mul_f32 {P(T[i])}, {P(g[i])}, s[86:87] op_sel:[0,1] op_sel_hi:[1,1]" for i in range(0, 8, 2)])
            ex = []
            for i in range(8):
                ex.append(f"v_exp_f32 v{T[i]}, v{T[i]}")
                if src[i][0] == "a": ex.append(f"v_accvgpr_read_b32 v{u[i]}, a{src[i][1]}")
            it += tailq + ex
            it.append([f"v_pk_mul_f32 {P(g[i])}, {P(g[i])}, {P(u[i])}" for i in range(0, 8, 2)] +
                      [f"v_pk_add_f32 {P(T[i])}, {P(T[i])}, s[52:53]" for i in range(0, 8, 2)])
            it += [f"v_rcp_f32 v{T[i]}, v{T[i]}" for i in range(8)]
            carry = [f"v_pk_mul_f32 {P(g[i])}, {P(g[i])}, {P(T[i])}" for i in range(0, 8, 2)]
            d = g[0]
            tailq = [f"v_cvt_pk_bf16_f32 v{d+i}, v{g[2*i]}, v{g[2*i+1]}" for i in range(4)] + [self.store_act(d, mb, 84, 0, F_HST)]
        return it + [carry] + tailq
    def phib(self, pairs):
        P = lambda r: f"v[{r}:{r+1}]"
        it = []; carry = []; tailq = []
        for k in range(0, len(pairs), 2):
            r = [pairs[k + p][0] + i for p in range(2) for i in range(4)]
            it.append(carry + [f"v_pk_mul_f32 {P(20+i)}, {P(r[i])}, s[86:87] op_sel:[0,0] op_sel_hi:[1,0]" for i in range(0, 8, 2)])
            it += tailq
            for i in range(8):
                it += [f"v_exp_f32_e64 v{20+i}, v{20+i} clamp", f"v_max_f32 v{r[i]}, s88, v{r[i]}"]
            carry = [f"v_pk_add_f32 {P(r[i])}, {P(r[i])}, {P(20+i)}" for i in range(0, 8, 2)]
            tailq = [f"v_cvt_pk_bf16_f32 v{pairs[k+p][1]+j}, v{r[4*p+2*j]}, v{r[4*p+2*j+1]}" for p in range(2) for j in range(2)]
        return it + [carry] + tailq
    def tail_units(self):
        if self.typ == "KV":
            nbs = [0,1,2,3, 4,5,6,7, 8,9,12,13, 10,11,14,15, 16,17,18,19]
        else:
            nbs = [0,1,4,5, 2,3,6,7, 8,9,10,11, 12,13,16,17, 14,15,18,19]
        return [(nb, s) for nb in nbs[:4] for s in (1, 2)] + [(nb, 3) for nb in nbs[:4]] + [(nb, s) for nb in nbs[4:] for s in (1, 2, 3)]
    def tail(self, batches):
        units = self.tail_units()
        mf, fill = [], []
        for u in range(60):
            f = [[] for _ in range(8)]
            if u == 5: f[7] += ["@wv kld", "s_barrier"]
            if u + 2 < 60:
                rd = self.reads((u + 2) % 4, *units[u + 2])
                for i, j in enumerate((0, 2, 4, 6)): f[j].append(rd[i])
                f[6].append(f"@tag t{u+2}")
            if u + 1 < 60: f[7].append(f"@wl t{u+1}")
            if STAMPS and opt("tailst") and u % 6 == 5:
                f[7] += ["s_memtime s[100:101]" if opt("cyc") else "s_memrealtime s[100:101]", "s_waitcnt lgkmcnt(0)", f"v_writelane_b32 v0, s100, {16 + u // 6}"]
            mf += self.mfmas(u % 4, *units[u]); fill += f
        emit_stream(self.A, mf, fill, batches)
    def batches_kv(self):
        B = []
        def ph(db):
            pr = [(self.q(db, mb), self.q(db, mb & 2) + 2 * (mb & 1)) for mb in range(4)]
            return self.phib(pr) if PKB else sum([self.phi(*x) for x in pr], [])
        def vp(eb):
            it = []
            for mb in range(4):
                f, r = self.acc[(4 + eb, mb)]
                d = self.q(eb, (mb & 2) + 1) + 2 * (mb & 1)
                if f == "a":
                    it += [f"v_accvgpr_read_b32 v{24+i}, a{r+i}" for i in range(4)]; r = 24
                it += [f"v_cvt_pk_bf16_f32 v{d}, v{r}, v{r+1}", f"v_cvt_pk_bf16_f32 v{d+1}, v{r+2}, v{r+3}"]
            return it
        pre = [f"v_mov_b32 v{28+i}, 0x3f803f80" for i in range(4)]
        pre += [["s_lshl_b32 s30, s24, 15", "v_add_u32 v16, s30, v2"],
                "v_lshrrev_b32 v19, 4, v1", "v_lshlrev_b32 v19, 4, v19",
                ["s_lshl_b32 s30, s24, 8", "s_add_u32 s30, s30, 0x20000", "v_add_u32 v17, s30, v19"],
                ["s_lshl_b32 s30, s24, 11", "v_add_u32 v18, s30, v2"],
                ["s_lshl_b32 s30, s24, 6", "v_add_u32 v19, s30, v19"]]
        B.append((0, 24, pre + ["s_mov_b32 s52, 1.0", "s_mov_b32 s53, 1.0"]))
        B.append((50, 78, K2.xaddr(24, 25) + K2.xres(24, 25)))
        B += [(78, 104, ph(0)), (104, 130, ph(1)), (130, 156, ph(2)), (156, 162, vp(0)), (162, 186, ph(3)),
              (186, 191, vp(1)), (191, 196, vp(2)), (198, 204, vp(3))]
        Z = 32
        it = []
        for sg in range(2):
            for hd in range(2):
                for db in range(2):
                    pk = self.q(hd * 2 + db, 2 * sg)
                    for eb in range(2):
                        vv = self.q(hd * 2 + eb, 2 * sg + 1)
                        d = ((hd * 2 + eb) * 2 + db) * 4
                        it.append(f"v_mfma_f32_16x16x32_bf16 a[{d}:{d+3}], v[{pk}:{pk+3}], v[{vv}:{vv+3}], {'0' if sg == 0 else f'a[{d}:{d+3}]'}")
                    d = Z + (hd * 2 + db) * 4
                    it.append(f"v_mfma_f32_16x16x32_bf16 a[{d}:{d+3}], v[{pk}:{pk+3}], v[28:31], {'0' if sg == 0 else f'a[{d}:{d+3}]'}")
        B.append((205, 215, it))
        it = [f"ds_write_b128 v16, a[{q*4}:{3+q*4}] offset:{q*1024}" for q in range(8)]
        it.append(["s_mov_b32 s30, 0x00010001", "s_mov_b32 s31, 0x00010001", "s_mov_b64 exec, s[30:31]"] +
                  [f"ds_write_b128 v17, a[{Z+q*4}:{Z+q*4+3}] offset:{q*64}" for q in range(4)] + ["s_mov_b64 exec, -1", "@tag kvw"])
        B.append((219, 225, it))
        it = [["@wl kvw", "s_barrier"], "v_add_u32 v16, 0x10000, v18", "v_add_u32 v17, 0x20000, v19"]
        for w in range(4):
            va = 18 if w < 2 else 16
            it.append(f"ds_read_b128 v[{64+w*12}:{67+w*12}], v{va} offset:{(w%2)*32768}")
            it.append(f"ds_read_b128 v[{68+w*12}:{71+w*12}], v{va} offset:{(w%2)*32768+1024}")
            it.append(f"ds_read_b128 v[{72+w*12}:{75+w*12}], v17 offset:{w*256}")
        it.append("@tag kvr")
        B.append((230, 237, it))
        it = ["@wl kvr"]
        for i in range(12):
            it += [f"v_add_f32 v{64+i}, v{64+i}, v{76+i}", f"v_add_f32 v{88+i}, v{88+i}, v{100+i}"]
        it += [f"v_add_f32 v{64+i}, v{64+i}, v{88+i}" for i in range(12)]
        it += [f"s_mul_i32 s10, s26, {KVP_STRIDE}", "s_add_u32 s11, s10, 8192",
               f"buffer_store_dwordx4 v[64:67], v18, s[60:63], s10 offen {SC}",
               f"buffer_store_dwordx4 v[68:71], v18, s[60:63], s10 offen offset:1024 {SC}",
               ["s_mov_b32 s30, 0x00010001", "s_mov_b32 s31, 0x00010001", "s_mov_b64 exec, s[30:31]",
                f"buffer_store_dwordx4 v[72:75], v19, s[60:63], s11 offen {SC}", "s_mov_b64 exec, -1", "@tag kvs"]]
        B.append((243, 254, it))
        g0 = self.gub(8, 12, 4, (112, 116)) if PKB else self.gu(8, 12, 4)
        k = len(g0) // 3
        pub = [["@wv kvs", "s_barrier"], "v_mov_b32 v16, s89", Unc(signal(16, 20, 17))]
        B.append((256, 286, self.k2.setup_early()))
        smp, chk = self.hA()
        xf = self.k2.xfirst()
        fa, fb = float(opt("ka", "0.2")), float(opt("kb", "0.5"))
        k = int(len(g0) * fa)
        g0 = g0 + ["@tag hA"]
        B.append((294, 384, smp + g0[:k] + pub + merge(g0[k:], self.k2.wfirst(), 0, 0.95)))
        g1 = self.gub(10, 14, 6, (112, 116)) if PKB else self.gu(10, 14, 6)
        B.append((390, 480, merge(self.h1mix(g1, 768, f=fb), chk + xf, 0.0, 0.9)))
        self.last = self.gu(16, 18, 8, pk=True)
        self.lastld = []
        return B
    def hA(self):
        return ([["global_load_dword v29, v30, s[22:23] sc1", "@tag h1s"]],
                ["@wv h1s", Unc(spin(30, 22, 16, 29, True, sleep=4))])
    def h1mix(self, g, off, after=(), f=0.3, f1=1.0):
        k = int(len(g) * f)
        pub = [["@wv hA", "s_barrier"], Unc(signal(30, 22, 31, off))]
        return g[:k] + pub + merge(g[k:], after, 0, f1)
    def pquads(self):
        return [self.q(nb, mb) for nb in (0, 1, 2, 3) for mb in range(4)] + [self.q(nb, mb) for nb in (9, 11) for mb in range(4)]
    def batches_q(self):
        B = []
        def ph(nb):
            pr = [(self.q(8 + nb, mb), self.q(8 + (nb & 2), mb) + 2 * (nb & 1)) for mb in range(4)]
            return self.phib(pr) if PKB else sum([self.phi(*x) for x in pr], [])
        pre = ["v_mov_b32 v16, s89",
               "v_lshrrev_b32 v19, 4, v1", "v_lshlrev_b32 v19, 4, v19",
               ["s_lshl_b32 s30, s24, 11", "v_add_u32 v18, s30, v2"],
               ["s_lshl_b32 s30, s24, 6", "s_add_u32 s30, s30, 8192", "v_add_u32 v19, s30, v19"]]
        B.append((0, 24, pre + ["s_mov_b32 s52, 1.0", "s_mov_b32 s53, 1.0"]))
        B.append((50, 78, K2.xaddr(24, 25) + K2.xres(24, 25)))
        B.append((78, 102, self.k2.setup_early()))
        B.append((102, 192, merge(self.gu(0, 4, 0), self.k2.l2pf(), 0, 0.8) + ["@tag hA"]))
        qa, qb, qc = float(opt("qa", "0.5")), float(opt("qb", "0.5")), float(opt("qc", "0.45"))
        wf = self.k2.wfirst()
        g1 = (self.gub(2, 6, 2, (self.q(1, 0), self.q(1, 1))) if PKB else self.gu(2, 6, 2))
        B.append((198, 288, self.h1mix(g1, 0, wf[:9], f=qa, f1=0.95) + ["@tag hA"]))
        smp, chk = self.hA()
        phq = ph(0) + ph(1) + ph(2) + ph(3)
        b = merge(self.h1mix(phq, 1024, f=qb), wf[9:] + smp, 0, qc - 0.2)
        xf = self.k2.xfirst()
        B.append((294, 388, merge(b, chk + xf[:int(opt("qx", "19"))], qc + 0.1, 1.0)))
        self.xrest = xf[int(opt("qx", "19")):]
        P = self.pquads()
        ld = []
        for p in range(8):
            ld.append([f"s_mov_b32 s10, {p*KVP_STRIDE}",
                       f"buffer_load_dwordx4 v[{P[3*p]}:{P[3*p]+3}], v18, s[60:63], s10 offen sc1"])
            ld.append(f"buffer_load_dwordx4 v[{P[3*p+1]}:{P[3*p+1]+3}], v18, s[60:63], s10 offen offset:1024 sc1")
            ld.append(f"buffer_load_dwordx4 v[{P[3*p+2]}:{P[3*p+2]+3}], v19, s[60:63], s10 offen sc1")
        ld.append("@tag kvl")
        chk = ["@wv kvp", Unc(spin(16, 20, 8, 17, True))]
        smp = ["global_load_dword v17, v16, s[20:21] sc1", "@tag kvp"]
        g2 = self.gu(12, 16, 10)
        f = float(opt("kvk", "0.3"))
        k0, k = int(len(g2) * (f - 0.25)), int(len(g2) * f)
        nl = int(opt("kvn", "25"))
        B.append((390, 480, g2[:k0] + smp + merge(g2[k0:k], self.xrest) + chk + merge(g2[k:], ld[:nl], 0, float(opt('kve', '0.7')))))
        self.lastld = ld[nl:]
        self.last = self.gu(14, 18, 12, pk=True)
        return B
    def opath1(self):
        P = self.pquads()
        it = ["@wv kvl"]
        for st in (4, 2, 1):
            for p in range(st):
                for j in range(3):
                    for i in (0, 2):
                        a, b = P[3 * p + j] + i, P[3 * (p + st) + j] + i
                        it.append(f"v_pk_add_f32 v[{a}:{a+1}], v[{a}:{a+1}], v[{b}:{b+1}]")
        for j in range(3):
            it += [f"v_cvt_pk_bf16_f32 v{40+2*j}, v{P[j]}, v{P[j]+1}", f"v_cvt_pk_bf16_f32 v{41+2*j}, v{P[j]+2}, v{P[j]+3}"]
        it += [["s_lshl_b32 s30, s24, 10", "s_add_u32 s30, s30, 0x20000", "v_add_u32 v18, s30, v2"], "ds_write_b128 v18, v[40:43]",
               ["s_lshr_b32 s30, s24, 1", "s_lshl_b32 s30, s30, 10", "s_and_b32 s31, s24, 1", "s_lshl_b32 s31, s31, 3",
                "s_add_u32 s30, s30, s31", "s_add_u32 s30, s30, 0x21000", "v_add_u32 v19, s30, v2"], "ds_write_b64 v19, v[44:45]",
               "v_add_u32 v18, 0x20000, v2"]
        return it
    def opath2(self):
        rd = [["s_waitcnt lgkmcnt(0)", "s_barrier"]] + [f"ds_read_b128 v[{40+i*4}:{43+i*4}], v18 offset:{i*1024}" for i in range(6)]
        den = lambda t: self.q(8 + 2 * (t // 4) + 1, t % 4)
        mm = ["s_waitcnt lgkmcnt(0)"]
        for t in range(8):
            pq = self.q(8 + 2 * (t // 4), t % 4); zf = 56 + (t // 4) * 4
            mm.append(f"v_mfma_f32_16x16x32_bf16 v[{den(t)}:{den(t)+3}], v[{zf}:{zf+3}], v[{pq}:{pq+3}], 0")
        side = [f"v_add_f32 v{den(t)}, s88, v{den(t)}" for t in range(8)] + [f"v_rcp_f32 v{den(t)}, v{den(t)}" for t in range(8)]
        side += [f"v_mov_b32 v{den(t)+1}, v{den(t)}" for t in range(8)]
        for t in range(8):
            pq = self.q(8 + 2 * (t // 4), t % 4); d = 64 + t * 8
            for eb in range(2):
                kf = 40 + ((t // 4) * 2 + eb) * 4
                mm.append(f"v_mfma_f32_16x16x32_bf16 v[{d+eb*4}:{d+eb*4+3}], v[{kf}:{kf+3}], v[{pq}:{pq+3}], 0")
                if t > 0:
                    for _ in range(2):
                        if side: mm.append(side.pop(0))
        mm += side
        fin = []
        for t in range(8):
            d = 64 + t * 8
            fin += [f"v_pk_mul_f32 v[{d+i}:{d+i+1}], v[{d+i}:{d+i+1}], v[{den(t)}:{den(t)+1}]" for i in range(0, 8, 2)]
            fin += [f"v_cvt_pk_bf16_f32 v{d+i}, v{d+2*i}, v{d+2*i+1}" for i in range(4)]
            if ODEF: self.k2.ostores.append(self.store_act(d, t % 4, 85, t // 4, F_HST))
            else: fin.append(self.store_act(d, t % 4, 85, t // 4, F_HST))
        return rd, mm, fin
    def body(self, k2):
        A = self.A; t = self.typ; self.k2 = k2
        def issue(L):
            for pre, ins in L:
                if pre: A(pre)
                A(ins)
        if FAST: self.fast_start()
        else:
            A("s_lshl_b32 s30, s26, 5\nv_mov_b32 v30, s30")
            if NSY:
                l = newlab("m")
                A(f"s_or_b32 s30, s25, s27\ns_xor_b32 s31, s24, 3\ns_or_b32 s30, s30, s31\ns_cmp_lg_u32 s30, 0\ns_cbranch_scc1 {l}")
                emit_sync(A, ["s_waitcnt vmcnt(4)", "v_mov_b32 v25, 1", "s_mov_b64 exec, 1", f"global_store_dword v30, v25, s[20:21] {SC}", "s_mov_b64 exec, -1", f"{l}:"])
            if int(opt("wpf", "0")):
                A("s_lshl_b32 s30, s26, 4\ns_lshl_b32 s31, s24, 2\ns_add_u32 s31, s31, s30\ns_add_u32 s31, s31, 64\nv_add_u32 v24, s31, v1")
                A("v_mul_u32_u24 v25, 6144, v24\nv_mul_u32_u24 v24, 7168, v24")
                if t == "KV":
                    A("s_and_b32 s31, s24, 1\ns_lshl_b32 s31, s31, 3\ns_add_u32 s31, s31, s30\ns_add_u32 s31, s31, 64\nv_add_u32 v26, s31, v1\nv_mul_u32_u24 v26, 7168, v26")
                    A("s_mov_b64 exec, 0xff")
                    A(f"buffer_load_dword v124, v26, s[48:51], 0 offen {F_W1P}")
                A("s_mov_b64 exec, 15")
                for grp in range(5 if t == "Q" else 4):
                    q = (grp == 2) if t == "Q" else (grp < 2)
                    A(f"buffer_load_dword v124, v{25 if q else 24}, s[{32+4*grp}:{35+4*grp}], 0 offen {F_W1P}")
                A("s_mov_b64 exec, -1")
            issue(self.wloads(0, F_W1P))
            for a in self.adv()[:4]: A(a)
            if W1E:
                issue(self.wloads(1, F_W1P))
                for a in self.adv()[:4]: A(a)
            A("s_waitcnt vmcnt(%d)" % (15 if int(opt("wpf", "0")) else 10))
            stamp(A, 1)
            inj = Inject(A, self.wloads(1, F_W1P)[:W1J], 10, skip=int(opt("w1s", "110")))
            ln_part(inj)
            assert not inj.L
            if NSY: A("global_load_dword v29, v30, s[20:21] sc1")
            for j in range(4):
                A(f"ds_write_b128 v22, v[{64+4*j}:{67+4*j}] offset:{24576 + (j%2)*4096 + (j//2)*32768}")
            A("s_waitcnt lgkmcnt(0)\ns_barrier")
            for j in range(4):
                A(f"ds_read_b128 v[{64+4*j}:{67+4*j}], v21 offset:{24576 + j*1024}")
            for j in range(4):
                A(f"s_waitcnt lgkmcnt({3-j})")
                A(f"global_store_dwordx4 v23, v[{64+4*j}:{67+4*j}], s[22:23] {SC}")
                if j < 3: A("v_add_u32 v23, 0x2000, v23")
            stamp(A, 2)
            zero = []
            for (nb, mb), (f, r) in self.acc.items():
                for i in range(4):
                    zero.append(f"v_accvgpr_write_b32 a{r+i}, 0" if f == "a" else f"v_mov_b32 v{r+i}, 0")
            zero.reverse()
            A("@tag xns")
            w2 = self.wloads(2, F_W1P)
            rest = self.wloads(1, F_W1P)[W1J:] + [("\n".join(self.adv()[:4] + [w2[0][0]]), w2[0][1])] + w2[1:]
            W1K = int(opt("w1k", "6"))
            inj = Inject(A, rest[:W1K], 6)
            for z in zero[:64]: inj(z)
            assert not inj.L
            A("@wv xns\ns_barrier")
            if NSY:
                l = newlab("a")
                emit_sync(A, ["s_cmp_lg_u32 s24, 0", f"s_cbranch_scc1 {l}"] + spin(30, 20, 1, 29, True) +
                          ["s_lshl_b32 s30, s27, 3", "s_add_u32 s30, s30, s25", "s_lshl_b64 exec, 1, s30", "v_mov_b32 v25, 1",
                           f"global_store_dword v31, v25, s[22:23] {SC}", "s_mov_b64 exec, -1", f"{l}:"])
            else:
                emit_sync(A, signal(30, 20, 25))
            stamp(A, 3)
            inj = Inject(A, rest[W1K:], 8)
            for z in zero[64:]: inj(z)
            assert not inj.L
            for a in self.adv()[:4]: A(a)
            l = newlab("w")
            A(f"s_cmp_lg_u32 s24, 0\ns_cbranch_scc1 {l}")
            if NSY:
                p, d = newlab("p"), newlab("d")
                emit_sync(A, [f"s_mov_b32 s31, {SPIN}", f"{p}:", "global_load_dword v25, v31, s[22:23] sc1", "s_waitcnt vmcnt(0)",
                              "v_cmp_ne_u32 vcc, 1, v25", "s_cmp_eq_u64 vcc, 0", f"s_cbranch_scc1 {d}", f"s_sleep {opt('nsl', '2')}",
                              "s_sub_u32 s31, s31, 1", "s_cmp_lg_u32 s31, 0", f"s_cbranch_scc1 {p}", f"{d}:"])
            else:
                A("s_waitcnt vmcnt(0)")
                emit_sync(A, spin(30, 20, 32, 25, sleep=4))
            A(f"{l}:")
            A("s_barrier")
            stamp(A, 4)
            issue(self.xloads(0))
            A("s_add_u32 s76, s76, 8192")
            issue(self.xloads(1))
            A("s_add_u32 s76, s76, 8192")
            A("s_waitcnt vmcnt(8)")
            stamp(A, 5)
            for u in range(2):
                for r in self.reads(u, u, 0): A(r)
            A("s_mov_b32 s80, 3")
            if CPF:
                l = newlab("c")
                A(f"s_getpc_b64 s[10:11]\n{l}:\ns_sub_u32 s10, s10, {l}-{NAME}_kernel\ns_subb_u32 s11, s11, 0")
                A("s_lshr_b32 s30, s2, 3\ns_lshl_b32 s30, s30, 2\ns_add_u32 s30, s30, s24\ns_lshl_b32 s30, s30, 10")
                A(f"s_min_u32 s30, s30, L_end-{NAME}_kernel-1024\nv_add_u32 v28, s30, v2")
            A("s_waitcnt lgkmcnt(4)")
        A.raw(".p2align 6")
        A(f"L1{t}_loop:")
        pw2 = ["buffer_load_dwordx4 v[20:23], v2, s[64:67], s81 offen", "s_add_u32 s81, s81, 0x100000"]
        pwo = ["buffer_load_dwordx4 v[20:23], v2, s[68:71], s82 offen", "s_add_u32 s82, s82, 0x100000"]
        px = ["buffer_load_dwordx4 v[24:27], v2, s[96:99], s94 offen", "s_add_u32 s94, s94, 0x100000"]
        pfs = [[pw2], [pw2], [pw2], [pwo]]
        if opt("nopf"): pfs = [[], [], [], []]
        if CPF: pfs[1].append(["global_load_dwordx4 v[28:31], v31, s[100:101]" if False else "global_load_dwordx4 v[24:27], v28, s[10:11]"])
        for s in range(4):
            n = (s + 1) % 4
            if s == 1: A(f"L1{t}_s1:")
            self.stage(s, [(0, n), (1, n)], 18 + len(pfs[s]), pf=pfs[s])
        A(f"s_sub_u32 s80, s80, 1\ns_cmp_lg_u32 s80, 0\ns_cbranch_scc1 L1{t}_loop")
        stamp(A, 6)
        self.stage(0, self.tail_units()[:2], 18, lastld=True)
        stamp(A, 7)
        self.tail(self.batches_kv() if t == "KV" else self.batches_q())
        stamp(A, 8)
        last = [["global_load_dword v29, v30, s[22:23] offset:1024 sc1", "@tag h2s"]] + self.last
        if t == "Q":
            n = len(last); rd, mm, fin = self.opath2()
            a, b, c = int(n * float(opt("oa", "0.05"))), int(n * float(opt("ob", "0.2"))), int(n * float(opt("oc", "0.35")))
            st = lambda i: [["s_memtime s[100:101]", "s_waitcnt lgkmcnt(0)", f"v_writelane_b32 v0, s100, {i}"]] if (STAMPS and opt("ost")) else []
            o1 = self.opath1()
            last = (merge(last[:a], self.lastld, 0, 0.6) + st(26) + o1[:1] + st(27) + o1[1:] + st(28) + last[a:b] + rd + st(29) + last[b:c] + mm + st(30) +
                    merge(last[c:], fin))
        for x in last: emit_group(A, x)
        stamp(A, 9)
        k2.setup()
        A(f"s_mov_b32 s51, {int(t == 'Q')}")
        for z in k2.zero(): A(z)
        stamp(A, 11)
        k2.pre()
        A("s_branch L2_start")

class K2:
    def __init__(self, A): self.A = A; self.ostores = []
    def issue(self, L):
        for pre, ins in L:
            if pre: self.A(pre)
            self.A(ins)
    def xfrag(self, slot, k, mb): return slot * 32 + (k * 2 + mb) * 4
    def reads(self, ring, nb, slot, kp):
        out = []
        for k2 in range(2):
            for h in range(2):
                r = 32 + ring * 8 + k2 * 4 + 2 * h
                imm = (slot & 1) * 32768 + (nb >> 2) * 16384 + (kp * 2 + k2) * 4096 + h * 2048
                out.append(f"ds_read_b64_tr_b16 v[{r}:{r+1}], v{4 + (slot >> 1) * 4 + (nb & 3)} offset:{imm}")
        return out
    def mfmas(self, ring, nb, slot, kp, accb):
        out = []
        for mb in range(2):
            for k2 in range(2):
                w = 32 + ring * 8 + k2 * 4; x = self.xfrag(slot, kp * 2 + k2, mb); a = accb + (nb * 2 + mb) * 4
                out.append(f"v_mfma_f32_16x16x32_bf16 v[{a}:{a+3}], v[{w}:{w+3}], a[{x}:{x+3}], v[{a}:{a+3}]")
        return out
    def wloads(self, slot, so=72, ngrp=2):
        L = []
        for j in range(4):
            for grp in range(ngrp):
                d = (32, 44)[grp]
                L.append((f"s_add_u32 m0, s78, {slot*32768 + grp*16384 + j*1024}",
                          f"buffer_load_dwordx4 v28, s[{d}:{d+3}], s{(72, 96, 97, 98)[j]} offen lds"))
        return L
    def xloads(self, slot, va=None):
        L = []
        for k in range(4):
            for mb in range(2):
                r = self.xfrag(slot, k, mb)
                L.append((None, f"buffer_load_dwordx4 a[{r}:{r+3}], v2, s[36:39], s{73 if k < 2 else 76} offen offset:{((k&1)*2+mb)*1024} {F_H}"))
        return L
    def loads(self, slot, ngrp):
        d, x = self.wloads(slot, ngrp=ngrp), self.xloads(slot)
        if opt("hk2") == "halfx": x = [(p, i if n % 2 else i.replace("s[36:39]", "s[64:67]")) for n, (p, i) in enumerate(x)]
        if opt("hk2") == "nox": x = [(p, i.replace("s[36:39]", "s[64:67]")) for n, (p, i) in enumerate(x)]
        if ngrp == 2 and opt("k2c") == "wx": return d + x
        if ngrp == 2 and opt("k2c") == "xw": return x + d
        if ngrp == 2: return [y for p in zip(d, x) for y in p]
        return [y for i in range(4) for y in (d[i], x[2*i], x[2*i+1])]
    ORDER = [0, 4, 1, 5, 8, 12, 9, 13, 10, 11, 2, 6, 3, 7]
    def advx(self):
        if opt("hk2") == "xl2": return ["s_xor_b32 s73, s73, 8192", "s_xor_b32 s76, s76, 8192"]
        return ["s_add_u32 s73, s73, 8192", "s_add_u32 s76, s76, 8192"]
    def woff(self): return [f"s_add_u32 s{95+j}, s72, {j*16384}" for j in (1, 2, 3)]
    def advw(self, perm=True):
        if perm: return ["s_lshr_b64 s[48:49], s[48:49], 4", "s_and_b32 s72, s48, 15", "s_lshl_b32 s72, s72, 16", "s_add_u32 s72, s72, s75"] + self.woff()
        return [f"s_add_u32 s72, s72, {128*2048}"] + self.woff()
    def adv(self, perm=True):
        return ["s_add_u32 s99, s99, 1", "s_add_u32 s73, s73, s66",
                ["s_cmp_eq_u32 s99, 14", "s_cselect_b32 s75, s64, s75", "s_cselect_b32 s73, s65, s73", "s_cselect_b32 s66, s68, s66"],
                "s_add_u32 s76, s73, 4096"] + self.advw(perm)
    def setup_early(self):
        class Rec(list):
            def __call__(self, t): self.extend(t.split("\n"))
        it = ["v_lshrrev_b32 v29, 4, v1", "v_bfe_u32 v28, v1, 1, 2", "v_xor_b32 v28, v28, v29", "v_lshlrev_b32 v28, 5, v28",
              "v_and_b32 v29, 1, v1", "v_lshl_add_u32 v28, v29, 4, v28", "v_lshrrev_b32 v29, 3, v1", "v_lshl_add_u32 v28, v29, 11, v28"]
        def grp(f):
            r = Rec(); f(r); it.append(list(r))
        grp(lambda A: A("s_lshl_b32 s78, s24, 12\ns_and_b32 s79, s94, 0x7ff"))
        grp(lambda A: (A(f"s_sub_u32 s31, {3584*2048}, s79"), srd(A, 32, 16, "s79", "s31")))
        grp(lambda A: (A(f"s_xor_b32 s30, s79, {512 if CMAP else 128}\ns_sub_u32 s31, {3584*2048}, s30"), srd(A, 44, 16, "s30", "s31")))
        grp(lambda A: (A("s_lshr_b32 s30, s95, 3\ns_lshl_b32 s30, s30, 2\ns_add_u32 s30, s30, s24"),
                       A(f"s_mul_i32 s30, s30, {144*2048}\ns_add_u32 s30, s30, {ACT_OFF}"), srd(A, 36, 22, "s30", 144 * 2048)))
        grp(lambda A: (A(f"s_lshl_b32 s30, s95, 16\ns_lshl_b32 s31, s24, 14\ns_add_u32 s30, s30, s31\ns_add_u32 s30, s30, {P_OFF}"),
                       srd(A, 40, 22, "s30", 16384)))
        grp(lambda A: A("s_lshl_b32 s74, s91, 13\ns_xor_b32 s77, s74, 8192"))
        tab = sum(c << (4 * i) for i, c in enumerate(self.ORDER + self.ORDER[:11:-1]))
        grp(lambda A: A(f"s_mov_b32 s48, {tab & 0xffffffff:#x}\ns_mov_b32 s49, {tab >> 32:#x}"))
        grp(lambda A: A(f"s_lshl_b32 s75, s91, 2\ns_add_u32 s75, s75, s24\ns_mul_i32 s75, s75, {14*32*2048}\ns_mov_b32 s72, s75"))
        grp(lambda A: A(f"s_mul_i32 s73, s91, {14*8192}\ns_add_u32 s76, s73, 4096\ns_mov_b32 s80, 3\ns_mov_b32 s50, 32"))
        grp(lambda A: A(f"s_xor_b32 s30, s91, 1\ns_lshl_b32 s64, s30, 2\ns_add_u32 s64, s64, s24\ns_mul_i32 s64, s64, {14*32*2048}"
                        f"\ns_mul_i32 s65, s30, {14*8192}\ns_add_u32 s65, s65, {13*8192}"))
        grp(lambda A: A("s_mov_b32 s66, 8192\ns_mov_b32 s68, -8192\ns_mov_b32 s99, 2"))
        grp(lambda A: A("s_mov_b32 s67, 12" if DYN else f"s_cmp_lt_u32 s25, 4\ns_cselect_b32 s67, {NKV}, {28-NKV}"))
        it.append(self.woff())
        it.append("v_mov_b32 v30, s92")
        if opt("hk2"): it.append("s_mov_b32 s66, 0")
        return it
    def l2pf(self):
        if not int(opt("l2w", "0")): return []
        it = [["s_bitcmp1_b32 s26, 0", "s_cselect_b32 s64, s44, s32", "s_cselect_b32 s65, s45, s33", "s_cselect_b32 s66, s46, s34"],
              ["s_lshr_b32 s81, s26, 1", "s_lshl_b32 s81, s81, 14", "s_add_u32 s81, s81, s75"]]
        n = int(opt("l2n", "14"))
        for c in reversed(self.ORDER[2:n]):
            it.append([f"s_add_u32 s82, s81, {c << 16}", "buffer_load_dwordx4 a[144:147], v28, s[64:67], s82 offen"])
        return it
    def wfirst(self):
        g = lambda LL: [[pre, "s_nop 0", ins] for pre, ins in LL]
        return g(self.wloads(0)) + [self.advw()] + g(self.wloads(1)) + [self.advw()]
    def xfirst(self):
        return [i for _, i in self.xloads(0)] + ["@tag k20", self.advx()] + [i for _, i in self.xloads(1)] + [self.advx()]
    def setup(self):
        A = self.A
        A("v_lshrrev_b32 v12, 2, v1\nv_bfe_u32 v13, v1, 3, 2\nv_and_b32 v14, 3, v1")
        for nb in range(4):
            A(f"v_xor_b32 v15, {nb}, v13\nv_lshlrev_b32 v15, 5, v15\nv_lshl_add_u32 v15, v12, 7, v15")
            A(f"v_lshl_add_u32 v{4+nb}, v14, 3, v15\nv_add_u32 v{8+nb}, 0x10000, v{4+nb}")
    @staticmethod
    def xaddr(a, b):
        return [f"v_and_b32 v{a}, 15, v1", f"v_lshlrev_b32 v{a}, 11, v{a}", f"v_bfe_u32 v{b}, v1, 4, 1", f"v_lshl_add_u32 v{a}, v{b}, 5, v{a}",
                f"v_lshrrev_b32 v{b}, 5, v1", f"v_lshl_add_u32 v{a}, v{b}, 4, v{a}", f"v_add_u32 v{a}, s94, v{a}", f"v_add_u32 v{b}, {16*2048}, v{a}"]
    @staticmethod
    def xres(a, b):
        it = []
        for mb in range(2):
            for p in range(2):
                r = 128 + (p * 2 + mb) * 4
                it.append(f"global_load_dwordx4 a[{r}:{r+3}], v{(a, b)[mb]}, s[4:5] offset:{p*64} {F_X0}")
        return it
    def zero(self):
        return [f"v_mov_b64 v[{i}:{i+1}], 0" for i in range(192, 256, 2)]
    def run(self, units, nxt, accb, ld, bar, batches=()):
        n = len(units); al = list(units) + list(nxt)
        mf, fill = [], [[] for _ in range(4 * n)]
        for u in range(n):
            if u in bar:
                fill[4 * u - 1] += [bar[u], "s_barrier"] if isinstance(bar[u], str) else list(bar[u])
            if u + 3 < len(al):
                rd = self.reads((u + 3) % 4, *al[u + 3])
                if opt("hack"):
                    for i in (0, 2): fill[4 * u + i].append(rd[i])
                else:
                    for i in range(4): fill[4 * u + i].append(rd[i])
            rem = min(len(al), u + 4) - (u + 2)
            if opt("hack"):
                if u % 2 == 1: fill[4 * u + 3].append("s_waitcnt lgkmcnt(4)")
            elif u + 1 < len(al): fill[4 * u + 3].append(f"s_waitcnt lgkmcnt({4 * max(rem, 0)})")
            mf += self.mfmas(u % 4, *units[u], accb)
        for slot, ngrp, post, *pos in ([ld] if isinstance(ld, tuple) else (ld or [])):
            L = self.loads(slot, ngrp)
            p0, span = pos if pos else (0, 4 * n - 4 if n == 8 else 48)
            for i, (pre, ins) in enumerate(L):
                p = p0 + i * span // len(L)
                if pre: fill[p].append(pre)
                fill[p + 1].append(ins)
            fill[p + 1].append(f"@tag ld{slot}")
            a = self.adv(ngrp == 2)
            for i in range(0, len(a), 2): fill[min(p + 2 + i // 2, 4 * n - 1)] += a[i:i+2]
            assert not post
        emit_stream(self.A, mf, fill, list(batches))
    def pre(self):
        A = self.A
        A("v_mov_b32 v24, s92\nv_add_u32 v26, 256, v24\nv_add_u32 v27, 512, v24")
        A("s_and_b32 s30, s25, 4\ns_lshl_b32 s30, s30, 6\nv_add_u32 v24, s30, v26")
        if int(opt("cpf2", "0")):
            l = newlab("c")
            A(f"s_getpc_b64 s[10:11]\n{l}:\ns_add_u32 s10, s10, L2_loop-{l}\ns_addc_u32 s11, s11, 0")
            A("s_bfe_u32 s30, s2, 0x30003\ns_lshl_b32 s30, s30, 2\ns_add_u32 s30, s30, s24\ns_lshl_b32 s30, s30, 10")
            A("s_min_u32 s30, s30, L_end-L2_loop-1024\nv_add_u32 v18, s30, v2")
        if DYN:
            A("s_andn2_b32 s30, s93, 128\ns_add_u32 s30, s30, 64\nv_mov_b32 v22, s30\nv_mov_b32 v21, 1\nv_mov_b32 v23, 99")
            A("v_lshlrev_b32 v20, 2, v1\nv_add_u32 v20, 0x27000, v20")
        A("@wv h2s")
        emit_sync(A, spin(30, 22, 16, 29, True, sleep=4, off=1024))
        A("s_barrier")
    def sunits(self, slot, order=range(8)): return [(nb, slot, kp) for nb in order for kp in range(2)]
    def body(self):
        A = self.A
        A("L2_start:")
        stamp(A, 12)
        for u in range(3):
            for r in self.reads(u, *self.sunits(0)[u]): A(r)
        A("s_waitcnt lgkmcnt(8)")
        A.raw(".p2align 6")
        A("L2_loop:")
        phs = range(4) if DYN else sorted({(NKV - 2) % 4, (26 - NKV) % 4})
        for s in range(4):
            bt = [(56, 57, ["global_load_dword v25, v26, s[22:23] sc1"])] if s == 2 else []
            if s == 0:
                l = newlab("g")
                bt = [(52, 53, [Unc(["s_lshl_b32 s30, s24, 2", "s_add_u32 s30, s30, s80", "s_cmp_lg_u32 s30, 3", f"s_cbranch_scc1 {l}",
                                     "v_mov_b32 v25, 1", "s_mov_b64 exec, 1", "global_atomic_add v24, v25, s[22:23] sc1",
                                     "s_mov_b64 exec, -1", f"{l}:"])]),
                      (56, 57, ["global_load_dword v29, v30, s[22:23] offset:768 sc1"])]
            if s == 1: bt = [(62, 63, [Unc(spin(30, 22, 16, 29, True, sleep=2, off=768))])]
            if s == 3 and int(opt("cpf2", "0")):
                bt.append((54, 55, ["global_load_dwordx4 v[12:15], v18, s[10:11]"]))
            bar = ["s_waitcnt vmcnt(16)", "s_barrier"]
            if DYN:
                l1, l2 = newlab("a"), newlab("b")
                g = ["s_lshl_b32 s30, s24, 8", "s_sub_i32 s30, s99, s30", "s_cmp_lt_i32 s30, 11"]
                bt.insert(0, (0, 1, [Unc(g + [f"s_cbranch_scc1 {l1}", "s_mov_b64 exec, 1", "global_atomic_add v23, v22, v21, s[22:23] sc0 sc1",
                                              "s_mov_b64 exec, -1", f"{l1}:"])]))
                bar = ["s_waitcnt vmcnt(16)",
                       g[:2] + ["s_cmp_lt_i32 s30, 12", f"s_cbranch_scc1 {l2}", f"ds_write_b32 v20, v23 offset:{(s % 2) * 256}", "s_waitcnt lgkmcnt(0)", f"{l2}:"],
                       "s_barrier", f"ds_read_b32 v19, v20 offset:{(s % 2) * 256}"]
            self.run(self.sunits(s), self.sunits((s + 1) % 4)[:3], 192, ((s + 2) % 4, 2, [], 1, 47), {13: bar}, bt)
            if s == 3:
                emit_sync(A, spin(26, 22, 16, 25, True))
                A("v_mov_b32 v26, v27\ns_mov_b32 s80, 0")
            if DYN:
                A("v_readfirstlane_b32 s30, v19\ns_cmp_lt_u32 s30, 4\ns_cselect_b32 s30, s99, 0\ns_cmp_eq_u32 s30, s67\ns_addc_u32 s67, s67, 0")
            if (s + 1) % 4 in phs: A(f"s_cmp_ge_u32 s99, s67\ns_cbranch_scc1 L2_fin{(s + 1) % 4}")
        A("s_branch L2_loop")
        for ph in phs: self.final(ph)
    def final(self, ph):
        A = self.A
        A(f"L2_fin{ph}:")
        stamp(A, 13)
        if STAMPS: A("s_mul_i32 s30, s67, 100\nv_readlane_b32 s31, v0, 0\ns_add_u32 s30, s30, s31\nv_writelane_b32 v0, s30, 14")
        A("@tag k2l")
        A(f"s_add_u32 s32, s8, s79\ns_addc_u32 s33, s9, 0\ns_sub_u32 s34, {1024*2048}, s79\ns_lshl_b32 s72, s24, 16")
        def gpart(q):
            o, p = 192 + q * 4, 128 + q * 4
            if P16:
                it = [f"@wv P{q//2}"] if q % 2 == 0 else []
                pp = 128 + q * 2
                it += [f"v_lshlrev_b32 v20, 16, v{pp}", f"v_and_b32 v21, s3, v{pp}", f"v_lshlrev_b32 v22, 16, v{pp+1}", f"v_and_b32 v23, s3, v{pp+1}"]
                it += [f"v_add_f32 v{o+i}, v{o+i}, v{20+i}" for i in range(4)]
            else:
                it = [f"@wv P{q}"]
                it += [f"v_add_f32 v{o+i}, v{o+i}, v{p+i}" for i in range(4)]
            it += [f"v_mul_f32 v{20+i}, s87, v{o+i}" for i in range(4)]
            it += [f"v_exp_f32 v{20+i}, v{20+i}" for i in range(4)]
            it += [f"v_add_f32 v{20+i}, 1.0, v{20+i}" for i in range(4)]
            it += [f"v_rcp_f32 v{20+i}, v{20+i}" for i in range(4)]
            it += [f"v_mul_f32 v{o+i}, v{o+i}, v{20+i}" for i in range(4)]
            return it
        def xpart(p, mb):
            r = 128 + (p * 2 + mb) * 4
            q0, q1 = 96 + ((2 * p) * 2 + mb) * 4, 96 + ((2 * p + 1) * 2 + mb) * 4
            it = [f"v_accvgpr_read_b32 v{12+i}, a{r+i}" for i in range(4)]
            it += ["v_permlane16_swap_b32 v12, v14", "v_permlane16_swap_b32 v13, v15"]
            for q, s in ((q0, 12), (q1, 14)):
                it += [f"v_lshlrev_b32 v{q}, 16, v{s}", f"v_and_b32 v{q+1}, s3, v{s}", f"v_lshlrev_b32 v{q+2}, 16, v{s+1}", f"v_and_b32 v{q+3}, s3, v{s+1}"]
            return it
        def fin(p, mb):
            it = []
            qs = [(2 * p) * 2 + mb, (2 * p + 1) * 2 + mb]
            for q in qs:
                it += [f"v_fmac_f32 v{96+q*4+i}, v{64+q*4+i}, v{192+q*4+i}" for i in range(4)]
            d = 192 + qs[0] * 4
            for j, q in enumerate(qs):
                it += [f"v_cvt_pk_bf16_f32 v{d+2*j}, v{96+q*4}, v{97+q*4}", f"v_cvt_pk_bf16_f32 v{d+2*j+1}, v{98+q*4}, v{99+q*4}"]
            it += [f"v_permlane16_swap_b32 v{d}, v{d+2}", f"v_permlane16_swap_b32 v{d+1}, v{d+3}",
                   f"global_store_dwordx4 v{16+mb}, v[{d}:{d+3}], s[18:19] offset:{p*64} {opt('out', 'nt')}"]
            return it
        l = newlab("f")
        flag = Unc(["s_cmp_lg_u32 s24, 0", f"s_cbranch_scc1 {l}", "v_mov_b32 v25, 1", "s_mov_b64 exec, 1",
                    f"global_store_dword v27, v25, s[22:23] {SC}", "s_mov_b64 exec, -1", f"{l}:"])
        S = [(ph + i) % 4 for i in range(4)]
        un = self.sunits(S[0], [0, 1, 4, 5, 6, 7]) + self.sunits(S[1], [4, 5, 6, 7]) + self.sunits(S[0], [2, 3]) + self.sunits(S[1], [0, 1, 2, 3])
        WL = [S[2]*32768, S[2]*32768+16384, S[3]*32768, S[3]*32768+16384, 131072, 147456, S[0]*32768, S[0]*32768+16384]
        XR = [S[2]*32, S[3]*32, 144, 176, 208, S[0]*32, S[1]*32, S[2]*32]
        def sreads(ring, t, nb, kp):
            out = []
            base = WL[t]; v = (4, 8, 160)[base >> 16] + nb
            for k2 in range(2):
                for h in range(2):
                    r = 32 + ring * 8 + k2 * 4 + 2 * h
                    out.append(f"ds_read_b64_tr_b16 v[{r}:{r+1}], v{v} offset:{(base & 0xffff) + (kp * 2 + k2) * 4096 + h * 2048}")
            return out
        def smf(ring, t, nb, kp):
            out = []
            for mb in range(2):
                for k2 in range(2):
                    w = 32 + ring * 8 + k2 * 4; x = XR[t] + ((kp * 2 + k2) * 2 + mb) * 4; a = 64 + (nb * 2 + mb) * 4
                    out.append(f"v_mfma_f32_16x16x32_bf16 v[{a}:{a+3}], v[{w}:{w+3}], a[{x}:{x+3}], v[{a}:{a+3}]")
            return out
        sun = [(t, nb, kp) for t in range(8) for nb in range(4) for kp in range(2)]
        N = 96
        rdu = lambda u: self.reads(u % 4, *un[u]) if u < 32 else sreads(u % 4, *sun[u - 32])
        mfu = lambda u: self.mfmas(u % 4, *un[u], 192) if u < 32 else smf(u % 4, *sun[u - 32])
        mf, fill = [], [[] for _ in range(4 * N)]
        bars = {9: "@wv k2l", 29: "@wv W1", 45: "@wv W3", 61: "@wv W5", 77: "@wv W7", int(opt("fb", "37")): "@wv ps"}
        for u in range(N):
            if u in bars: fill[4 * u - 1] += [bars[u], "s_barrier"] + ([flag] if bars[u] == "@wv ps" else [])
            if u >= 32 and u % 8 == 0: fill[4 * u - 1].append(f"@wv X{(u - 32) // 8}")
            if u + 3 < N:
                for i, r in enumerate(rdu(u + 3)): fill[4 * u + i].append(r)
            if u + 1 < N: fill[4 * u + 3].append(f"s_waitcnt lgkmcnt({4 * max(min(N, u + 4) - (u + 2), 0)})")
            mf += mfu(u)
        def pairbase(t): return [f"s_add_u32 s98, s75, {t//2}", "s_and_b32 s98, s98, 3", "s_lshl_b32 s97, s98, 19", "s_add_u32 s97, s97, s72",
                                 "s_lshl_b32 s98, s98, 14"]
        def wl(t): return [((pairbase(t) if (j == 0 and t % 2 == 0) else []) +
                            [f"s_add_u32 m0, s78, {WL[t] + j*1024}", f"s_add_u32 s96, s97, {(t%2)*128*2048 + j*16384}"],
                            ["buffer_load_dwordx4 v28, s[32:35], s96 offen lds"] + ([f"@tag W{t}"] if j == 3 else [])) for j in range(4)]
        def xl(t): return [([f"s_add_u32 s73, s98, {112*2048 + (t%2)*8192 + (i//4)*4096}"] if i % 4 == 0 else [],
                            [f"buffer_load_dwordx4 a[{XR[t]+i*4}:{XR[t]+i*4+3}], v2, s[36:39], s73 offen offset:{(i%4)*1024} {F_H}"] +
                            ([f"@tag X{t}"] if i == 7 else [])) for i in range(8)]
        A("s_add_u32 s75, s26, s27" if int(opt("srot", "0")) else "s_mov_b32 s75, 0")
        L = []
        for t in range(0, 8, 2): L += wl(t) + wl(t + 1) + xl(t) + xl(t + 1)
        r1, r2 = float(opt("r1", "3.6")), float(opt("r2", "3.0"))
        p = 1.0; pos = []
        for pre, ins in L:
            q = int(p); pos.append(q)
            fill[q - 1] += pre; fill[q] += ins
            p += r1 if p < 128 else r2
        assert pos[24] > 36 and pos[72] > 116 and pos[64] > 96 and pos[80] > 128 and pos[88] > 160
        for t in range(8):
            assert pos[(t // 2) * 24 + 8 + (t % 2) * 8 + 7] < 128 + 32 * t - 1
        for i, b in enumerate((29, 45, 61, 77)): assert pos[i * 24 + 7] < 4 * b - 1
        misc = (["v_mov_b32 v27, s93", "v_xor_b32 v26, 128, v27", "s_mov_b32 s3, 0xffff0000"] + self.xaddr(16, 17) +
                [f"v_add_u32 v{160+i}, 0x20000, v{4+i}" for i in range(4)] + [f"v_mov_b32 v{i}, 0" for i in range(64, 96)])
        bt = [(0, 60, misc)]
        for j in range(4):
            a = 224 + j * 8
            it = [f"v_cvt_pk_bf16_f32 v{a+i}, v{a+2*i}, v{a+2*i+1}" for i in range(4)]
            it.append([f"buffer_store_dwordx4 v[{a}:{a+3}], v2, s[40:43], s74 offen offset:{j*1024} {SC}"] + (["@tag ps"] if j == 3 else []))
            bt.append((62 + 8 * j, 62 + 8 * j + 6, it))
        pc = int(opt("pc", "224"))
        sd, gd = int(opt("sd", "32")), int(opt("gd", "36"))
        bt.append((pc - sd, pc - sd + 1, [["global_load_dword v25, v26, s[22:23] sc1", "@tag pp"]]))
        bt.append((pc - sd + 2, pc - 1, xpart(0, 0) + xpart(0, 1)))
        it = ["@wv pp", Unc(spin(26, 22, 1, 25, True))]
        for q in range(4):
            it.append([f"buffer_load_dwordx4 v[{128+q*4}:{131+q*4}], v2, s[40:43], s77 offen offset:{q*1024} sc1", f"@tag P{q}"])
        bt.append((pc, pc + 8, it))
        bt.append((pc + 9, pc + gd - 1, xpart(1, 0) + xpart(1, 1)))
        bt.append((pc + gd, 372, sum([gpart(q) for q in range(8)], [])))
        bt.append((374, 384, fin(0, 0) + fin(0, 1)))
        bt.append((390, 391, fin(1, 0) + fin(1, 1)))
        if STAMPS and not opt("tailst"):
            for t in range(9):
                fill[127 + 32 * t] += ["s_memtime s[100:101]" if opt("cyc") else "s_memrealtime s[100:101]", "s_waitcnt lgkmcnt(0)", f"v_writelane_b32 v0, s100, {17 + t}"]
        emit_stream(A, mf, fill, bt)
        if opt("padfrom"):
            A(f"s_waitcnt vmcnt(0)\nv_readlane_b32 s30, v0, {opt('padfrom')}\ns_add_u32 s30, s30, 10000")
            A(f"Lpad{ph}:\ns_memrealtime s[100:101]\ns_waitcnt lgkmcnt(0)\ns_sub_u32 s31, s100, s30\ns_cmp_lt_i32 s31, 0\ns_cbranch_scc1 Lpad{ph}")
        stamp_out(A, 15, f"a{ph}")
        A("s_endpgm")

def kernel(A):
    name = NAME + "_kernel"
    A.raw(f".globl {name}\n.p2align 8\n.type {name},@function")
    A(f"{name}:")
    A("s_cmp_ge_u32 s2, 256\ns_cbranch_scc1 L_end")
    if STAMPS: A("s_memtime s[98:99]" if opt("cyc") else "s_memrealtime s[98:99]")
    if FAST: A("s_memrealtime s[96:97]")
    A("s_load_dwordx4 s[4:7], s[0:1], 0\ns_load_dwordx2 s[8:9], s[0:1], 16")
    A("s_load_dwordx4 s[12:15], s[0:1], 32\ns_load_dwordx4 s[16:19], s[0:1], 48\ns_load_dwordx4 s[20:23], s[0:1], 64")
    if ECPF:
        l = newlab("c")
        A(f"s_getpc_b64 s[10:11]\n{l}:\ns_sub_u32 s10, s10, {l}-{name}\ns_subb_u32 s11, s11, 0")
        A("s_lshr_b32 s30, s2, 3\ns_lshl_b32 s30, s30, 12\nv_lshl_add_u32 v28, v0, 4, s30")
        A(f"v_min_u32 v28, L_end-{name}-16, v28")
        A("global_load_dwordx4 v[120:123], v28, s[10:11]")
    A("v_and_b32 v1, 63, v0\nv_lshrrev_b32 v2, 6, v0\nv_readfirstlane_b32 s24, v2")
    A("s_and_b32 s25, s2, 7\ns_bfe_u32 s26, s2, 0x30003\ns_lshr_b32 s27, s2, 6\ns_and_b32 s29, s27, 1")
    A("s_and_b32 s28, s25, 3\ns_lshl_b32 s28, s28, 2\ns_add_u32 s28, s28, s27")
    A("s_lshl_b32 s30, s27, 3\ns_add_u32 s30, s30, s25\ns_lshl_b32 s30, s30, 3\ns_lshl_b32 s31, s26, 8\ns_add_u32 s30, s30, s31")
    A("v_lshrrev_b32 v21, 5, v0\nv_add_u32 v21, s30, v21\nv_and_b32 v22, 31, v0")
    A("v_lshlrev_b32 v20, 11, v21\nv_lshl_add_u32 v20, v22, 4, v20")
    A(f"v_lshlrev_b32 v31, 7, v22\ns_lshl_b32 s30, s26, 12\ns_add_u32 s30, s30, {XFL_OFF}\nv_add_u32 v31, s30, v31\nv_mov_b32 v24, 0")
    A("s_or_b32 s3, s25, s27\ns_xor_b32 s30, s24, 3\ns_or_b32 s3, s3, s30")
    A("s_waitcnt lgkmcnt(0)")
    if FAST:
        l = newlab("z")
        n = A.nvm
        A(f"s_cmp_lg_u32 s3, 0\ns_cbranch_scc1 {l}\ns_or_b32 s30, s96, 1\nv_mov_b32 v24, s30\ns_lshl_b32 s30, s26, 5\nv_mov_b32 v25, s30")
        A(f"s_mov_b64 exec, 1\nglobal_store_dword v25, v24, s[20:21] {SC}\ns_mov_b64 exec, -1\n{l}:")
        A.nvm = n
    elif NSY:
        l = newlab("z")
        A(f"s_cmp_lg_u32 s3, 0\ns_cbranch_scc1 {l}\nglobal_store_dword v31, v24, s[22:23] {SC}\n{l}:")
    for j in range(4):
        A(f"global_load_dwordx4 v[{64+4*j}:{67+4*j}], v20, s[4:5] offset:{512*j} {F_X0}")
    if FAST:
        A("s_lshl_b32 s30, s26, 2\ns_add_u32 s30, s30, s24\ns_lshl_b32 s30, s30, 6\nv_and_b32 v24, 15, v1\nv_add_u32 v24, s30, v24")
        A(f"v_lshlrev_b32 v125, 3, v24\nv_add_u32 v125, {STAT_OFF}, v125")
        A("v_lshlrev_b32 v24, 11, v24\nv_lshrrev_b32 v25, 4, v1\nv_lshl_add_u32 v127, v25, 4, v24")
        A(f"v_lshlrev_b32 v20, 3, v21\nv_add_u32 v20, {STAT_OFF}, v20")
    if opt("tlb"):
        A("v_lshlrev_b32 v29, 20, v1")
        A("global_load_dword v124, v29, s[22:23]")
        A("v_and_b32 v30, 3, v1\nv_lshlrev_b32 v30, 20, v30")
        A("global_load_dword v125, v30, s[18:19]")
        A("v_min_u32 v30, 6, v1\nv_lshlrev_b32 v30, 20, v30")
        A("global_load_dword v126, v30, s[16:17]\nglobal_load_dword v126, v30, s[12:13]\nglobal_load_dword v126, v30, s[14:15]")
        A("v_min_u32 v30, 5, v1\nv_lshlrev_b32 v30, 20, v30\nglobal_load_dword v126, v30, s[6:7]")
        A("v_min_u32 v30, 1, v1\nv_lshlrev_b32 v30, 20, v30\nglobal_load_dword v126, v30, s[8:9]")
    if STAMPS: A("v_writelane_b32 v0, s98, 0")
    A("v_lshlrev_b32 v2, 4, v1")
    A("v_lshrrev_b32 v24, 3, v1\ns_lshl_b32 s30, s24, 3\nv_add_u32 v24, s30, v24")
    A("v_bfe_u32 v25, v1, 4, 1\ns_and_b32 s30, s24, 1\ns_lshl_b32 s30, s30, 1\nv_or_b32 v25, s30, v25")
    A("v_bfe_u32 v26, v1, 1, 2\nv_xor_b32 v26, v26, v25\nv_lshlrev_b32 v26, 5, v26")
    A("v_and_b32 v27, 1, v1\nv_lshl_add_u32 v26, v27, 4, v26")
    A(f"v_mul_u32_u24 v{K1.VO6}, 6144, v24\nv_add_u32 v{K1.VO6}, v{K1.VO6}, v26")
    A(f"v_mul_u32_u24 v{K1.VO7}, 7168, v24\nv_add_u32 v{K1.VO7}, v{K1.VO7}, v26")
    A("v_lshrrev_b32 v24, 2, v1\ns_and_b32 s30, s24, 1\ns_lshl_b32 s30, s30, 4\nv_add_u32 v24, s30, v24")
    A("v_bfe_u32 v25, v1, 1, 1\nv_lshrrev_b32 v26, 5, v1\nv_xor_b32 v25, v25, v26\nv_lshlrev_b32 v25, 5, v25")
    A("v_lshl_add_u32 v25, v27, 4, v25")
    A(f"v_mul_u32_u24 v{K1.VOH}, 7168, v24\nv_add_u32 v{K1.VOH}, v{K1.VOH}, v25")
    A(f"v_add_u32 v{K1.VX1}, 4096, v2\nv_add_u32 v3, {144*2048}, v2")
    A(f"s_mov_b32 s72, 0\ns_mov_b32 s74, 0\ns_mov_b32 s73, {32*6144}\ns_mov_b32 s75, {32*7168}\ns_mov_b32 s76, 0")
    A("s_lshl_b32 s78, s24, 10")
    A("s_lshr_b32 s79, s24, 1\ns_lshl_b32 s79, s79, 12\ns_and_b32 s30, s24, 1\ns_lshl_b32 s30, s30, 10\ns_add_u32 s79, s79, s30")
    A("s_lshl_b32 s10, s26, 2\ns_add_u32 s10, s10, s24\ns_lshl_b32 s30, s10, 17")
    srd(A, 52, 22, "s30", 131072)
    A(f"s_mul_i32 s30, s10, {2*144*2048}\ns_add_u32 s30, s30, {ACT_OFF}")
    srd(A, 56, 22, "s30", 2 * 144 * 2048)
    A(f"s_mul_i32 s30, s28, {8*KVP_STRIDE}\ns_add_u32 s30, s30, {KVP_OFF}")
    srd(A, 60, 22, "s30", 8 * KVP_STRIDE)
    srd(A, 64, 16, 0, 3584 * 2048); srd(A, 68, 8, 0, 1024 * 2048)
    A("s_lshl_b32 s81, s2, 2\ns_add_u32 s81, s81, s24\ns_lshl_b32 s81, s81, 10\ns_mov_b32 s82, s81")
    A(f"s_mov_b32 s86, {LOG2E:#x}\ns_mov_b32 s87, {NLOG2E:#x}\ns_mov_b32 s88, {EPS6:#x}")
    A("s_lshl_b32 s89, s28, 4\ns_add_u32 s89, s89, 8")
    ob = [b for b in range(3) if b != RB]
    A(f"s_lshl_b32 s95, s26, 1\ns_bfe_u32 s30, s25, {0x10000 + ob[0]:#x}")
    if int(opt("xp", "1")): A(f"s_bfe_u32 s31, s25, {0x10000 + RB:#x}\ns_xor_b32 s30, s30, s31")
    A("s_add_u32 s95, s95, s30\ns_lshl_b32 s95, s95, 3")
    A(f"s_bfe_u32 s30, s25, {0x10000 + ob[1]:#x}\ns_lshl_b32 s30, s30, 2\ns_add_u32 s95, s95, s30\ns_add_u32 s95, s95, s27")
    if opt("jx"): A(f"s_xor_b32 s95, s95, {opt('jx')}")
    A(f"s_bfe_u32 s91, s25, {0x10000 + RB:#x}")
    if RINV: A("s_xor_b32 s91, s91, 1")
    A("s_lshr_b32 s94, s95, 3\ns_lshl_b32 s94, s94, 2\ns_add_u32 s94, s94, s24\ns_lshl_b32 s94, s94, 16")
    if CMAP:
        A("s_and_b32 s30, s95, 3\ns_lshl_b32 s30, s30, 7\ns_add_u32 s94, s94, s30\ns_and_b32 s30, s95, 4\ns_lshl_b32 s30, s30, 8\ns_add_u32 s94, s94, s30")
        A("s_lshl_b32 s31, s91, 9\ns_add_u32 s94, s94, s31\ns_lshl_b32 s31, s91, 7")
    else:
        A("s_and_b32 s30, s95, 7\ns_lshl_b32 s30, s30, 8\ns_add_u32 s94, s94, s30\ns_lshl_b32 s31, s91, 7\ns_add_u32 s94, s94, s31")
    A(f"s_lshl_b32 s92, s26, 11\ns_add_u32 s92, s92, {FLAG_OFF}")
    A(f"s_lshl_b32 s93, s95, 8\ns_add_u32 s93, s93, {FLAG_OFF + 16384}\ns_add_u32 s93, s93, s31")
    l = newlab("z")
    A(f"s_cmp_lg_u32 s24, 0\ns_cbranch_scc1 {l}")
    A("v_mov_b32 v24, 0\nv_lshl_add_u32 v25, v1, 8, s92\nv_subrev_u32 v25, 256, v25\nv_mov_b32 v26, s93")
    A("v_cmp_eq_u32 vcc, 0, v1\nv_cndmask_b32 v25, v25, v26, vcc")
    A("s_or_b32 s30, s25, s27\ns_cmp_eq_u32 s30, 0\ns_cselect_b32 s30, 63, 1\ns_mov_b32 s31, 0\ns_mov_b64 exec, s[30:31]")
    A(f"global_store_dword v25, v24, s[22:23] {SC}")
    if DYN:
        A(f"s_mov_b64 exec, 1\nv_and_b32 v26, 0xffffff7f, v26\nglobal_store_dword v26, v24, s[22:23] offset:64 {SC}")
    A("s_mov_b64 exec, -1")
    A(f"{l}:")
    A("v_xor_b32 v24, v21, v22\nv_and_b32 v24, 7, v24\nv_lshlrev_b32 v24, 4, v24\nv_lshl_add_u32 v22, v22, 7, v24")
    A("v_readfirstlane_b32 s30, v21")
    A("s_lshr_b32 s31, s30, 6\ns_lshl_b32 s31, s31, 17\ns_bfe_u32 s3, s30, 0x20004\ns_lshl_b32 s3, s3, 10\ns_add_u32 s31, s31, s3")
    A("s_and_b32 s30, s30, 8\ns_lshl_b32 s30, s30, 4\ns_add_u32 s31, s31, s30\ns_lshl_b32 s30, s24, 15\ns_add_u32 s31, s31, s30")
    A("v_lshrrev_b32 v23, 5, v1\nv_lshlrev_b32 v23, 12, v23\nv_bfe_u32 v24, v1, 3, 2\nv_lshl_add_u32 v23, v24, 8, v23")
    A("v_lshrrev_b32 v24, 3, v1\nv_xor_b32 v24, v24, v1\nv_and_b32 v24, 7, v24\nv_lshl_add_u32 v23, v24, 4, v23\nv_add_u32 v23, s31, v23")
    A("s_lshr_b32 s30, s24, 1\ns_lshl_b32 s30, s30, 15\ns_and_b32 s31, s24, 1\ns_lshl_b32 s31, s31, 12\ns_add_u32 s30, s30, s31\nv_add_u32 v21, s30, v2")
    A("v_lshrrev_b32 v24, 4, v1\nv_bfe_u32 v25, v1, 2, 2\nv_and_b32 v26, 3, v1")
    A("v_lshl_add_u32 v27, v24, 3, v25")
    A("v_lshrrev_b32 v28, 1, v25\nv_and_b32 v29, 1, v24\nv_lshl_or_b32 v28, v29, 1, v28")
    for nb in range(4):
        A(f"v_xor_b32 v30, {nb}, v28\nv_lshlrev_b32 v30, 5, v30\nv_lshl_add_u32 v30, v27, 7, v30")
        A(f"v_lshl_add_u32 v{4+nb}, v26, 3, v30\nv_add_u32 v{8+nb}, 0x10000, v{4+nb}\nv_add_u32 v{12+nb}, 0x20000, v{4+nb}")
    A("s_lshr_b32 s83, s28, 3\ns_mul_i32 s83, s83, 56\ns_bfe_u32 s30, s28, 0x20001\ns_add_u32 s83, s83, s30\ns_lshl_b32 s83, s83, 11")
    A("s_lshr_b32 s10, s28, 1\ns_mul_i32 s10, s10, 896\ns_lshl_b32 s11, s28, 7")
    NQ, NF = 1024 * 6144, 1024 * 7168
    def wsrd(d, lo, off, tot):
        A(f"s_sub_u32 s31, {tot}, {off}")
        srd(A, d, lo, off, "s31")
    k2 = K2(A)
    A("s_cmp_ge_u32 s25, 4\ns_cbranch_scc1 L1_typeQ")
    for nb in range(2):
        A(f"v_xor_b32 v30, {nb}, v29\nv_lshlrev_b32 v30, 5, v30\nv_lshl_add_u32 v30, v27, 6, v30")
        A(f"v_lshl_add_u32 v30, v26, 3, v30\nv_add_u32 v{12+nb}, 0x20000, v30")
    A("s_add_u32 s30, s11, 2048"); wsrd(32, 6, "s30", NQ)
    A("s_add_u32 s30, s11, 4096"); wsrd(36, 6, "s30", NQ)
    A("s_lshl_b32 s30, s29, 8\ns_add_u32 s30, s30, 512\ns_add_u32 s30, s30, s10")
    wsrd(40, 12, "s30", NF); wsrd(44, 14, "s30", NF)
    A("s_lshl_b32 s31, s29, 13\ns_add_u32 s83, s83, s31")
    A("s_lshl_b32 s30, s29, 6\ns_add_u32 s30, s30, 640\ns_add_u32 s30, s30, s10")
    A("s_cmp_ge_u32 s24, 2\ns_cselect_b32 s10, s14, s12\ns_cselect_b32 s11, s15, s13")
    wsrd(48, 10, "s30", NF)
    K1(A, "KV").body(k2)
    A("L1_typeQ:")
    wsrd(40, 6, "s11", NQ)
    A("s_lshl_b32 s30, s29, 8\ns_add_u32 s30, s30, s10")
    wsrd(32, 12, "s30", NF); wsrd(36, 14, "s30", NF)
    A("s_lshl_b32 s31, s29, 13\ns_add_u32 s83, s83, s31")
    A("s_add_u32 s30, s30, 128")
    wsrd(44, 12, "s30", NF); wsrd(48, 14, "s30", NF)
    A(f"s_lshl_b32 s85, s28, 12\ns_add_u32 s85, s85, {112*2048}")
    K1(A, "Q").body(k2)
    k2.body()
    A("L_end:")
    A("s_endpgm")
    A.raw('.section .rodata,"a"\n.p2align 6')
    A.raw(f".amdhsa_kernel {name}")
    for l in (".amdhsa_next_free_vgpr 512", ".amdhsa_next_free_sgpr 102", ".amdhsa_accum_offset 256", ".amdhsa_group_segment_fixed_size 0",
              ".amdhsa_kernarg_size 80", ".amdhsa_user_sgpr_count 2", ".amdhsa_user_sgpr_kernarg_segment_ptr 1",
              ".amdhsa_system_sgpr_workgroup_id_x 1", ".amdhsa_float_denorm_mode_32 3", ".end_amdhsa_kernel"):
        A.raw(l)

def main(out):
    A = Asm()
    for l in open("cdna_kernels/" + NAME + ".s.ref").read().split("\n"):
        if l.startswith("; @launch") or l.startswith("; Override") or l.startswith("; grid=ceil"): continue
        if not l.startswith(";"): break
        A.raw(l)
    if "--list" in sys.argv:
        A.raw(f"; @launch kernel={NAME}_kernel grid=(256,1,1) block=(256,1,1) lds=163840")
    else:
        A.raw("; @launch grid=(256,1,1) block=(256,1,1) lds=163840")
    A.raw('.amdgcn_target "amdgcn-amd-amdhsa--gfx950"')
    A.raw(MAC)
    A.raw(".text")
    kernel(A)
    open(out, "w").write(A.finalize())
main(sys.argv[1])
```

```python
import sys
from asmlib import Asm, MAC, cost

NAME = "recurrent_scan__linear_attn_block__glu_gated_swiglu__prompt"
XN_OFF = 0
ACT_OFF = 4 << 20
KVP_OFF = 24 << 20
KVP_STRIDE = 8448
P_OFF = 32 << 20
FLAG_OFF = (48 << 20) + (int([a for a in sys.argv if a.startswith('--fo=')][0][5:]) if any(a.startswith('--fo=') for a in sys.argv) else 0)
XFL_OFF = 49 << 20
STAT_OFF = 50 << 20
STAMP_OFF = 56 << 20
LOG2E = 0x3fb8aa3b
NLOG2E = 0xbfb8aa3b
EPS6 = 0x358637bd
EPS5 = 0x3727c5ac
SPIN = 0x40000

def opt(name, default=""):
    for a in sys.argv:
        if a.startswith("--" + name + "="): return a.split("=", 1)[1].replace("+", " ")
    return default
STAMPS = "--stamps" in sys.argv
ROT = int(opt("rot", "0"))
L2PF = int(opt("l2pf", "0"))
XFIRST = int(opt("xfirst", "1"))
WU = int(opt("wu", "10"))
RB = int(opt("rb", "2"))
RINV = int(opt("rinv", "0"))
CPF = int(opt("cpf", "1"))
ECPF = int(opt("ecpf", "1"))
W1E = int(opt("w1e", "0"))
W1J = int(opt("w1j", "4"))
NSY = int(opt("nsy", "1"))
ODEF = int(opt("odef", "0"))
FAST = int(opt("fast", "0"))
PKB = int(opt("pkb", "1"))
DYN = int(opt("dyn", "0"))
CMAP = int(opt("cmap", "0"))
WPOLL = int(opt("wpoll", "0"))
C3 = int(opt("c3", "0"))
NKV = int(opt("nkv", "15"))
P16 = int(opt("p16", "1"))

NA = int(opt("na", "12"))
F_X0 = opt("x0", "nt")
F_W1P = opt("w1p", "nt")
F_W1 = opt("w1", "nt")
SC = "sc0 sc1"
F_XN = opt("xn", "sc1")
F_H = opt("h", "sc1")
F_HST = opt("hst", SC)

def stamp(A, idx, tail=False):
    if not STAMPS: return
    if opt("tailst") and 16 <= idx < 26 and not tail: return
    A("s_memtime s[100:101]" if opt("cyc") else "s_memrealtime s[100:101]")
    A("s_waitcnt lgkmcnt(0)")
    A(f"v_writelane_b32 v0, s100, {idx}")
def stamp_out(A, idx, tag):
    if not STAMPS: return
    A("s_waitcnt vmcnt(0)")
    stamp(A, idx)
    A(f"s_cmp_lg_u32 s24, 0\ns_cbranch_scc1 LS_{tag}")
    A(f"s_lshl_b32 s100, s2, 7\ns_add_u32 s100, s100, {STAMP_OFF}")
    A("v_lshl_add_u32 v20, v1, 2, s100")
    A("s_mov_b64 exec, 0xffffffff")
    A("global_store_dword v20, v0, s[22:23]")
    if opt("dbgst"):
        A(f"s_cmp_lg_u32 s2, 0\ns_cbranch_scc1 LS_{tag}")
        A("v_readlane_b32 s30, v0, 0\ns_mov_b64 exec, 1")
        for w, idx in zip((1, 3, 4, 5, 7, 9, 11, 12, 13, 15), (1, 3, 5, 6, 8, 9, 11, 12, 13, 15)):
            A(f"v_readlane_b32 s31, v0, {idx}\ns_sub_u32 s31, s31, s30\nv_mov_b32 v21, s31\nv_mov_b32 v22, {w*4}")
            A("global_store_dword v22, v21, s[20:21]")
    A(f"LS_{tag}:")

def srd(A, d, lo, off, nrec):
    A(f"s_add_u32 s{d}, s{lo}, {off}")
    A(f"s_addc_u32 s{d+1}, s{lo+1}, 0")
    A(f"s_mov_b32 s{d+2}, {nrec}")
    A(f"s_mov_b32 s{d+3}, 0x20000")

_lab = [0]
def newlab(p):
    _lab[0] += 1
    return f"L{p}{_lab[0]}"

def spin(vaddr, base, target, vtmp, first_loaded=False, sleep=1, off=0):
    l, d = newlab("p"), newlab("d")
    g = []
    if first_loaded:
        g += [f"v_readfirstlane_b32 s30, v{vtmp}", f"s_cmp_ge_u32 s30, {target}", f"s_cbranch_scc1 {d}"]
    g += [f"s_mov_b32 s31, {SPIN}", f"{l}:",
          f"global_load_dword v{vtmp}, v{vaddr}, s[{base}:{base+1}] offset:{off} sc1", "s_waitcnt vmcnt(0)",
          f"v_readfirstlane_b32 s30, v{vtmp}", f"s_cmp_ge_u32 s30, {target}", f"s_cbranch_scc1 {d}",
          f"s_sleep {sleep}", "s_sub_u32 s31, s31, 1", "s_cmp_lg_u32 s31, 0", f"s_cbranch_scc1 {l}", f"{d}:"]
    return g

def signal(vaddr, base, v1, off=0):
    l = newlab("s")
    return ["s_cmp_lg_u32 s24, 0", f"s_cbranch_scc1 {l}", f"v_mov_b32 v{v1}, 1", "s_mov_b64 exec, 1",
            f"global_atomic_add v{vaddr}, v{v1}, s[{base}:{base+1}] offset:{off} sc1", "s_mov_b64 exec, -1", f"{l}:"]

def emit_group(A, it, uncounted=False):
    if isinstance(it, str): it = [it]
    for t in it: A(t)

def emit_stream(A, mf, fill, batches):
    bi = 0; pos = 0; done = 0
    def icost(it):
        if isinstance(it, str): return cost(it)
        if it and it[0].startswith('v_pk_'): return 0
        return sum(cost(t) for t in it[:6])
    tot = [sum(icost(x) for x in b[2]) for b in batches]
    for i, m in enumerate(mf):
        A(m)
        for t in fill[i]: emit_group(A, t)
        while bi < len(batches) and batches[bi][0] <= i:
            st, en, items = batches[bi]
            want = tot[bi] * min(1.0, (i - st + 1) / max(1, en - st))
            while pos < len(items) and done < want:
                emit_group(A, items[pos]); done += icost(items[pos]); pos += 1
            while pos < len(items) and icost(items[pos]) == 0:
                emit_group(A, items[pos]); pos += 1
            if pos >= len(items):
                bi += 1; pos = 0; done = 0
            else:
                break
    while bi < len(batches):
        items = batches[bi][2]
        while pos < len(items):
            emit_group(A, items[pos]); pos += 1
        bi += 1; pos = 0

def emit_sync(A, g):
    n = A.nvm
    for t in g: A(t)
    A.nvm = n
class Unc(list):
    pass
def emit_group(A, it):
    if isinstance(it, str): A(it)
    elif isinstance(it, Unc): emit_sync(A, it)
    else:
        for t in it: A(t)

class Inject:
    def __init__(self, A, L, every, skip=0): self.A, self.L, self.every, self.n = A, list(L), every, -skip
    def __call__(self, text):
        for t in text.split("\n"):
            self.A(t); self.n += 1
            if self.n <= 0: continue
            if self.L and self.n % self.every == self.every - 2 and self.L[0][0]: self.A(self.L[0][0])
            if self.L and self.n % self.every == 0: self.A(self.L.pop(0)[1])

def ln_part(A, publish=None):
    X, F, S, Vv = 64, 80, 112, 116
    A("s_mov_b32 s3, 0xffff0000")
    for i in range(16):
        A(f"v_lshlrev_b32 v{F+2*i}, 16, v{X+i}")
        A(f"v_and_b32 v{F+1+2*i}, s3, v{X+i}")
    def reduce32(r, t):
        for m in ("quad_perm:[1,0,3,2]", "quad_perm:[2,3,0,1]", "row_half_mirror", "row_mirror"):
            A(f"v_add_f32_dpp v{r}, v{r}, v{r} {m} row_mask:0xf bank_mask:0xf")
        A(f"v_mov_b32 v{t}, v{r}")
        A(f"v_permlane16_swap_b32 v{t}, v{r}")
        A(f"v_add_f32 v{r}, v{r}, v{t}")
    for i in range(2):
        A(f"v_pk_add_f32 v[{S+2*i}:{S+2*i+1}], v[{F+2*i}:{F+2*i+1}], v[{F+4+2*i}:{F+5+2*i}]")
    for b in range(2, 8):
        for i in range(2):
            A(f"v_pk_add_f32 v[{S+2*i}:{S+2*i+1}], v[{S+2*i}:{S+2*i+1}], v[{F+4*b+2*i}:{F+4*b+2*i+1}]")
    A(f"v_pk_add_f32 v[{S}:{S+1}], v[{S}:{S+1}], v[{S+2}:{S+3}]")
    A(f"v_add_f32 v{S}, v{S}, v{S+1}")
    reduce32(S, S + 1)
    A(f"v_mul_f32 v{S}, 0xba800000, v{S}")
    A(f"v_mov_b32 v{S+1}, v{S}")
    for i in range(16):
        t = X + 2 * (i % 4)
        A(f"v_pk_add_f32 v[{t}:{t+1}], v[{F+2*i}:{F+2*i+1}], v[{S}:{S+1}]")
        a = Vv + 2 * (i % 2)
        if i < 2:
            A(f"v_pk_mul_f32 v[{a}:{a+1}], v[{t}:{t+1}], v[{t}:{t+1}]")
        else:
            A(f"v_pk_fma_f32 v[{a}:{a+1}], v[{t}:{t+1}], v[{t}:{t+1}], v[{a}:{a+1}]")
    A(f"v_pk_add_f32 v[{Vv}:{Vv+1}], v[{Vv}:{Vv+1}], v[{Vv+2}:{Vv+3}]")
    A(f"v_add_f32 v{Vv}, v{Vv}, v{Vv+1}")
    A(f"v_cvt_pk_bf16_f32 v{S}, v{S}, v{S}\nv_and_b32 v{S}, s3, v{S}\nv_mov_b32 v{S+1}, v{S}")
    reduce32(Vv, Vv + 1)
    chain = [f"v_mul_f32 v{Vv}, 0x3a800000, v{Vv}", f"v_cvt_pk_bf16_f32 v{Vv}, v{Vv}, v{Vv}", f"v_and_b32 v{Vv}, s3, v{Vv}",
             f"v_add_f32 v{Vv}, {EPS5:#x}, v{Vv}", f"v_cvt_pk_bf16_f32 v{Vv}, v{Vv}, v{Vv}", f"v_and_b32 v{Vv}, s3, v{Vv}",
             f"v_sqrt_f32 v{Vv}, v{Vv}", f"v_cvt_pk_bf16_f32 v{Vv}, v{Vv}, v{Vv}", f"v_and_b32 v{Vv}, s3, v{Vv}",
             f"v_rcp_f32 v{Vv}, v{Vv}", f"v_mov_b32 v{Vv+1}, v{Vv}"]
    if publish:
        for c in chain[:8]: A(c)
        chain = chain[8:]
        publish(S, Vv)
    for i in range(16):
        a = F + 2 * i
        A(f"v_pk_add_f32 v[{a}:{a+1}], v[{a}:{a+1}], v[{S}:{S+1}]")
        if chain: A(chain.pop(0))
        A(f"v_cvt_pk_bf16_f32 v{a+1}, v{a}, v{a+1}")
        A(f"v_lshlrev_b32 v{a}, 16, v{a+1}\nv_and_b32 v{a+1}, s3, v{a+1}")
    for i in range(16):
        a = F + 2 * i
        A(f"v_pk_mul_f32 v[{a}:{a+1}], v[{a}:{a+1}], v[{Vv}:{Vv+1}]")
        A(f"v_cvt_pk_bf16_f32 v{X+i}, v{a}, v{a+1}")

def merge(a, b, f0=0.0, f1=1.0):
    i0, i1 = int(len(a) * f0), int(len(a) * f1)
    out = list(a[:i0]); b = list(b); n = len(b); done = 0
    for i, x in enumerate(a[i0:i1]):
        out.append(x)
        while b and done < n * (i + 1) // (i1 - i0):
            out.append(b.pop(0)); done += 1
    return out + b + list(a[i1:])

class K1:
    VO6, VO7, VOH, VX1 = 16, 17, 18, 19
    def __init__(self, A, typ):
        self.A = A; self.typ = typ
        ag = [4, 5, 6, 7, 16, 17, 18, 19] if typ == "Q" else [4, 5, 6, 7, 12, 13, 14, 15]
        self.acc = {}
        na = nv = 0
        for nb in range(20):
            for mb in range(4):
                if nb in ag: self.acc[(nb, mb)] = ("a", na); na += 4
                else: self.acc[(nb, mb)] = ("v", 64 + nv); nv += 4
        self.u = 0
    def q(self, nb, mb):
        f, r = self.acc[(nb, mb)]; assert f == "v"; return r
    def xfrag(self, xs, kh, mb): return 128 + xs * 32 + (kh * 4 + mb) * 4
    def reads(self, ring, nb, slot):
        out = []
        grp, sub = nb // 4, nb % 4
        for kh in range(2):
            for h4 in range(2):
                r = 32 + ring * 8 + kh * 4 + 2 * h4
                if self.typ == "KV" and grp == 4:
                    v, imm = 12 + sub % 2, slot * 8192 + (sub // 2) * 4096 + kh * 2048 + h4 * 256
                else:
                    v, imm = 4 + (grp // 2) * 4 + sub, (grp % 2) * 32768 + slot * 8192 + kh * 4096 + h4 * 512
                out.append(f"ds_read_b64_tr_b16 v[{r}:{r+1}], v{v} offset:{imm}")
        return out
    def mfmas(self, ring, nb, slot, first=False):
        out = []
        sw = self.typ == "KV" and nb < 8
        for mb in range(4):
            for kh in range(2):
                w = 32 + ring * 8 + kh * 4; x = self.xfrag(slot, kh, mb)
                wa, xa = f"v[{w}:{w+3}]", f"a[{x}:{x+3}]"
                f, r = self.acc[(nb, mb)]; acc = f"{f}[{r}:{r+3}]"
                out.append(f"v_mfma_f32_16x16x32_bf16 {acc}, {xa if sw else wa}, {wa if sw else xa}, {'0' if first and kh == 0 else acc}")
        return out
    def wloads(self, slot, fl):
        dma = []
        for grp in range(5):
            for half in range(2):
                s = 32 + 4 * grp
                isqkv = (grp == 2) if self.typ == "Q" else (grp < 2)
                if self.typ == "KV" and grp == 4:
                    pre = f"s_add_u32 m0, s79, {131072 + slot*8192 + half*2048}"
                    ins = f"buffer_load_dwordx4 v{self.VOH}, s[{s}:{s+3}], s{74+half} offen {fl} lds"
                else:
                    pre = f"s_add_u32 m0, s78, {grp*32768 + slot*8192 + half*4096}"
                    ins = f"buffer_load_dwordx4 v{self.VO6 if isqkv else self.VO7}, s[{s}:{s+3}], s{(72 if isqkv else 74)+half} offen {fl} lds"
                dma.append((pre, ins))
        return dma
    def xloads(self, slot, so=76):
        xl = []
        for kh in range(2):
            for mb in range(4):
                r = self.xfrag(slot, kh, mb)
                xl.append((None, f"buffer_load_dwordx4 a[{r}:{r+3}], v{2 if kh == 0 else self.VX1}, s[52:55], s{so} offen offset:{mb*1024} {F_XN}"))
        return xl
    def loads(self, slot):
        d, x = self.wloads(slot, F_W1), self.xloads(slot)
        L = []
        while d or x:
            if d: L.append(d.pop(0))
            if x: L.append(x.pop(0))
        return L
    def adv(self):
        return [f"s_add_u32 s72, s72, {64*6144}", f"s_add_u32 s73, s73, {64*6144}", f"s_add_u32 s74, s74, {64*7168}",
                f"s_add_u32 s75, s75, {64*7168}", "s_add_u32 s76, s76, 8192"]
    def l2pf(self):
        l = newlab("f")
        g = ["s_cmp_ge_u32 s90, 1024", f"s_cbranch_scc1 {l}", "s_mul_i32 s10, s90, 6144", "s_mul_i32 s30, s90, 7168",
             f"s_add_u32 s11, s10, {32*6144}", f"s_add_u32 s31, s30, {32*7168}"]
        for pre, ins in self.wloads(0, "nt"):
            ins = ins.replace("buffer_load_dwordx4 ", "buffer_load_dwordx4 v[28:31], ").replace(" lds", "")
            ins = ins.replace("s72", "s10").replace("s73", "s11").replace("s74", "s30").replace("s75", "s31")
            g.append(ins)
        g += [f"{l}:", "s_add_u32 s90, s90, 512"]
        return g
    def stage(self, slot, nxt_units, vmw, pf=(), lastld=False):
        ls = (slot + 3) % 4
        units = [(nb, slot) for nb in range(20)] + list(nxt_units)
        mf, fill = [], []
        for u in range(20):
            f = [[] for _ in range(8)]
            rd = self.reads((u + 2) % 4, *units[u + 2])
            if u == 18:
                f[1] += (["@wv x14", "s_waitcnt lgkmcnt(0)"] if lastld else [f"s_waitcnt vmcnt({vmw}) lgkmcnt(0)"]) + ["s_barrier"]
                for i, j in enumerate((2, 3, 4, 5)): f[j].append(rd[i])
                f[5].append("@tag t0")
            else:
                for i, j in enumerate((0, 2, 4, 6)): f[j].append(rd[i])
                if u == 19: f[6].append("@tag t1")
                f[7].append("s_waitcnt lgkmcnt(4)")
            if u == 19 and not lastld:
                a = self.adv()
                f[1] += a[0:2]; f[3] += a[2:4]; f[5] += a[4:5]
            mf += self.mfmas(u % 4, *units[u]); fill += f
        def odd(p): return p | 1
        W, X = self.wloads(ls, F_W1), self.xloads((slot + 2) % 4)
        wu = WU
        if lastld:
            X += [("s_add_u32 s76, s76, 8192" if i == 0 else None, ins) for i, (_, ins) in enumerate(self.xloads(ls))]
            wu = 10
        nx = len(X)
        if XFIRST:
            xu = 18 - wu
            pos = [odd(xu * 8 + 2 + i * (wu * 8 - 2) // 10) for i in range(10)] + [odd(2 + 2 * len(pf) + i * (xu * 8 - 2 * len(pf)) // nx) for i in range(nx)]
        else:
            pos = [odd(2 + 2 * len(pf) + i * (wu * 8 - 2 * len(pf)) // 10) for i in range(10)] + [odd(wu * 8 + 2 + i * ((18 - wu) * 8 - 2) // nx) for i in range(nx)]
        L = W + X
        for i, p in enumerate(pf): fill[1 + 2 * i] += p
        for (pre, ins), p in zip(L, pos):
            assert p < 145
            if pre: fill[p - 1].append(pre)
            fill[p].append(ins)
        if (C3 & 1) and slot == 0 and not lastld:
            for i, g in enumerate(self.c3pf()): fill[8 + 8 * i].append(g)
        fill[max(pos)].append("@tag kld")
        if lastld: fill[pos[17]].append("@tag x14")
        emit_stream(self.A, mf, fill, [])
    def c3setup(self):
        A = self.A
        A("s_mov_b32 s90, 0")
        for g in range(5):
            A(f"s_bfe_u32 s30, s{32+4*g}, 0x30007\ns_cmp_eq_u32 s30, 3\ns_cselect_b32 s30, {1 << g}, 0\ns_or_b32 s90, s90, s30")
        A("s_lshl_b32 s30, s26, 5\ns_add_u32 s30, s30, 128\ns_lshl_b32 s31, s24, 3\ns_add_u32 s31, s31, s30\nv_add_u32 v29, s31, v1")
        A("v_cmp_gt_u32 vcc, 8, v1\nv_mov_b32 v24, 0x40000")
        A("v_cndmask_b32 v29, v24, v29, vcc\nv_mul_u32_u24 v30, 7168, v29\nv_mul_u32_u24 v29, 6144, v29")
        if self.typ == "KV":
            A("s_and_b32 s31, s24, 1\ns_lshl_b32 s3, s29, 1\ns_add_u32 s31, s31, s3\ns_lshl_b32 s31, s31, 4\ns_lshr_b32 s31, s31, 1\ns_add_u32 s31, s31, s30")
            A("v_add_u32 v31, s31, v1\nv_cndmask_b32 v31, v24, v31, vcc\nv_mul_u32_u24 v31, 7168, v31")
    def c3pf(self):
        out = []
        for g in range(5):
            q = (g == 2) if self.typ == "Q" else (g < 2)
            v = 31 if (self.typ == "KV" and g == 4) else (29 if q else 30)
            l = newlab("q")
            out.append(Unc([f"s_bitcmp0_b32 s90, {g}", f"s_cbranch_scc1 {l}",
                            f"buffer_load_dword v24, v{v}, s[{32+4*g}:{35+4*g}], s{72 if q else 74} offen {F_W1}", f"{l}:"]))
        return out
    def stage0(self):
        units = [(nb, 0) for nb in range(20)] + [(0, 1), (1, 1)]
        mf, fill = [], []
        for u in range(20):
            f = [[] for _ in range(8)]
            rd = self.reads((u + 2) % 4, *units[u + 2])
            if u == 18:
                f[1] += ["@wv wp", "s_waitcnt lgkmcnt(0)", "s_barrier"]
                for i, j in enumerate((2, 3, 4, 5)): f[j].append(rd[i])
            else:
                for i, j in enumerate((0, 2, 4, 6)): f[j].append(rd[i])
                f[7].append("s_waitcnt lgkmcnt(4)")
            mf += self.mfmas(u % 4, *units[u], first=True); fill += f
        for i, (pre, ins) in enumerate(self.wloads(3, F_W1)):
            p = 3 + 6 * i
            fill[p - 1].append(pre); fill[p].append(ins)
        fill[61] += self.adv()[:4]
        ps, pc = int(opt("f0s", "63")), int(opt("f0c", "93"))
        fill[ps] += ["global_load_dword v25, v31, s[22:23] sc1", "@tag fs"]
        p, d = newlab("p"), newlab("d")
        chk = ["v_cmp_ne_u32 vcc, s90, v25", "s_cmp_eq_u64 vcc, 0", f"s_cbranch_scc1 {d}"]
        fill[pc] += ["@wv fs", Unc(chk + [f"s_mov_b32 s31, {SPIN}", f"{p}:", "global_load_dword v25, v31, s[22:23] sc1", "s_waitcnt vmcnt(0)"] + chk +
                                   ["s_sleep 2", "s_sub_u32 s31, s31, 1", "s_cmp_lg_u32 s31, 0", f"s_cbranch_scc1 {p}", f"{d}:"])]
        st = (158 - pc - 2) // 16
        for i, (_, ins) in enumerate(self.xloads(1) + self.xloads(2)):
            q = pc + 2 + (2 * i if i < 8 else 16 + (i - 8) * ((158 - pc - 20) // 8))
            fill[q].append(ins)
            if i in (7, 15): fill[q] += (["@tag x1"] if i == 7 else []) + ["s_add_u32 s76, s76, 8192"]
        fill[159].append("@wv x1")
        emit_stream(self.A, mf, fill, [])
    def fast_start(self):
        A = self.A; t = self.typ
        def issue(L):
            for pre, ins in L:
                if pre: A(pre)
                A(ins)
        R, U, ST = 128, 160, 224
        A("s_mul_i32 s30, s26, 24\ns_mul_i32 s31, s24, 6\ns_add_u32 s31, s31, s30\nv_add_u32 v24, s31, v1")
        A("v_mul_u32_u24 v25, 6144, v24\nv_mul_u32_u24 v24, 7168, v24")
        if t == "KV":
            A("s_and_b32 s31, s24, 1\ns_mul_i32 s31, s31, 12\ns_add_u32 s31, s31, s30\nv_add_u32 v26, s31, v1\nv_mul_u32_u24 v26, 7168, v26")
            A("s_mov_b64 exec, 0xfff")
            A(f"buffer_load_dword v124, v26, s[48:51], 0 offen {F_W1P}")
        A("s_mov_b64 exec, 63")
        for grp in range(5 if t == "Q" else 4):
            q = (grp == 2) if t == "Q" else (grp < 2)
            A(f"buffer_load_dword v124, v{25 if q else 24}, s[{32+4*grp}:{35+4*grp}], 0 offen {F_W1P}")
        A("s_mov_b64 exec, -1")
        raw = []
        for mb in range(4):
            for kh in range(2):
                r = R + (kh * 4 + mb) * 4
                raw.append(("v_add_u32 v127, 0x8000, v127" if (kh == 0 and mb) else None,
                            f"global_load_dwordx4 v[{r}:{r+3}], v127, s[4:5] offset:{kh*64}" + ("\n@tag raw" if (mb, kh) == (3, 1) else "")))
        RE = int(opt("rawe", "8"))
        issue(raw[:RE])
        A("s_lshl_b32 s10, s26, 5\ns_add_u32 s10, s20, s10\ns_addc_u32 s11, s21, 0")
        A("s_lshl_b32 s30, s26, 5\nv_mov_b32 v30, s30")
        A(f"s_waitcnt vmcnt({5 + RE})")
        stamp(A, 1)
        A("s_load_dword s90, s[10:11], 0")
        def publish(S, Vv):
            p, d = newlab("p"), newlab("d")
            A(f"v_bfi_b32 v{Vv+2}, s3, v{S}, v{Vv}")
            A(f"s_waitcnt lgkmcnt(0)\ns_cmp_lg_u32 s90, 0\ns_cbranch_scc1 {d}")
            emit_sync(A, spin(30, 20, 1, 126) + ["s_mov_b32 s90, s30", f"{d}:"])
            A(f"v_mov_b32 v{Vv+3}, s90\ns_mov_b32 s30, 1\ns_mov_b32 s31, 1\ns_mov_b64 exec, s[30:31]")
            A(f"global_store_dwordx2 v20, v[{Vv+2}:{Vv+3}], s[22:23] {SC}\ns_mov_b64 exec, -1")
            stamp(A, 10)
        def nxt(L): return [("\n".join(self.adv()[:4] + [L[0][0]]), L[0][1])] + L[1:]
        rest = raw[RE:] + self.wloads(0, F_W1P) + nxt(self.wloads(1, F_W1P)) + nxt(self.wloads(2, F_W1P))
        n1, n2 = 18 - RE, int(opt("fn2", "8"))
        inj = Inject(A, rest[:n1], 5, skip=104)
        ln_part(inj, publish)
        assert not inj.L
        for j in range(4):
            A(f"ds_write_b128 v22, v[{64+4*j}:{67+4*j}] offset:{24576 + (j%2)*4096 + (j//2)*32768}")
        A("s_waitcnt lgkmcnt(0)\ns_barrier")
        for j in range(4):
            A(f"ds_read_b128 v[{64+4*j}:{67+4*j}], v21 offset:{24576 + j*1024}")
        for j in range(4):
            A(f"s_waitcnt lgkmcnt({3-j})")
            A(f"global_store_dwordx4 v23, v[{64+4*j}:{67+4*j}], s[22:23] {SC}")
            if j < 3: A("v_add_u32 v23, 0x2000, v23")
        stamp(A, 2)
        A("@wv raw")
        inj = Inject(A, rest[n1:n1+n2], 8)
        for i in range(32):
            inj(f"v_lshlrev_b32 v{U+2*i}, 16, v{R+i}\nv_and_b32 v{U+2*i+1}, s3, v{R+i}")
        assert not inj.L
        if CPF:
            l = newlab("c")
            A(f"s_getpc_b64 s[10:11]\n{l}:\ns_sub_u32 s10, s10, {l}-{NAME}_kernel\ns_subb_u32 s11, s11, 0")
            A("s_lshr_b32 s30, s2, 3\ns_lshl_b32 s30, s30, 2\ns_add_u32 s30, s30, s24\ns_lshl_b32 s30, s30, 10")
            A(f"s_min_u32 s30, s30, L_end-{NAME}_kernel-1024\nv_add_u32 v28, s30, v2")
        A("s_mov_b32 s80, 3\ns_mov_b32 s76, 8192")
        if int(opt("fsl", "0")): A(f"s_sleep {opt('fsl')}")
        p, d = newlab("p"), newlab("d")
        A(f"s_mov_b32 s31, {SPIN}\n{p}:")
        n = A.nvm
        for mb in range(4):
            A(f"global_load_dwordx2 v[{ST+2*mb}:{ST+2*mb+1}], v125, s[22:23] offset:{mb*128} sc1")
        A.nvm = n
        A("s_waitcnt vmcnt(0)")
        A(f"v_xor_b32 v24, s90, v{ST+1}\nv_xor_b32 v25, s90, v{ST+3}\nv_xor_b32 v26, s90, v{ST+5}\nv_xor_b32 v27, s90, v{ST+7}")
        A("v_or3_b32 v24, v24, v25, v26\nv_or_b32 v24, v24, v27\nv_cmp_ne_u32 vcc, 0, v24\ns_cmp_eq_u64 vcc, 0")
        A(f"s_cbranch_scc1 {d}\ns_sleep 1\ns_sub_u32 s31, s31, 1\ns_cmp_lg_u32 s31, 0\ns_cbranch_scc1 {p}\n{d}:")
        stamp(A, 4)
        A("s_barrier")
        l = newlab("a")
        emit_sync(A, ["s_cmp_lg_u32 s24, 0", f"s_cbranch_scc1 {l}", "s_lshl_b32 s30, s27, 3", "s_add_u32 s30, s30, s25",
                      "s_lshl_b64 exec, 1, s30", "v_mov_b32 v25, s90", f"global_store_dword v31, v25, s[22:23] {SC}", "s_mov_b64 exec, -1", f"{l}:"])
        stamp(A, 3)
        for u in range(2):
            for r in self.reads(u, u, 0): A(r)
        inj = Inject(A, rest[n1+n2:], 240 // max(1, len(rest) - n1 - n2))
        for mb in range(4):
            m, r = ST + 8 + 4 * mb, ST + 10 + 4 * mb
            inj(f"v_lshlrev_b32 v{r}, 16, v{ST+2*mb}\nv_and_b32 v{m}, s3, v{ST+2*mb}\nv_rcp_f32 v{r}, v{r}\nv_mov_b32 v{m+1}, v{m}\nv_mov_b32 v{r+1}, v{r}")
        for f in range(8):
            mb = f % 4; m, r = ST + 8 + 4 * mb, ST + 10 + 4 * mb
            P = lambda x: f"v[{x}:{x+1}]"
            a = [U + 8 * f + 2 * i for i in range(4)]
            for x in a: inj(f"v_pk_add_f32 {P(x)}, {P(x)}, {P(m)}")
            for x in a: inj(f"v_cvt_pk_bf16_f32 v{x+1}, v{x}, v{x+1}")
            for x in a: inj(f"v_lshlrev_b32 v{x}, 16, v{x+1}\nv_and_b32 v{x+1}, s3, v{x+1}")
            for x in a: inj(f"v_pk_mul_f32 {P(x)}, {P(x)}, {P(r)}")
            for x in a: inj(f"v_cvt_pk_bf16_f32 v{x}, v{x}, v{x+1}")
            for i, x in enumerate(a): inj(f"v_accvgpr_write_b32 a{128+4*f+i}, v{x}")
        assert not inj.L
        A("@tag wp")
        for a in self.adv()[:4]: A(a)
        A("s_waitcnt lgkmcnt(4)")
        stamp(A, 5)
        self.stage0()
        A(f"s_branch L1{t}_s1")
    def phi(self, r, d0):
        it = [f"v_mul_f32 v{20+i}, s86, v{r+i}" for i in range(4)]
        for i in range(4):
            it += [f"v_exp_f32_e64 v{20+i}, v{20+i} clamp", f"v_max_f32 v{r+i}, s88, v{r+i}"]
        it += [f"v_add_f32 v{r+i}, v{r+i}, v{20+i}" for i in range(4)]
        it += [f"v_cvt_pk_bf16_f32 v{d0}, v{r}, v{r+1}", f"v_cvt_pk_bf16_f32 v{d0+1}, v{r+2}, v{r+3}"]
        return it
    def store_act(self, d, mb, ks, imm_k, fl):
        return f"buffer_store_dwordx4 v[{d}:{d+3}], v{2 if mb < 2 else 31 if False else 3}, s[56:59], s{ks} offen offset:{imm_k*2048 + (mb&1)*1024} {fl}"
    def gu(self, gb, ub, pos, pk=False):
        it = [f"s_add_u32 s84, s83, {pos*4096}"]
        if pk: it += ["v_mov_b32 v36, s87", "v_mov_b32 v37, s87", "v_mov_b32 v38, 1.0", "v_mov_b32 v39, 1.0"]
        P = lambda r: f"v[{r}:{r+1}]"
        for mb in range(4):
            d = self.q(gb, mb)
            for p in range(2):
                g = self.q(gb + p, mb); fu, u = self.acc[(ub + p, mb)]
                rd = [[f"v_accvgpr_read_b32 v{24+i}, a{u+i}"] if fu == "a" else [] for i in range(4)]
                if fu == "a": u = 24
                if pk: it += [f"v_pk_mul_f32 {P(20+i)}, {P(g+i)}, {P(36)}" for i in (0, 2)]
                else: it += [f"v_mul_f32 v{20+i}, s87, v{g+i}" for i in range(4)]
                for i in range(4):
                    it += [f"v_exp_f32 v{20+i}, v{20+i}"] + rd[i]
                if pk:
                    it += [f"v_pk_mul_f32 {P(g+i)}, {P(g+i)}, {P(u+i)}" for i in (0, 2)]
                    it += [f"v_pk_add_f32 {P(20+i)}, {P(20+i)}, {P(38)}" for i in (0, 2)]
                    it += [f"v_rcp_f32 v{20+i}, v{20+i}" for i in range(4)]
                    it += [f"v_pk_mul_f32 {P(g+i)}, {P(g+i)}, {P(20+i)}" for i in (0, 2)]
                else:
                    it += [f"v_add_f32 v{20+i}, 1.0, v{20+i}" for i in range(4)]
                    for i in range(4):
                        it += [f"v_rcp_f32 v{20+i}, v{20+i}", f"v_mul_f32 v{g+i}, v{g+i}, v{u+i}"]
                    it += [f"v_mul_f32 v{g+i}, v{g+i}, v{20+i}" for i in range(4)]
                it += [f"v_cvt_pk_bf16_f32 v{d+2*p}, v{g}, v{g+1}", f"v_cvt_pk_bf16_f32 v{d+2*p+1}, v{g+2}, v{g+3}"]
            it.append(self.store_act(d, mb, 84, 0, F_HST))
        return it
    def gub(self, gb, ub, pos, U):
        it = [f"s_add_u32 s84, s83, {pos*4096}"]
        P = lambda r: f"v[{r}:{r+1}]"
        T = list(range(20, 28)); carry = []; tailq = []
        for mb in range(4):
            g = [self.q(gb + p, mb) + i for p in range(2) for i in range(4)]
            src = [(self.acc[(ub + p, mb)][0], self.acc[(ub + p, mb)][1] + i) for p in range(2) for i in range(4)]
            u = [U[i // 4] + i % 4 if f == "a" else r for i, (f, r) in enumerate(src)]
            it.append(carry + [f"v_pk_mul_f32 {P(T[i])}, {P(g[i])}, s[86:87] op_sel:[0,1] op_sel_hi:[1,1]" for i in range(0, 8, 2)])
            ex = []
            for i in range(8):
                ex.append(f"v_exp_f32 v{T[i]}, v{T[i]}")
                if src[i][0] == "a": ex.append(f"v_accvgpr_read_b32 v{u[i]}, a{src[i][1]}")
            it += tailq + ex
            it.append([f"v_pk_mul_f32 {P(g[i])}, {P(g[i])}, {P(u[i])}" for i in range(0, 8, 2)] +
                      [f"v_pk_add_f32 {P(T[i])}, {P(T[i])}, s[52:53]" for i in range(0, 8, 2)])
            it += [f"v_rcp_f32 v{T[i]}, v{T[i]}" for i in range(8)]
            carry = [f"v_pk_mul_f32 {P(g[i])}, {P(g[i])}, {P(T[i])}" for i in range(0, 8, 2)]
            d = g[0]
            tailq = [f"v_cvt_pk_bf16_f32 v{d+i}, v{g[2*i]}, v{g[2*i+1]}" for i in range(4)] + [self.store_act(d, mb, 84, 0, F_HST)]
        return it + [carry] + tailq
    def phib(self, pairs):
        P = lambda r: f"v[{r}:{r+1}]"
        it = []; carry = []; tailq = []
        for k in range(0, len(pairs), 2):
            r = [pairs[k + p][0] + i for p in range(2) for i in range(4)]
            it.append(carry + [f"v_pk_mul_f32 {P(20+i)}, {P(r[i])}, s[86:87] op_sel:[0,0] op_sel_hi:[1,0]" for i in range(0, 8, 2)])
            it += tailq
            for i in range(8):
                it += [f"v_exp_f32_e64 v{20+i}, v{20+i} clamp", f"v_max_f32 v{r[i]}, s88, v{r[i]}"]
            carry = [f"v_pk_add_f32 {P(r[i])}, {P(r[i])}, {P(20+i)}" for i in range(0, 8, 2)]
            tailq = [f"v_cvt_pk_bf16_f32 v{pairs[k+p][1]+j}, v{r[4*p+2*j]}, v{r[4*p+2*j+1]}" for p in range(2) for j in range(2)]
        return it + [carry] + tailq
    def tail_units(self):
        if self.typ == "KV":
            nbs = [0,1,2,3, 4,5,6,7, 8,9,12,13, 10,11,14,15, 16,17,18,19]
        else:
            nbs = [0,1,4,5, 2,3,6,7, 8,9,10,11, 12,13,16,17, 14,15,18,19]
        return [(nb, s) for nb in nbs[:4] for s in (1, 2)] + [(nb, 3) for nb in nbs[:4]] + [(nb, s) for nb in nbs[4:] for s in (1, 2, 3)]
    def tail(self, batches):
        units = self.tail_units()
        mf, fill = [], []
        for u in range(60):
            f = [[] for _ in range(8)]
            if u == 5: f[7] += ["@wv kld", "s_barrier"]
            if u + 2 < 60:
                rd = self.reads((u + 2) % 4, *units[u + 2])
                for i, j in enumerate((0, 2, 4, 6)): f[j].append(rd[i])
                f[6].append(f"@tag t{u+2}")
            if u + 1 < 60: f[7].append(f"@wl t{u+1}")
            if STAMPS and opt("tailst") and u % 6 == 5:
                f[7] += ["s_memtime s[100:101]" if opt("cyc") else "s_memrealtime s[100:101]", "s_waitcnt lgkmcnt(0)", f"v_writelane_b32 v0, s100, {16 + u // 6}"]
            mf += self.mfmas(u % 4, *units[u]); fill += f
        emit_stream(self.A, mf, fill, batches)
    def batches_kv(self):
        B = []
        def ph(db):
            pr = [(self.q(db, mb), self.q(db, mb & 2) + 2 * (mb & 1)) for mb in range(4)]
            return self.phib(pr) if PKB else sum([self.phi(*x) for x in pr], [])
        def vp(eb):
            it = []
            for mb in range(4):
                f, r = self.acc[(4 + eb, mb)]
                d = self.q(eb, (mb & 2) + 1) + 2 * (mb & 1)
                if f == "a":
                    it += [f"v_accvgpr_read_b32 v{24+i}, a{r+i}" for i in range(4)]; r = 24
                it += [f"v_cvt_pk_bf16_f32 v{d}, v{r}, v{r+1}", f"v_cvt_pk_bf16_f32 v{d+1}, v{r+2}, v{r+3}"]
            return it
        pre = [f"v_mov_b32 v{28+i}, 0x3f803f80" for i in range(4)]
        pre += [["s_lshl_b32 s30, s24, 15", "v_add_u32 v16, s30, v2"],
                "v_lshrrev_b32 v19, 4, v1", "v_lshlrev_b32 v19, 4, v19",
                ["s_lshl_b32 s30, s24, 8", "s_add_u32 s30, s30, 0x20000", "v_add_u32 v17, s30, v19"],
                ["s_lshl_b32 s30, s24, 11", "v_add_u32 v18, s30, v2"],
                ["s_lshl_b32 s30, s24, 6", "v_add_u32 v19, s30, v19"]]
        B.append((0, 24, pre + ["s_mov_b32 s52, 1.0", "s_mov_b32 s53, 1.0"]))
        B.append((50, 78, K2.xaddr(24, 25) + K2.xres(24, 25)))
        B += [(78, 104, ph(0)), (104, 130, ph(1)), (130, 156, ph(2)), (156, 162, vp(0)), (162, 186, ph(3)),
              (186, 191, vp(1)), (191, 196, vp(2)), (198, 204, vp(3))]
        Z = 32
        it = []
        for sg in range(2):
            for hd in range(2):
                for db in range(2):
                    pk = self.q(hd * 2 + db, 2 * sg)
                    for eb in range(2):
                        vv = self.q(hd * 2 + eb, 2 * sg + 1)
                        d = ((hd * 2 + eb) * 2 + db) * 4
                        it.append(f"v_mfma_f32_16x16x32_bf16 a[{d}:{d+3}], v[{pk}:{pk+3}], v[{vv}:{vv+3}], {'0' if sg == 0 else f'a[{d}:{d+3}]'}")
                    d = Z + (hd * 2 + db) * 4
                    it.append(f"v_mfma_f32_16x16x32_bf16 a[{d}:{d+3}], v[{pk}:{pk+3}], v[28:31], {'0' if sg == 0 else f'a[{d}:{d+3}]'}")
        B.append((205, 215, it))
        it = [f"ds_write_b128 v16, a[{q*4}:{3+q*4}] offset:{q*1024}" for q in range(8)]
        it.append(["s_mov_b32 s30, 0x00010001", "s_mov_b32 s31, 0x00010001", "s_mov_b64 exec, s[30:31]"] +
                  [f"ds_write_b128 v17, a[{Z+q*4}:{Z+q*4+3}] offset:{q*64}" for q in range(4)] + ["s_mov_b64 exec, -1", "@tag kvw"])
        B.append((219, 225, it))
        it = [["@wl kvw", "s_barrier"], "v_add_u32 v16, 0x10000, v18", "v_add_u32 v17, 0x20000, v19"]
        for w in range(4):
            va = 18 if w < 2 else 16
            it.append(f"ds_read_b128 v[{64+w*12}:{67+w*12}], v{va} offset:{(w%2)*32768}")
            it.append(f"ds_read_b128 v[{68+w*12}:{71+w*12}], v{va} offset:{(w%2)*32768+1024}")
            it.append(f"ds_read_b128 v[{72+w*12}:{75+w*12}], v17 offset:{w*256}")
        it.append("@tag kvr")
        B.append((230, 237, it))
        it = ["@wl kvr"]
        for i in range(12):
            it += [f"v_add_f32 v{64+i}, v{64+i}, v{76+i}", f"v_add_f32 v{88+i}, v{88+i}, v{100+i}"]
        it += [f"v_add_f32 v{64+i}, v{64+i}, v{88+i}" for i in range(12)]
        it += [f"s_mul_i32 s10, s26, {KVP_STRIDE}", "s_add_u32 s11, s10, 8192",
               f"buffer_store_dwordx4 v[64:67], v18, s[60:63], s10 offen {SC}",
               f"buffer_store_dwordx4 v[68:71], v18, s[60:63], s10 offen offset:1024 {SC}",
               ["s_mov_b32 s30, 0x00010001", "s_mov_b32 s31, 0x00010001", "s_mov_b64 exec, s[30:31]",
                f"buffer_store_dwordx4 v[72:75], v19, s[60:63], s11 offen {SC}", "s_mov_b64 exec, -1", "@tag kvs"]]
        B.append((243, 254, it))
        g0 = self.gub(8, 12, 4, (112, 116)) if PKB else self.gu(8, 12, 4)
        k = len(g0) // 3
        pub = [["@wv kvs", "s_barrier"], "v_mov_b32 v16, s89", Unc(signal(16, 20, 17))]
        B.append((256, 286, self.k2.setup_early() + self.k2.c3pf(29)))
        smp, chk = self.hA()
        xf = self.k2.xfirst()
        fa, fb = float(opt("ka", "0.2")), float(opt("kb", "0.5"))
        k = int(len(g0) * fa)
        g0 = g0 + ["@tag hA"]
        B.append((294, 384, smp + g0[:k] + pub + merge(g0[k:], self.k2.wfirst(), 0, 0.95)))
        g1 = self.gub(10, 14, 6, (112, 116)) if PKB else self.gu(10, 14, 6)
        B.append((390, 480, merge(self.h1mix(g1, 768, f=fb), chk + xf, 0.0, 0.9)))
        self.last = self.gu(16, 18, 8, pk=True)
        self.lastld = []
        return B
    def hA(self):
        return ([["global_load_dword v29, v30, s[22:23] sc1", "@tag h1s"]],
                ["@wv h1s", Unc(spin(30, 22, 16, 29, True, sleep=4))])
    def h1mix(self, g, off, after=(), f=0.3, f1=1.0):
        k = int(len(g) * f)
        pub = [["@wv hA", "s_barrier"], Unc(signal(30, 22, 31, off))]
        return g[:k] + pub + merge(g[k:], after, 0, f1)
    def pquads(self):
        return [self.q(nb, mb) for nb in (0, 1, 2, 3) for mb in range(4)] + [self.q(nb, mb) for nb in (9, 11) for mb in range(4)]
    def batches_q(self):
        B = []
        def ph(nb):
            pr = [(self.q(8 + nb, mb), self.q(8 + (nb & 2), mb) + 2 * (nb & 1)) for mb in range(4)]
            return self.phib(pr) if PKB else sum([self.phi(*x) for x in pr], [])
        pre = ["v_mov_b32 v16, s89",
               "v_lshrrev_b32 v19, 4, v1", "v_lshlrev_b32 v19, 4, v19",
               ["s_lshl_b32 s30, s24, 11", "v_add_u32 v18, s30, v2"],
               ["s_lshl_b32 s30, s24, 6", "s_add_u32 s30, s30, 8192", "v_add_u32 v19, s30, v19"]]
        B.append((0, 24, pre + ["s_mov_b32 s52, 1.0", "s_mov_b32 s53, 1.0"]))
        B.append((50, 78, K2.xaddr(24, 25) + K2.xres(24, 25)))
        B.append((78, 102, self.k2.setup_early() + self.k2.c3pf(29)))
        B.append((102, 192, merge(self.gu(0, 4, 0), self.k2.l2pf(), 0, 0.8) + ["@tag hA"]))
        qa, qb, qc = float(opt("qa", "0.5")), float(opt("qb", "0.5")), float(opt("qc", "0.45"))
        wf = self.k2.wfirst()
        g1 = (self.gub(2, 6, 2, (self.q(1, 0), self.q(1, 1))) if PKB else self.gu(2, 6, 2))
        B.append((198, 288, self.h1mix(g1, 0, wf[:5], f=qa, f1=0.95) + ["@tag hA"]))
        smp, chk = self.hA()
        phq = ph(0) + ph(1) + ph(2) + ph(3)
        b = merge(self.h1mix(phq, 1024, f=qb), wf[5:] + smp, 0, qc - 0.2)
        xf = self.k2.xfirst()
        B.append((294, 388, merge(b, chk + xf[:int(opt("qx", "19"))], qc + 0.1, 1.0)))
        self.xrest = xf[int(opt("qx", "19")):]
        P = self.pquads()
        ld = []
        for p in range(8):
            ld.append([f"s_mov_b32 s10, {p*KVP_STRIDE}",
                       f"buffer_load_dwordx4 v[{P[3*p]}:{P[3*p]+3}], v18, s[60:63], s10 offen sc1"])
            ld.append(f"buffer_load_dwordx4 v[{P[3*p+1]}:{P[3*p+1]+3}], v18, s[60:63], s10 offen offset:1024 sc1")
            ld.append(f"buffer_load_dwordx4 v[{P[3*p+2]}:{P[3*p+2]+3}], v19, s[60:63], s10 offen sc1")
        ld.append("@tag kvl")
        chk = ["@wv kvp", Unc(spin(16, 20, 8, 17, True))]
        smp = ["global_load_dword v17, v16, s[20:21] sc1", "@tag kvp"]
        g2 = self.gu(12, 16, 10)
        f = float(opt("kvk", "0.3"))
        k0, k = int(len(g2) * (f - 0.25)), int(len(g2) * f)
        nl = int(opt("kvn", "25"))
        B.append((390, 480, g2[:k0] + smp + merge(g2[k0:k], self.xrest) + chk + merge(g2[k:], ld[:nl], 0, float(opt('kve', '0.7')))))
        self.lastld = ld[nl:]
        self.last = self.gu(14, 18, 12, pk=True)
        return B
    def opath1(self):
        P = self.pquads()
        it = ["@wv kvl"]
        for st in (4, 2, 1):
            for p in range(st):
                for j in range(3):
                    for i in (0, 2):
                        a, b = P[3 * p + j] + i, P[3 * (p + st) + j] + i
                        it.append(f"v_pk_add_f32 v[{a}:{a+1}], v[{a}:{a+1}], v[{b}:{b+1}]")
        for j in range(3):
            it += [f"v_cvt_pk_bf16_f32 v{40+2*j}, v{P[j]}, v{P[j]+1}", f"v_cvt_pk_bf16_f32 v{41+2*j}, v{P[j]+2}, v{P[j]+3}"]
        it += [["s_lshl_b32 s30, s24, 10", "s_add_u32 s30, s30, 0x20000", "v_add_u32 v18, s30, v2"], "ds_write_b128 v18, v[40:43]",
               ["s_lshr_b32 s30, s24, 1", "s_lshl_b32 s30, s30, 10", "s_and_b32 s31, s24, 1", "s_lshl_b32 s31, s31, 3",
                "s_add_u32 s30, s30, s31", "s_add_u32 s30, s30, 0x21000", "v_add_u32 v19, s30, v2"], "ds_write_b64 v19, v[44:45]",
               "v_add_u32 v18, 0x20000, v2"]
        return it
    def opath2(self):
        rd = [["s_waitcnt lgkmcnt(0)", "s_barrier"]] + [f"ds_read_b128 v[{40+i*4}:{43+i*4}], v18 offset:{i*1024}" for i in range(6)]
        den = lambda t: self.q(8 + 2 * (t // 4) + 1, t % 4)
        mm = ["s_waitcnt lgkmcnt(0)"]
        for t in range(8):
            pq = self.q(8 + 2 * (t // 4), t % 4); zf = 56 + (t // 4) * 4
            mm.append(f"v_mfma_f32_16x16x32_bf16 v[{den(t)}:{den(t)+3}], v[{zf}:{zf+3}], v[{pq}:{pq+3}], 0")
        side = [f"v_add_f32 v{den(t)}, s88, v{den(t)}" for t in range(8)] + [f"v_rcp_f32 v{den(t)}, v{den(t)}" for t in range(8)]
        side += [f"v_mov_b32 v{den(t)+1}, v{den(t)}" for t in range(8)]
        for t in range(8):
            pq = self.q(8 + 2 * (t // 4), t % 4); d = 64 + t * 8
            for eb in range(2):
                kf = 40 + ((t // 4) * 2 + eb) * 4
                mm.append(f"v_mfma_f32_16x16x32_bf16 v[{d+eb*4}:{d+eb*4+3}], v[{kf}:{kf+3}], v[{pq}:{pq+3}], 0")
                if t > 0:
                    for _ in range(2):
                        if side: mm.append(side.pop(0))
        mm += side
        fin = []
        for t in range(8):
            d = 64 + t * 8
            fin += [f"v_pk_mul_f32 v[{d+i}:{d+i+1}], v[{d+i}:{d+i+1}], v[{den(t)}:{den(t)+1}]" for i in range(0, 8, 2)]
            fin += [f"v_cvt_pk_bf16_f32 v{d+i}, v{d+2*i}, v{d+2*i+1}" for i in range(4)]
            if ODEF: self.k2.ostores.append(self.store_act(d, t % 4, 85, t // 4, F_HST))
            else: fin.append(self.store_act(d, t % 4, 85, t // 4, F_HST))
        return rd, mm, fin
    def body(self, k2):
        A = self.A; t = self.typ; self.k2 = k2
        def issue(L):
            for pre, ins in L:
                if pre: A(pre)
                A(ins)
        if FAST: self.fast_start()
        else:
            A("s_lshl_b32 s30, s26, 5\nv_mov_b32 v30, s30")
            if NSY:
                l = newlab("m")
                A(f"s_or_b32 s30, s25, s27\ns_xor_b32 s31, s24, 3\ns_or_b32 s30, s30, s31\ns_cmp_lg_u32 s30, 0\ns_cbranch_scc1 {l}")
                emit_sync(A, ["s_waitcnt vmcnt(4)", "v_mov_b32 v25, 1", "s_mov_b64 exec, 1", f"global_store_dword v30, v25, s[20:21] {SC}", "s_mov_b64 exec, -1", f"{l}:"])
            if int(opt("wpf", "0")):
                A("s_lshl_b32 s30, s26, 4\ns_lshl_b32 s31, s24, 2\ns_add_u32 s31, s31, s30\ns_add_u32 s31, s31, 64\nv_add_u32 v24, s31, v1")
                A("v_mul_u32_u24 v25, 6144, v24\nv_mul_u32_u24 v24, 7168, v24")
                if t == "KV":
                    A("s_and_b32 s31, s24, 1\ns_lshl_b32 s31, s31, 3\ns_add_u32 s31, s31, s30\ns_add_u32 s31, s31, 64\nv_add_u32 v26, s31, v1\nv_mul_u32_u24 v26, 7168, v26")
                    A("s_mov_b64 exec, 0xff")
                    A(f"buffer_load_dword v124, v26, s[48:51], 0 offen {F_W1P}")
                A("s_mov_b64 exec, 15")
                for grp in range(5 if t == "Q" else 4):
                    q = (grp == 2) if t == "Q" else (grp < 2)
                    A(f"buffer_load_dword v124, v{25 if q else 24}, s[{32+4*grp}:{35+4*grp}], 0 offen {F_W1P}")
                A("s_mov_b64 exec, -1")
            issue(self.wloads(0, F_W1P))
            for a in self.adv()[:4]: A(a)
            if W1E:
                issue(self.wloads(1, F_W1P))
                for a in self.adv()[:4]: A(a)
            A("s_waitcnt vmcnt(%d)" % (15 if int(opt("wpf", "0")) else 10))
            stamp(A, 1)
            inj = Inject(A, self.wloads(1, F_W1P)[:W1J], 10, skip=int(opt("w1s", "110")))
            ln_part(inj)
            assert not inj.L
            if NSY: A("global_load_dword v29, v30, s[20:21] sc1")
            for j in range(4):
                A(f"ds_write_b128 v22, v[{64+4*j}:{67+4*j}] offset:{24576 + (j%2)*4096 + (j//2)*32768}")
            A("s_waitcnt lgkmcnt(0)\ns_barrier")
            for j in range(4):
                A(f"ds_read_b128 v[{64+4*j}:{67+4*j}], v21 offset:{24576 + j*1024}")
            for j in range(4):
                A(f"s_waitcnt lgkmcnt({3-j})")
                A(f"global_store_dwordx4 v23, v[{64+4*j}:{67+4*j}], s[22:23] {SC}")
                if j < 3: A("v_add_u32 v23, 0x2000, v23")
            stamp(A, 2)
            zero = []
            for (nb, mb), (f, r) in self.acc.items():
                for i in range(4):
                    zero.append(f"v_accvgpr_write_b32 a{r+i}, 0" if f == "a" else f"v_mov_b32 v{r+i}, 0")
            zero.reverse()
            A("@tag xns")
            w2 = self.wloads(2, F_W1P)
            rest = self.wloads(1, F_W1P)[W1J:] + [("\n".join(self.adv()[:4] + [w2[0][0]]), w2[0][1])] + w2[1:]
            W1K = int(opt("w1k", "6"))
            inj = Inject(A, rest[:W1K], 6)
            for z in zero[:64]: inj(z)
            assert not inj.L
            A("@wv xns\ns_barrier")
            if NSY:
                l = newlab("a")
                emit_sync(A, ["s_cmp_lg_u32 s24, 0", f"s_cbranch_scc1 {l}"] + spin(30, 20, 1, 29, True) +
                          ["s_lshl_b32 s30, s27, 3", "s_add_u32 s30, s30, s25", "s_lshl_b64 exec, 1, s30", "v_mov_b32 v25, 1",
                           f"global_store_dword v31, v25, s[22:23] {SC}", "s_mov_b64 exec, -1", f"{l}:"])
            else:
                emit_sync(A, signal(30, 20, 25))
            stamp(A, 3)
            inj = Inject(A, rest[W1K:], 8)
            for z in zero[64:]: inj(z)
            assert not inj.L
            for a in self.adv()[:4]: A(a)
            if WPOLL:
                emit_sync(A, spin(30, 20, 1, 29, True))
                A(f"v_and_b32 v24, 7, v1\nv_lshlrev_b32 v24, 7, v24\ns_lshl_b32 s30, s26, 12\ns_lshl_b32 s31, s24, 10\ns_add_u32 s30, s30, s31\ns_add_u32 s30, s30, {XFL_OFF}\nv_add_u32 v24, s30, v24")
                p, d = newlab("p"), newlab("d")
                emit_sync(A, [f"s_mov_b32 s31, {SPIN}", f"{p}:", "global_load_dword v25, v24, s[22:23] sc1", "s_waitcnt vmcnt(0)",
                              "v_cmp_ne_u32 vcc, 1, v25", "s_cmp_eq_u64 vcc, 0", f"s_cbranch_scc1 {d}", f"s_sleep {opt('nsl', '2')}",
                              "s_sub_u32 s31, s31, 1", "s_cmp_lg_u32 s31, 0", f"s_cbranch_scc1 {p}", f"{d}:"])
            else:
                l = newlab("w")
                A(f"s_cmp_lg_u32 s24, 0\ns_cbranch_scc1 {l}")
                if NSY:
                    p, d = newlab("p"), newlab("d")
                    emit_sync(A, [f"s_mov_b32 s31, {SPIN}", f"{p}:", "global_load_dword v25, v31, s[22:23] sc1", "s_waitcnt vmcnt(0)",
                                  "v_cmp_ne_u32 vcc, 1, v25", "s_cmp_eq_u64 vcc, 0", f"s_cbranch_scc1 {d}", f"s_sleep {opt('nsl', '2')}",
                                  "s_sub_u32 s31, s31, 1", "s_cmp_lg_u32 s31, 0", f"s_cbranch_scc1 {p}", f"{d}:"])
                else:
                    A("s_waitcnt vmcnt(0)")
                    emit_sync(A, spin(30, 20, 32, 25, sleep=4))
                A(f"{l}:")
                A("s_barrier")
            stamp(A, 4)
            issue(self.xloads(0))
            A("s_add_u32 s76, s76, 8192")
            issue(self.xloads(1))
            A("s_add_u32 s76, s76, 8192")
            A("s_waitcnt vmcnt(8)")
            stamp(A, 5)
            for u in range(2):
                for r in self.reads(u, u, 0): A(r)
            A("s_mov_b32 s80, 3")
            if C3 & 1: self.c3setup()
            if CPF:
                l = newlab("c")
                A(f"s_getpc_b64 s[10:11]\n{l}:\ns_sub_u32 s10, s10, {l}-{NAME}_kernel\ns_subb_u32 s11, s11, 0")
                A("s_lshr_b32 s30, s2, 3\ns_lshl_b32 s30, s30, 2\ns_add_u32 s30, s30, s24\ns_lshl_b32 s30, s30, 10")
                A(f"s_min_u32 s30, s30, L_end-{NAME}_kernel-1024\nv_add_u32 v28, s30, v2")
            A("s_waitcnt lgkmcnt(4)")
        A.raw(".p2align 6")
        A(f"L1{t}_loop:")
        pw2 = ["buffer_load_dwordx4 v[20:23], v2, s[64:67], s81 offen", "s_add_u32 s81, s81, 0x100000"]
        pwo = ["buffer_load_dwordx4 v[20:23], v2, s[68:71], s82 offen", "s_add_u32 s82, s82, 0x100000"]
        px = ["buffer_load_dwordx4 v[24:27], v2, s[96:99], s94 offen", "s_add_u32 s94, s94, 0x100000"]
        pfs = [[pw2], [pw2], [pw2], [pwo]]
        if opt("nopf"): pfs = [[], [], [], []]
        if CPF: pfs[1].append(["global_load_dwordx4 v[28:31], v31, s[100:101]" if False else "global_load_dwordx4 v[24:27], v28, s[10:11]"])
        for s in range(4):
            n = (s + 1) % 4
            if s == 1: A(f"L1{t}_s1:")
            self.stage(s, [(0, n), (1, n)], 18 + len(pfs[s]), pf=pfs[s])
        A(f"s_sub_u32 s80, s80, 1\ns_cmp_lg_u32 s80, 0\ns_cbranch_scc1 L1{t}_loop")
        stamp(A, 6)
        self.stage(0, self.tail_units()[:2], 18, lastld=True)
        stamp(A, 7)
        self.tail(self.batches_kv() if t == "KV" else self.batches_q())
        stamp(A, 8)
        last = [["global_load_dword v29, v30, s[22:23] offset:1024 sc1", "@tag h2s"]] + self.last
        if t == "Q":
            n = len(last); rd, mm, fin = self.opath2()
            a, b, c = int(n * float(opt("oa", "0.05"))), int(n * float(opt("ob", "0.2"))), int(n * float(opt("oc", "0.35")))
            st = lambda i: [["s_memtime s[100:101]", "s_waitcnt lgkmcnt(0)", f"v_writelane_b32 v0, s100, {i}"]] if (STAMPS and opt("ost")) else []
            o1 = self.opath1()
            last = (merge(last[:a], self.lastld, 0, 0.6) + st(26) + o1[:1] + st(27) + o1[1:] + st(28) + last[a:b] + rd + st(29) + last[b:c] + mm + st(30) +
                    merge(last[c:], fin))
        for x in last: emit_group(A, x)
        stamp(A, 9)
        k2.setup()
        A(f"s_mov_b32 s51, {int(t == 'Q')}")
        for z in k2.zero(): A(z)
        stamp(A, 11)
        k2.pre()
        A("s_branch L2_start")

class K2:
    ORDER = [0, 4, 1, 5, 8, 12, 9, 13, 10, 11, 2, 6, 3, 7]
    C = 144 * 2048
    AO = 128
    def __init__(self, A): self.A = A; self.ostores = []
    def xfrag(self, slot, k, mb): return slot * 32 + ((mb >> 1) * 4 + k * 2 + (mb & 1)) * 4
    def acc(self, nb, mb): return self.AO + ((mb >> 1) * 16 + nb * 2 + (mb & 1)) * 4
    def reads(self, ring, nb, slot):
        out = []
        for k in range(2):
            for h in range(2):
                r = 32 + ring * 8 + k * 4 + 2 * h
                out.append(f"ds_read_b64_tr_b16 v[{r}:{r+1}], v{4 + (nb & 3)} offset:{slot*16384 + (nb >> 2)*8192 + k*4096 + h*2048}")
        return out
    def mfmas(self, ring, nb, slot, mbs=(0, 1, 2, 3)):
        out = []
        for mb in mbs:
            for k in range(2):
                w = 32 + ring * 8 + k * 4; x = self.xfrag(slot, k, mb); a = self.acc(nb, mb)
                out.append(f"v_mfma_f32_16x16x32_bf16 v[{a}:{a+3}], v[{w}:{w+3}], a[{x}:{x+3}], v[{a}:{a+3}]")
        return out
    def wloads(self, slot):
        return [(f"s_add_u32 m0, s78, {slot*16384 + grp*8192 + j*1024}",
                 f"buffer_load_dwordx4 v28, s[{(32, 44)[grp]}:{(35, 47)[grp]}], s{(72, 96)[j]} offen lds") for j in range(2) for grp in range(2)]
    def xloads(self, slot):
        return [(None, f"buffer_load_dwordx4 a[{slot*32+i*4}:{slot*32+i*4+3}], v2, s[56:59], s{(73, 76)[i//4]} offen offset:{(i%4)*1024} {F_H}")
                for i in range(8)]
    def advx(self): return ["s_add_u32 s73, s73, 4096", "s_add_u32 s76, s76, 4096"]
    def advw(self):
        return ["s_lshr_b64 s[48:49], s[48:49], 4", "s_and_b32 s72, s48, 15", "s_lshl_b32 s72, s72, 16", "s_add_u32 s72, s72, s75",
                "s_add_u32 s96, s72, 16384"]
    def adv(self):
        return ["s_add_u32 s99, s99, 1", "s_add_u32 s73, s73, s66",
                ["s_cmp_eq_u32 s99, 14", "s_cselect_b32 s75, s64, s75", "s_cselect_b32 s73, s65, s73", "s_cselect_b32 s66, s68, s66"],
                "s_add_u32 s76, s73, s69"] + self.advw()
    def setup_early(self):
        class Rec(list):
            def __call__(self, t): self.extend(t.split("\n"))
        it = ["v_lshrrev_b32 v29, 4, v1", "v_bfe_u32 v28, v1, 1, 2", "v_xor_b32 v28, v28, v29", "v_lshlrev_b32 v28, 5, v28",
              "v_and_b32 v29, 1, v1", "v_lshl_add_u32 v28, v29, 4, v28", "v_lshrrev_b32 v29, 3, v1", "v_lshl_add_u32 v28, v29, 11, v28"]
        def grp(f):
            r = Rec(); f(r); it.append(list(r))
        grp(lambda A: A("s_lshl_b32 s78, s24, 11\ns_and_b32 s79, s94, 0x7ff"))
        grp(lambda A: (A(f"s_sub_u32 s31, {3584*2048}, s79"), srd(A, 32, 16, "s79", "s31")))
        grp(lambda A: (A(f"s_xor_b32 s30, s79, 128\ns_sub_u32 s31, {3584*2048}, s30"), srd(A, 44, 16, "s30", "s31")))
        grp(lambda A: (A(f"s_sub_u32 s31, {1024*2048}, s79"), srd(A, 36, 8, "s79", "s31")))
        grp(lambda A: (A(f"s_lshl_b32 s30, s95, 18\ns_lshl_b32 s31, s24, 12\ns_add_u32 s30, s30, s31\ns_add_u32 s30, s30, {P_OFF}"),
                       srd(A, 40, 22, "s30", 262144 - 12288)))
        tab = sum(c << (4 * i) for i, c in enumerate(self.ORDER + self.ORDER[:11:-1]))
        grp(lambda A: A(f"s_mov_b32 s48, {tab & 0xffffffff:#x}\ns_mov_b32 s49, {tab >> 32:#x}"))
        grp(lambda A: A(f"s_lshr_b32 s30, s24, 1\ns_mul_i32 s30, s30, {14*65536}\ns_and_b32 s31, s24, 1\ns_lshl_b32 s31, s31, 15\ns_add_u32 s30, s30, s31"
                        f"\ns_mul_i32 s75, s91, {28*65536}\ns_add_u32 s75, s75, s30\ns_xor_b32 s31, s91, 2\ns_mul_i32 s64, s31, {28*65536}\ns_add_u32 s64, s64, s30"))
        grp(lambda A: A(f"s_lshr_b32 s30, s91, 1\ns_mul_i32 s74, s30, {self.C}\ns_lshl_b32 s30, s74, 1\ns_sub_u32 s69, {self.C}, s30"
                        f"\ns_mul_i32 s73, s91, {14*4096}\ns_add_u32 s73, s73, s74\ns_add_u32 s76, s73, s69"))
        grp(lambda A: A(f"s_xor_b32 s31, s91, 2\ns_mul_i32 s65, s31, {14*4096}\ns_add_u32 s65, s65, s74\ns_add_u32 s65, s65, {13*4096}"))
        grp(lambda A: A("s_mov_b32 s66, 4096\ns_mov_b32 s68, -4096\ns_mov_b32 s99, 2\ns_mov_b32 s80, 3\ns_mov_b32 s72, s75\ns_add_u32 s96, s72, 16384"))
        grp(lambda A: A(f"s_cmp_lt_u32 s25, 4\ns_cselect_b32 s67, {NKV}, {28-NKV}"))
        grp(lambda A: A("s_lshl_b32 s70, s24, 12\ns_add_u32 s70, s70, 65536\ns_lshl_b32 s71, s24, 16"))
        it.append("v_mov_b32 v30, s92")
        return it
    def c3pf(self, tmp): return []
    def l2pf(self): return []
    def wfirst(self):
        g = lambda LL: [[pre, "s_nop 0", ins] for pre, ins in LL]
        return g(self.wloads(0)) + [self.advw()] + g(self.wloads(1)) + [self.advw()]
    def xfirst(self):
        return [i for _, i in self.xloads(0)] + ["@tag k20", self.advx()] + [i for _, i in self.xloads(1)] + [self.advx()]
    def setup(self):
        A = self.A
        A("v_lshrrev_b32 v12, 2, v1\nv_bfe_u32 v13, v1, 3, 2\nv_and_b32 v14, 3, v1")
        for nb in range(4):
            A(f"v_xor_b32 v15, {nb}, v13\nv_lshlrev_b32 v15, 5, v15\nv_lshl_add_u32 v15, v12, 7, v15")
            A(f"v_lshl_add_u32 v{4+nb}, v14, 3, v15")
    @staticmethod
    def xaddr(a, b):
        return [f"v_and_b32 v{a}, 15, v1", f"v_lshlrev_b32 v{a}, 11, v{a}", f"v_bfe_u32 v{b}, v1, 4, 1", f"v_lshl_add_u32 v{a}, v{b}, 5, v{a}",
                f"v_lshrrev_b32 v{b}, 5, v1", f"v_lshl_add_u32 v{a}, v{b}, 4, v{a}", f"v_add_u32 v{a}, s94, v{a}", f"v_add_u32 v{b}, {16*2048}, v{a}"]
    @staticmethod
    def xres(a, b):
        return [f"global_load_dwordx4 a[{128+(p*2+mb)*4}:{131+(p*2+mb)*4}], v{(a, b)[mb]}, s[4:5] offset:{p*64} {F_X0}" for mb in range(2) for p in range(2)]
    def zero(self):
        return [f"v_mov_b64 v[{i}:{i+1}], 0" for i in range(128, 256, 2)]
    def pre(self):
        A = self.A
        A("v_mov_b32 v24, s92\nv_add_u32 v26, 256, v24\nv_add_u32 v27, 512, v24")
        A("s_and_b32 s30, s25, 4\ns_lshl_b32 s30, s30, 6\nv_add_u32 v24, s30, v26")
        A("@wv h2s")
        emit_sync(A, spin(30, 22, 16, 29, True, sleep=4, off=1024))
        A("s_barrier")
    def body(self):
        A = self.A
        NW = int(opt("nwe", "0"))
        A("L2_start:")
        stamp(A, 12)
        for u in range(2):
            for r in self.reads(u, u, 0): A(r)
        A("s_waitcnt lgkmcnt(4)")
        A.raw(".p2align 6")
        A("L2_loop:")
        phs = sorted({(NKV - 2) % 4, (26 - NKV) % 4})
        for s in range(4):
            bt = []
            if s == 0:
                l = newlab("g")
                bt = [(50, 51, [Unc(["s_lshl_b32 s30, s24, 2", "s_add_u32 s30, s30, s80", "s_cmp_lg_u32 s30, 3", f"s_cbranch_scc1 {l}",
                                     "v_mov_b32 v25, 1", "s_mov_b64 exec, 1", "global_atomic_add v24, v25, s[22:23] sc1",
                                     "s_mov_b64 exec, -1", f"{l}:"])]),
                      (57, 58, ["global_load_dword v29, v30, s[22:23] offset:768 sc1"])]
            if s == 1: bt = [(62, 63, [Unc(spin(30, 22, 16, 29, True, sleep=2, off=768))])]
            if s == 2: bt = [(57, 58, ["global_load_dword v25, v26, s[22:23] sc1"])]
            units = [(nb, s) for nb in range(8)] + [(0, (s + 1) % 4), (1, (s + 1) % 4)]
            mf, fill = [], [[] for _ in range(64)]
            W, X = self.wloads((s + 2) % 4), self.xloads((s + 2) % 4)
            E = []
            for i in range(NW * s, NW * s + NW):
                l = newlab("e")
                E.append(([f"s_add_u32 m0, s70, {(i//4)*16384 + (i%4)*1024}", f"s_add_u32 s97, s71, {(i//4)*128*2048 + (i%4)*16384}"],
                          ["s_cmp_eq_u32 s38, 0", f"s_cbranch_scc1 {l}", "buffer_load_dwordx4 v28, s[36:39], s97 offen lds", f"{l}:"]))
            L = [y for i in range(4) for y in (W[i], X[2*i], X[2*i+1])]
            for i, e in enumerate(E): L.insert(3 + 5 * i, e)
            for u in range(8):
                if u == 6: fill[47] += ["s_waitcnt vmcnt(12)", "s_barrier"]
                rd = self.reads((u + 2) % 4, *units[u + 2])
                for i, j in enumerate((0, 2, 4, 6)): fill[8 * u + j].append(rd[i])
                fill[8 * u + 7].append("s_waitcnt lgkmcnt(4)")
                mf += self.mfmas(u % 4, *units[u])
            for i, (pre, ins) in enumerate(L):
                p = 1 + i * 45 // len(L)
                if pre: fill[p - 1] += [pre] if isinstance(pre, str) else pre
                fill[p].append(ins)
            a = self.adv()
            for i in range(0, len(a), 2): fill[49 + i] += a[i:i+2]
            emit_stream(A, mf, fill, bt)
            if s == 3:
                emit_sync(A, spin(26, 22, 16, 25, True))
                A(f"v_mov_b32 v26, v27\ns_cmp_eq_u32 s80, 0\ns_cselect_b32 s38, 0, s38\ns_mov_b32 s80, 0")
                A(f"s_add_u32 s70, s70, {NW*16384}\ns_add_u32 s71, s71, {NW*128*2048}")
            if (s + 1) % 4 in phs: A(f"s_cmp_ge_u32 s99, s67\ns_cbranch_scc1 L2_fin{(s + 1) % 4}")
        A("s_branch L2_loop")
        for ph in phs: self.final(ph, 2 * NW)
    def final(self, ph, NE):
        A = self.A
        A(f"L2_fin{ph}:")
        stamp(A, 13)
        A("@tag k2l")
        A(f"s_sub_u32 s38, {1024*2048}, s79\ns_lshl_b32 s72, s24, 16\ns_lshl_b32 s78, s24, 12\ns_lshl_b32 s77, s91, 16")
        PB = [self.acc(4, 0), self.acc(0, 2), self.acc(4, 2)]
        def padd(j):
            it = []
            for rel in range(3):
                it.append(f"@wv P{rel}{j}")
                for mb in range(2):
                    o = self.AO + (2 * j + mb) * 4; b = PB[rel] + j * 4
                    it.append(f"v_mfma_f32_16x16x32_bf16 v[{o}:{o+3}], a[{240+4*mb}:{243+4*mb}], v[{b}:{b+3}], v[{o}:{o+3}]")
            return it
        def gpart(q):
            o = self.AO + q * 4
            it = []
            it += [f"v_mul_f32 v{20+i}, s87, v{o+i}" for i in range(4)]
            it += [f"v_exp_f32 v{20+i}, v{20+i}" for i in range(4)]
            it += [f"v_add_f32 v{20+i}, 1.0, v{20+i}" for i in range(4)]
            it += [f"v_rcp_f32 v{20+i}, v{20+i}" for i in range(4)]
            it += [f"v_mul_f32 v{o+i}, v{o+i}, v{20+i}" for i in range(4)]
            return it
        def xpart(p, mb):
            r = 128 + (p * 2 + mb) * 4
            q0, q1 = 96 + ((2 * p) * 2 + mb) * 4, 96 + ((2 * p + 1) * 2 + mb) * 4
            it = [f"v_accvgpr_read_b32 v{20+i}, a{r+i}" for i in range(4)]
            it += ["v_permlane16_swap_b32 v20, v22", "v_permlane16_swap_b32 v21, v23"]
            for q, s in ((q0, 20), (q1, 22)):
                it += [f"v_lshlrev_b32 v{q}, 16, v{s}", f"v_and_b32 v{q+1}, s3, v{s}", f"v_lshlrev_b32 v{q+2}, 16, v{s+1}", f"v_and_b32 v{q+3}, s3, v{s+1}"]
            return it
        def fin(p, mb):
            it = []
            qs = [(2 * p) * 2 + mb, (2 * p + 1) * 2 + mb]
            for q in qs:
                it += [f"v_fmac_f32 v{96+q*4+i}, v{64+q*4+i}, v{self.AO+q*4+i}" for i in range(4)]
            d = self.AO + qs[0] * 4
            for j, q in enumerate(qs):
                it += [f"v_cvt_pk_bf16_f32 v{d+2*j}, v{96+q*4}, v{97+q*4}", f"v_cvt_pk_bf16_f32 v{d+2*j+1}, v{98+q*4}, v{99+q*4}"]
            it += [f"v_permlane16_swap_b32 v{d}, v{d+2}", f"v_permlane16_swap_b32 v{d+1}, v{d+3}",
                   f"global_store_dwordx4 v{16+mb}, v[{d}:{d+3}], s[18:19] offset:{p*64} {opt('out', 'nt')}"]
            return it
        l = newlab("f")
        flag = Unc(["s_cmp_lg_u32 s24, 0", f"s_cbranch_scc1 {l}", "v_mov_b32 v25, 1", "s_mov_b64 exec, 1",
                    f"global_store_dword v27, v25, s[22:23] {SC}", "s_mov_b64 exec, -1", f"{l}:"])
        S = [(ph + i) % 4 for i in range(4)]
        un = [(nb, S[0], (0, 1, 2, 3)) for nb in (0, 1, 4, 5, 6, 7)] + [(nb, S[1], (0, 1, 2, 3)) for nb in (4, 5, 6, 7)]
        un += [(nb, S[0], (0, 1, 2, 3)) for nb in (2, 3)] + [(nb, S[1], (2, 3)) for nb in range(4)] + [(nb, S[1], (0, 1)) for nb in range(4)]
        WL = [65536 + t * 16384 for t in range(6)] + [S[2] * 16384, S[3] * 16384]
        XR = [S[2]*32, S[3]*32, 144, 176, 208, S[0]*32, S[1]*32, S[2]*32]
        def sreads(ring, t, nb, kp):
            base = WL[t]; v = (4, 8, 12)[base >> 16] + nb
            return [f"ds_read_b64_tr_b16 v[{32+ring*8+k2*4+2*h}:{33+ring*8+k2*4+2*h}], v{v} offset:{(base & 0xffff) + (kp*2+k2)*4096 + h*2048}"
                    for k2 in range(2) for h in range(2)]
        def smf(ring, t, nb, kp):
            out = []
            for mb in range(2):
                for k2 in range(2):
                    w = 32 + ring * 8 + k2 * 4; x = XR[t] + ((kp * 2 + k2) * 2 + mb) * 4; a = 64 + (nb * 2 + mb) * 4
                    out.append(f"v_mfma_f32_16x16x32_bf16 v[{a}:{a+3}], v[{w}:{w+3}], a[{x}:{x+3}], v[{a}:{a+3}]")
            return out
        sun = [(t, nb, kp) for t in range(8) for nb in range(4) for kp in range(2)]
        NU = len(un); N = NU + 64
        rdu = lambda u: self.reads(u % 4, un[u][0], un[u][1]) if u < NU else sreads(u % 4, *sun[u - NU])
        mfu = lambda u: self.mfmas(u % 4, *un[u]) if u < NU else smf(u % 4, *sun[u - NU])
        start = [0]
        for u in range(N): start.append(start[-1] + len(mfu(u)))
        assert start[NU] == 128
        mf, fill = [], [[] for _ in range(start[N])]
        A("@tag u1")
        nxt = 2
        fb = int(opt("fb", "160"))
        for u in range(N):
            tgt = min(N, u + (3 if u < 11 else 4))
            rs = []
            while nxt < tgt:
                if nxt == 6: fill[start[u] - 1] += ["@wv k2l", "s_barrier"]
                if nxt >= NU + 8 * NE and (nxt - NU) % 16 == 0: fill[start[u] - 1] += [f"@wv W{(nxt - NU) // 8 + 1}", "s_barrier"]
                rs += rdu(nxt) + [f"@tag u{nxt}"]; nxt += 1
            n = start[u + 1] - start[u]; k = 0; rr = [r for r in rs if not r.startswith("@")]
            for r in rs:
                if r.startswith("@"): fill[start[u] + min(n - 1, (k - 1) * n // len(rr))].append(r)
                else: fill[start[u] + k * n // len(rr)].append(r); k += 1
            if u + 1 < N: fill[start[u + 1] - 1].append(f"@wl u{u+1}")
            if u + 1 >= NU and u + 1 < N and (u + 1 - NU) % 8 == 0: fill[start[u + 1] - 1].append(f"@wv X{(u + 1 - NU) // 8}")
            mf += mfu(u)
        fill[fb] += ["@wv ps", "s_barrier", flag]
        def wl(t): return [([f"s_add_u32 m0, s78, {WL[t] + j*1024}", f"s_add_u32 s96, s72, {t*128*2048 + j*16384}"],
                            ["buffer_load_dwordx4 v28, s[36:39], s96 offen lds"] + ([f"@tag W{t}"] if j == 3 else [])) for j in range(4)]
        def xl(t): return [([f"s_add_u32 s73, s74, {112*2048 + t*8192 + (i//4)*4096}"] if i % 4 == 0 else [],
                            [f"buffer_load_dwordx4 a[{XR[t]+i*4}:{XR[t]+i*4+3}], v2, s[56:59], s73 offen offset:{(i%4)*1024} {F_H}"] +
                            ([f"@tag X{t}"] if i == 7 else [])) for i in range(8)]
        L = []; xe = []; xs = []; we = {}
        for t in range(0, 8, 2):
            if t >= NE: L += wl(t) + wl(t + 1); we[t] = len(L) - 1
            for tt in (t, t + 1):
                xs.append(len(L)); L += xl(tt); xe.append(len(L) - 1)
        r1, r2 = float(opt("r1", "4.5")), float(opt("r2", "3.0"))
        p = 1.0; pos = []
        for pre, ins in L:
            q = int(p); pos.append(q)
            fill[q - 1] += pre; fill[q] += ins
            p += r1 if p < 128 else r2
        for t in range(8): assert pos[xe[t]] < 128 + 32 * t - 1, (t, pos[xe[t]])
        for t, i in we.items(): assert pos[i] < 128 + 32 * t - 14
        assert pos[we[6] - 7] > 40 and pos[xs[5]] > 96 and pos[xs[6]] > 128 and pos[xs[7]] > 160
        misc = (["v_mov_b32 v27, s93", "v_and_b32 v26, 3, v1", "v_lshlrev_b32 v26, 7, v26", "v_xor_b32 v26, v26, v27", "s_mov_b32 s3, 0xffff0000"] +
                self.xaddr(16, 17) + [f"v_add_u32 v{8+i}, 0x10000, v{4+i}" for i in range(4)] + [f"v_add_u32 v{12+i}, 0x20000, v{4+i}" for i in range(4)] +
                [f"v_mov_b32 v{i}, 0" for i in range(64, 96)] +
                ["v_lshrrev_b32 v20, 4, v1", "v_bfe_u32 v21, v1, 2, 2", "v_and_b32 v22, 1, v1", "v_lshlrev_b32 v22, 4, v22", "v_mov_b32 v23, 0x3f80",
                 "v_lshlrev_b32 v22, v22, v23", ["v_cmp_eq_u32 vcc, v20, v21", "v_cndmask_b32 v22, 0, v22, vcc"], "v_and_b32 v20, 2, v1",
                 ["v_cmp_eq_u32 vcc, 0, v20", "v_cndmask_b32 v21, 0, v22, vcc", "v_cndmask_b32 v22, v22, v64, vcc"],
                 "v_accvgpr_write_b32 a240, v21", "v_accvgpr_write_b32 a241, v22", "v_accvgpr_write_b32 a242, 0", "v_accvgpr_write_b32 a243, 0",
                 "v_accvgpr_write_b32 a244, 0", "v_accvgpr_write_b32 a245, 0", "v_accvgpr_write_b32 a246, v21", "v_accvgpr_write_b32 a247, v22"])
        bt = [(0, 56, misc)]
        def send(rel, j):
            a = PB[rel - 1] + j * 8
            return [f"v_cvt_pk_bf16_f32 v{a+i}, v{a+2*i}, v{a+2*i+1}" for i in range(4)] + [
                [f"s_xor_b32 s30, s77, {(rel << 16) + (rel - 1) * 16384}", f"buffer_store_dwordx4 v[{a}:{a+3}], v2, s[40:43], s30 offen offset:{j*1024} {SC}"]]
        for j in range(4): bt.append((62 + 10 * j, 72 + 10 * j, send(1, j) + send(3, j)))
        for j in range(4): bt.append((106 + 5 * j, 111 + 5 * j, send(2, j) + (["@tag ps"] if j == 3 else [])))
        pc, sd, gd = int(opt("pc", "232")), int(opt("sd", "32")), int(opt("gd", "40"))
        bt.append((130, pc - sd - 1, xpart(0, 0) + xpart(0, 1) + xpart(1, 0) + xpart(1, 1)))
        bt.append((pc - sd, pc - sd + 1, [["global_load_dword v25, v26, s[22:23] sc1", "@tag pp"]]))
        p_, d_ = newlab("p"), newlab("d")
        chk = ["v_cmp_ne_u32 vcc, 1, v25", "s_cmp_eq_u64 vcc, 0", f"s_cbranch_scc1 {d_}"]
        it = ["@wv pp", Unc(chk + [f"s_mov_b32 s31, {SPIN}", f"{p_}:", "global_load_dword v25, v26, s[22:23] sc1", "s_waitcnt vmcnt(0)"] + chk +
                            ["s_sleep 1", "s_sub_u32 s31, s31, 1", "s_cmp_lg_u32 s31, 0", f"s_cbranch_scc1 {p_}", f"{d_}:"])]
        for j in range(4):
            for rel in range(3):
                it.append([f"s_add_u32 s30, s77, {rel * 16384}",
                           f"buffer_load_dwordx4 v[{PB[rel]+j*4}:{PB[rel]+j*4+3}], v2, s[40:43], s30 offen offset:{j*1024} sc1", f"@tag P{rel}{j}"])
        bt.append((pc, pc + 26, it))
        G = padd(0) + padd(1) + gpart(0) + gpart(1) + padd(2) + gpart(2) + gpart(3) + padd(3) + gpart(4) + gpart(5) + gpart(6) + gpart(7)
        bt.append((pc + gd, 372, G))
        bt.append((374, 384, fin(0, 0) + fin(0, 1)))
        bt.append((390, 391, fin(1, 0) + fin(1, 1)))
        if STAMPS and not opt("tailst"):
            for t in range(9):
                fill[127 + 32 * t] += ["s_memtime s[100:101]" if opt("cyc") else "s_memrealtime s[100:101]", "s_waitcnt lgkmcnt(0)", f"v_writelane_b32 v0, s100, {17 + t}"]
        emit_stream(A, mf, fill, bt)
        stamp_out(A, 15, f"a{ph}")
        A("s_endpgm")

def kernel(A):
    name = NAME + "_kernel"
    A.raw(f".globl {name}\n.p2align 8\n.type {name},@function")
    A(f"{name}:")
    A("s_cmp_ge_u32 s2, 256\ns_cbranch_scc1 L_end")
    if STAMPS: A("s_memtime s[98:99]" if opt("cyc") else "s_memrealtime s[98:99]")
    if FAST: A("s_memrealtime s[96:97]")
    A("s_load_dwordx4 s[4:7], s[0:1], 0\ns_load_dwordx2 s[8:9], s[0:1], 16")
    A("s_load_dwordx4 s[12:15], s[0:1], 32\ns_load_dwordx4 s[16:19], s[0:1], 48\ns_load_dwordx4 s[20:23], s[0:1], 64")
    if ECPF:
        l = newlab("c")
        A(f"s_getpc_b64 s[10:11]\n{l}:\ns_sub_u32 s10, s10, {l}-{name}\ns_subb_u32 s11, s11, 0")
        A("s_lshr_b32 s30, s2, 3\ns_lshl_b32 s30, s30, 12\nv_lshl_add_u32 v28, v0, 4, s30")
        A(f"v_min_u32 v28, L_end-{name}-16, v28")
        A("global_load_dwordx4 v[120:123], v28, s[10:11]")
    A("v_and_b32 v1, 63, v0\nv_lshrrev_b32 v2, 6, v0\nv_readfirstlane_b32 s24, v2")
    A("s_and_b32 s25, s2, 7\ns_bfe_u32 s26, s2, 0x30003\ns_lshr_b32 s27, s2, 6\ns_and_b32 s29, s27, 1")
    A("s_and_b32 s28, s25, 3\ns_lshl_b32 s28, s28, 2\ns_add_u32 s28, s28, s27")
    A("s_lshl_b32 s30, s27, 3\ns_add_u32 s30, s30, s25\ns_lshl_b32 s30, s30, 3\ns_lshl_b32 s31, s26, 8\ns_add_u32 s30, s30, s31")
    A("v_lshrrev_b32 v21, 5, v0\nv_add_u32 v21, s30, v21\nv_and_b32 v22, 31, v0")
    A("v_lshlrev_b32 v20, 11, v21\nv_lshl_add_u32 v20, v22, 4, v20")
    A(f"v_lshlrev_b32 v31, 7, v22\ns_lshl_b32 s30, s26, 12\ns_add_u32 s30, s30, {XFL_OFF}\nv_add_u32 v31, s30, v31\nv_mov_b32 v24, 0")
    A("s_or_b32 s3, s25, s27\ns_xor_b32 s30, s24, 3\ns_or_b32 s3, s3, s30")
    A("s_waitcnt lgkmcnt(0)")
    if FAST:
        l = newlab("z")
        n = A.nvm
        A(f"s_cmp_lg_u32 s3, 0\ns_cbranch_scc1 {l}\ns_or_b32 s30, s96, 1\nv_mov_b32 v24, s30\ns_lshl_b32 s30, s26, 5\nv_mov_b32 v25, s30")
        A(f"s_mov_b64 exec, 1\nglobal_store_dword v25, v24, s[20:21] {SC}\ns_mov_b64 exec, -1\n{l}:")
        A.nvm = n
    elif NSY:
        l = newlab("z")
        A(f"s_cmp_lg_u32 s3, 0\ns_cbranch_scc1 {l}\nglobal_store_dword v31, v24, s[22:23] {SC}\n{l}:")
    for j in range(4):
        A(f"global_load_dwordx4 v[{64+4*j}:{67+4*j}], v20, s[4:5] offset:{512*j} {F_X0}")
    if FAST:
        A("s_lshl_b32 s30, s26, 2\ns_add_u32 s30, s30, s24\ns_lshl_b32 s30, s30, 6\nv_and_b32 v24, 15, v1\nv_add_u32 v24, s30, v24")
        A(f"v_lshlrev_b32 v125, 3, v24\nv_add_u32 v125, {STAT_OFF}, v125")
        A("v_lshlrev_b32 v24, 11, v24\nv_lshrrev_b32 v25, 4, v1\nv_lshl_add_u32 v127, v25, 4, v24")
        A(f"v_lshlrev_b32 v20, 3, v21\nv_add_u32 v20, {STAT_OFF}, v20")
    if opt("tlb"):
        A("v_lshlrev_b32 v29, 20, v1")
        A("global_load_dword v124, v29, s[22:23]")
        A("v_and_b32 v30, 3, v1\nv_lshlrev_b32 v30, 20, v30")
        A("global_load_dword v125, v30, s[18:19]")
        A("v_min_u32 v30, 6, v1\nv_lshlrev_b32 v30, 20, v30")
        A("global_load_dword v126, v30, s[16:17]\nglobal_load_dword v126, v30, s[12:13]\nglobal_load_dword v126, v30, s[14:15]")
        A("v_min_u32 v30, 5, v1\nv_lshlrev_b32 v30, 20, v30\nglobal_load_dword v126, v30, s[6:7]")
        A("v_min_u32 v30, 1, v1\nv_lshlrev_b32 v30, 20, v30\nglobal_load_dword v126, v30, s[8:9]")
    if STAMPS: A("v_writelane_b32 v0, s98, 0")
    A("v_lshlrev_b32 v2, 4, v1")
    A("v_lshrrev_b32 v24, 3, v1\ns_lshl_b32 s30, s24, 3\nv_add_u32 v24, s30, v24")
    A("v_bfe_u32 v25, v1, 4, 1\ns_and_b32 s30, s24, 1\ns_lshl_b32 s30, s30, 1\nv_or_b32 v25, s30, v25")
    A("v_bfe_u32 v26, v1, 1, 2\nv_xor_b32 v26, v26, v25\nv_lshlrev_b32 v26, 5, v26")
    A("v_and_b32 v27, 1, v1\nv_lshl_add_u32 v26, v27, 4, v26")
    A(f"v_mul_u32_u24 v{K1.VO6}, 6144, v24\nv_add_u32 v{K1.VO6}, v{K1.VO6}, v26")
    A(f"v_mul_u32_u24 v{K1.VO7}, 7168, v24\nv_add_u32 v{K1.VO7}, v{K1.VO7}, v26")
    A("v_lshrrev_b32 v24, 2, v1\ns_and_b32 s30, s24, 1\ns_lshl_b32 s30, s30, 4\nv_add_u32 v24, s30, v24")
    A("v_bfe_u32 v25, v1, 1, 1\nv_lshrrev_b32 v26, 5, v1\nv_xor_b32 v25, v25, v26\nv_lshlrev_b32 v25, 5, v25")
    A("v_lshl_add_u32 v25, v27, 4, v25")
    A(f"v_mul_u32_u24 v{K1.VOH}, 7168, v24\nv_add_u32 v{K1.VOH}, v{K1.VOH}, v25")
    A(f"v_add_u32 v{K1.VX1}, 4096, v2\nv_add_u32 v3, {144*2048}, v2")
    A(f"s_mov_b32 s72, 0\ns_mov_b32 s74, 0\ns_mov_b32 s73, {32*6144}\ns_mov_b32 s75, {32*7168}\ns_mov_b32 s76, 0")
    A("s_lshl_b32 s78, s24, 10")
    A("s_lshr_b32 s79, s24, 1\ns_lshl_b32 s79, s79, 12\ns_and_b32 s30, s24, 1\ns_lshl_b32 s30, s30, 10\ns_add_u32 s79, s79, s30")
    A("s_lshl_b32 s10, s26, 2\ns_add_u32 s10, s10, s24\ns_lshl_b32 s30, s10, 17")
    srd(A, 52, 22, "s30", 131072)
    A(f"s_mul_i32 s30, s10, {2*144*2048}\ns_add_u32 s30, s30, {ACT_OFF}")
    srd(A, 56, 22, "s30", 2 * 144 * 2048)
    A(f"s_mul_i32 s30, s28, {8*KVP_STRIDE}\ns_add_u32 s30, s30, {KVP_OFF}")
    srd(A, 60, 22, "s30", 8 * KVP_STRIDE)
    srd(A, 64, 16, 0, 3584 * 2048); srd(A, 68, 8, 0, 1024 * 2048)
    A("s_lshl_b32 s81, s2, 2\ns_add_u32 s81, s81, s24\ns_lshl_b32 s81, s81, 10\ns_mov_b32 s82, s81")
    A(f"s_mov_b32 s86, {LOG2E:#x}\ns_mov_b32 s87, {NLOG2E:#x}\ns_mov_b32 s88, {EPS6:#x}")
    A("s_lshl_b32 s89, s28, 4\ns_add_u32 s89, s89, 8")
    A("s_lshr_b32 s91, s25, 2\ns_lshl_b32 s91, s91, 1\ns_and_b32 s30, s25, 1\ns_add_u32 s91, s91, s30")
    A("s_lshl_b32 s95, s26, 3\ns_and_b32 s30, s25, 2\ns_lshl_b32 s30, s30, 1\ns_add_u32 s95, s95, s30\ns_add_u32 s95, s95, s27")
    A("s_lshl_b32 s94, s26, 2\ns_add_u32 s94, s94, s24\ns_lshl_b32 s94, s94, 1\ns_lshr_b32 s30, s91, 1\ns_add_u32 s94, s94, s30\ns_lshl_b32 s94, s94, 16")
    A("s_and_b32 s30, s95, 7\ns_lshl_b32 s30, s30, 8\ns_add_u32 s94, s94, s30\ns_and_b32 s30, s91, 1\ns_lshl_b32 s30, s30, 7\ns_add_u32 s94, s94, s30")
    A("s_lshl_b32 s31, s91, 7")
    A(f"s_lshl_b32 s92, s26, 11\ns_add_u32 s92, s92, {FLAG_OFF}")
    A(f"s_lshl_b32 s93, s95, 9\ns_add_u32 s93, s93, {FLAG_OFF + 16384}\ns_add_u32 s93, s93, s31")
    l = newlab("z")
    A(f"s_cmp_lg_u32 s24, 0\ns_cbranch_scc1 {l}")
    A("v_mov_b32 v24, 0\nv_lshl_add_u32 v25, v1, 8, s92\nv_subrev_u32 v25, 256, v25\nv_mov_b32 v26, s93")
    A("v_cmp_eq_u32 vcc, 0, v1\nv_cndmask_b32 v25, v25, v26, vcc")
    A("s_or_b32 s30, s25, s27\ns_cmp_eq_u32 s30, 0\ns_cselect_b32 s30, 63, 1\ns_mov_b32 s31, 0\ns_mov_b64 exec, s[30:31]")
    A(f"global_store_dword v25, v24, s[22:23] {SC}")
    if DYN:
        A(f"s_mov_b64 exec, 1\nv_and_b32 v26, 0xffffff7f, v26\nglobal_store_dword v26, v24, s[22:23] offset:64 {SC}")
    A("s_mov_b64 exec, -1")
    A(f"{l}:")
    A("v_xor_b32 v24, v21, v22\nv_and_b32 v24, 7, v24\nv_lshlrev_b32 v24, 4, v24\nv_lshl_add_u32 v22, v22, 7, v24")
    A("v_readfirstlane_b32 s30, v21")
    A("s_lshr_b32 s31, s30, 6\ns_lshl_b32 s31, s31, 17\ns_bfe_u32 s3, s30, 0x20004\ns_lshl_b32 s3, s3, 10\ns_add_u32 s31, s31, s3")
    A("s_and_b32 s30, s30, 8\ns_lshl_b32 s30, s30, 4\ns_add_u32 s31, s31, s30\ns_lshl_b32 s30, s24, 15\ns_add_u32 s31, s31, s30")
    A("v_lshrrev_b32 v23, 5, v1\nv_lshlrev_b32 v23, 12, v23\nv_bfe_u32 v24, v1, 3, 2\nv_lshl_add_u32 v23, v24, 8, v23")
    A("v_lshrrev_b32 v24, 3, v1\nv_xor_b32 v24, v24, v1\nv_and_b32 v24, 7, v24\nv_lshl_add_u32 v23, v24, 4, v23\nv_add_u32 v23, s31, v23")
    A("s_lshr_b32 s30, s24, 1\ns_lshl_b32 s30, s30, 15\ns_and_b32 s31, s24, 1\ns_lshl_b32 s31, s31, 12\ns_add_u32 s30, s30, s31\nv_add_u32 v21, s30, v2")
    A("v_lshrrev_b32 v24, 4, v1\nv_bfe_u32 v25, v1, 2, 2\nv_and_b32 v26, 3, v1")
    A("v_lshl_add_u32 v27, v24, 3, v25")
    A("v_lshrrev_b32 v28, 1, v25\nv_and_b32 v29, 1, v24\nv_lshl_or_b32 v28, v29, 1, v28")
    for nb in range(4):
        A(f"v_xor_b32 v30, {nb}, v28\nv_lshlrev_b32 v30, 5, v30\nv_lshl_add_u32 v30, v27, 7, v30")
        A(f"v_lshl_add_u32 v{4+nb}, v26, 3, v30\nv_add_u32 v{8+nb}, 0x10000, v{4+nb}\nv_add_u32 v{12+nb}, 0x20000, v{4+nb}")
    A("s_lshr_b32 s83, s28, 2\ns_mul_i32 s83, s83, 28\ns_bfe_u32 s30, s28, 0x10001\ns_add_u32 s83, s83, s30\ns_lshl_b32 s83, s83, 11")
    A("s_lshr_b32 s10, s28, 1\ns_mul_i32 s10, s10, 896\ns_lshl_b32 s11, s28, 7")
    NQ, NF = 1024 * 6144, 1024 * 7168
    def wsrd(d, lo, off, tot):
        A(f"s_sub_u32 s31, {tot}, {off}")
        srd(A, d, lo, off, "s31")
    k2 = K2(A)
    A("s_cmp_ge_u32 s25, 4\ns_cbranch_scc1 L1_typeQ")
    for nb in range(2):
        A(f"v_xor_b32 v30, {nb}, v29\nv_lshlrev_b32 v30, 5, v30\nv_lshl_add_u32 v30, v27, 6, v30")
        A(f"v_lshl_add_u32 v30, v26, 3, v30\nv_add_u32 v{12+nb}, 0x20000, v30")
    A("s_add_u32 s30, s11, 2048"); wsrd(32, 6, "s30", NQ)
    A("s_add_u32 s30, s11, 4096"); wsrd(36, 6, "s30", NQ)
    A("s_lshl_b32 s30, s29, 8\ns_add_u32 s30, s30, 512\ns_add_u32 s30, s30, s10")
    wsrd(40, 12, "s30", NF); wsrd(44, 14, "s30", NF)
    A("s_lshl_b32 s31, s29, 12\ns_add_u32 s83, s83, s31")
    A("s_lshl_b32 s30, s29, 6\ns_add_u32 s30, s30, 640\ns_add_u32 s30, s30, s10")
    A("s_cmp_ge_u32 s24, 2\ns_cselect_b32 s10, s14, s12\ns_cselect_b32 s11, s15, s13")
    wsrd(48, 10, "s30", NF)
    K1(A, "KV").body(k2)
    A("L1_typeQ:")
    wsrd(40, 6, "s11", NQ)
    A("s_lshl_b32 s30, s29, 8\ns_add_u32 s30, s30, s10")
    wsrd(32, 12, "s30", NF); wsrd(36, 14, "s30", NF)
    A("s_lshl_b32 s31, s29, 12\ns_add_u32 s83, s83, s31")
    A("s_add_u32 s30, s30, 128")
    wsrd(44, 12, "s30", NF); wsrd(48, 14, "s30", NF)
    A(f"s_lshl_b32 s85, s28, 12\ns_add_u32 s85, s85, {112*2048}")
    K1(A, "Q").body(k2)
    k2.body()
    A("L_end:")
    A("s_endpgm")
    A.raw('.section .rodata,"a"\n.p2align 6')
    A.raw(f".amdhsa_kernel {name}")
    for l in (".amdhsa_next_free_vgpr 512", ".amdhsa_next_free_sgpr 102", ".amdhsa_accum_offset 256", ".amdhsa_group_segment_fixed_size 0",
              ".amdhsa_kernarg_size 80", ".amdhsa_user_sgpr_count 2", ".amdhsa_user_sgpr_kernarg_segment_ptr 1",
              ".amdhsa_system_sgpr_workgroup_id_x 1", ".amdhsa_float_denorm_mode_32 3", ".end_amdhsa_kernel"):
        A.raw(l)

def main(out):
    A = Asm()
    for l in open("cdna_kernels/" + NAME + ".s.ref").read().split("\n"):
        if l.startswith("; @launch") or l.startswith("; Override") or l.startswith("; grid=ceil"): continue
        if not l.startswith(";"): break
        A.raw(l)
    if "--list" in sys.argv:
        A.raw(f"; @launch kernel={NAME}_kernel grid=(256,1,1) block=(256,1,1) lds=163840")
    else:
        A.raw("; @launch grid=(256,1,1) block=(256,1,1) lds=163840")
    A.raw('.amdgcn_target "amdgcn-amd-amdhsa--gfx950"')
    A.raw(MAC)
    A.raw(".text")
    kernel(A)
    open(out, "w").write(A.finalize())
main(sys.argv[1])
```

```python
import sys
from asmlib import Asm, MAC, cost

NAME = "recurrent_scan__linear_attn_block__glu_gated_swiglu__prompt"
XN_OFF = 0
ACT_OFF = 4 << 20
KVP_OFF = 24 << 20
KVP_STRIDE = 8448
P_OFF = 32 << 20
FLAG_OFF = (48 << 20) + (int([a for a in sys.argv if a.startswith('--fo=')][0][5:]) if any(a.startswith('--fo=') for a in sys.argv) else 0)
XFL_OFF = 49 << 20
STAT_OFF = 50 << 20
STAMP_OFF = 56 << 20
LOG2E = 0x3fb8aa3b
NLOG2E = 0xbfb8aa3b
EPS6 = 0x358637bd
EPS5 = 0x3727c5ac
SPIN = 0x40000

def opt(name, default=""):
    for a in sys.argv:
        if a.startswith("--" + name + "="): return a.split("=", 1)[1].replace("+", " ")
    return default
STAMPS = "--stamps" in sys.argv
ROT = int(opt("rot", "0"))
L2PF = int(opt("l2pf", "0"))
XFIRST = int(opt("xfirst", "1"))
WU = int(opt("wu", "10"))
RB = int(opt("rb", "2"))
RINV = int(opt("rinv", "0"))
CPF = int(opt("cpf", "1"))
ECPF = int(opt("ecpf", "1"))
W1E = int(opt("w1e", "0"))
W1J = int(opt("w1j", "4"))
NSY = int(opt("nsy", "1"))
ODEF = int(opt("odef", "0"))
FAST = int(opt("fast", "0"))
PKB = int(opt("pkb", "1"))
DYN = int(opt("dyn", "0"))
CMAP = int(opt("cmap", "0"))
WPOLL = int(opt("wpoll", "0"))
C3 = int(opt("c3", "0"))
NKV = int(opt("nkv", "15"))
P16 = int(opt("p16", "1"))

NA = int(opt("na", "12"))
F_X0 = opt("x0", "nt")
F_W1P = opt("w1p", "nt")
F_W1 = opt("w1", "nt")
SC = "sc0 sc1"
F_XN = opt("xn", "sc1")
F_H = opt("h", "sc1")
F_HST = opt("hst", SC)

def stamp(A, idx, tail=False):
    if not STAMPS: return
    if opt("tailst") and 16 <= idx < 26 and not tail: return
    A("s_memtime s[100:101]" if opt("cyc") else "s_memrealtime s[100:101]")
    A("s_waitcnt lgkmcnt(0)")
    A(f"v_writelane_b32 v0, s100, {idx}")
def stamp_out(A, idx, tag):
    if not STAMPS: return
    A("s_waitcnt vmcnt(0)")
    stamp(A, idx)
    A(f"s_cmp_lg_u32 s24, 0\ns_cbranch_scc1 LS_{tag}")
    A(f"s_lshl_b32 s100, s2, 7\ns_add_u32 s100, s100, {STAMP_OFF}")
    A("v_lshl_add_u32 v20, v1, 2, s100")
    A("s_mov_b64 exec, 0xffffffff")
    A("global_store_dword v20, v0, s[22:23]")
    if opt("dbgst"):
        A(f"s_cmp_lg_u32 s2, 0\ns_cbranch_scc1 LS_{tag}")
        A("v_readlane_b32 s30, v0, 0\ns_mov_b64 exec, 1")
        for w, idx in zip((1, 3, 4, 5, 7, 9, 11, 12, 13, 15), (1, 3, 5, 6, 8, 9, 11, 12, 13, 15)):
            A(f"v_readlane_b32 s31, v0, {idx}\ns_sub_u32 s31, s31, s30\nv_mov_b32 v21, s31\nv_mov_b32 v22, {w*4}")
            A("global_store_dword v22, v21, s[20:21]")
    A(f"LS_{tag}:")

def srd(A, d, lo, off, nrec):
    A(f"s_add_u32 s{d}, s{lo}, {off}")
    A(f"s_addc_u32 s{d+1}, s{lo+1}, 0")
    A(f"s_mov_b32 s{d+2}, {nrec}")
    A(f"s_mov_b32 s{d+3}, 0x20000")

_lab = [0]
def newlab(p):
    _lab[0] += 1
    return f"L{p}{_lab[0]}"

def spin(vaddr, base, target, vtmp, first_loaded=False, sleep=1, off=0):
    l, d = newlab("p"), newlab("d")
    g = []
    if first_loaded:
        g += [f"v_readfirstlane_b32 s30, v{vtmp}", f"s_cmp_ge_u32 s30, {target}", f"s_cbranch_scc1 {d}"]
    g += [f"s_mov_b32 s31, {SPIN}", f"{l}:",
          f"global_load_dword v{vtmp}, v{vaddr}, s[{base}:{base+1}] offset:{off} sc1", "s_waitcnt vmcnt(0)",
          f"v_readfirstlane_b32 s30, v{vtmp}", f"s_cmp_ge_u32 s30, {target}", f"s_cbranch_scc1 {d}",
          f"s_sleep {sleep}", "s_sub_u32 s31, s31, 1", "s_cmp_lg_u32 s31, 0", f"s_cbranch_scc1 {l}", f"{d}:"]
    return g

def signal(vaddr, base, v1, off=0):
    l = newlab("s")
    return ["s_cmp_lg_u32 s24, 0", f"s_cbranch_scc1 {l}", f"v_mov_b32 v{v1}, 1", "s_mov_b64 exec, 1",
            f"global_atomic_add v{vaddr}, v{v1}, s[{base}:{base+1}] offset:{off} sc1", "s_mov_b64 exec, -1", f"{l}:"]

def emit_group(A, it, uncounted=False):
    if isinstance(it, str): it = [it]
    for t in it: A(t)

def emit_stream(A, mf, fill, batches):
    bi = 0; pos = 0; done = 0
    def icost(it):
        if isinstance(it, str): return cost(it)
        if it and it[0].startswith('v_pk_'): return 0
        return sum(cost(t) for t in it[:6])
    tot = [sum(icost(x) for x in b[2]) for b in batches]
    for i, m in enumerate(mf):
        A(m)
        for t in fill[i]: emit_group(A, t)
        while bi < len(batches) and batches[bi][0] <= i:
            st, en, items = batches[bi]
            want = tot[bi] * min(1.0, (i - st + 1) / max(1, en - st))
            while pos < len(items) and done < want:
                emit_group(A, items[pos]); done += icost(items[pos]); pos += 1
            while pos < len(items) and icost(items[pos]) == 0:
                emit_group(A, items[pos]); pos += 1
            if pos >= len(items):
                bi += 1; pos = 0; done = 0
            else:
                break
    while bi < len(batches):
        items = batches[bi][2]
        while pos < len(items):
            emit_group(A, items[pos]); pos += 1
        bi += 1; pos = 0

def emit_sync(A, g):
    n = A.nvm
    for t in g: A(t)
    A.nvm = n
class Unc(list):
    pass
def emit_group(A, it):
    if isinstance(it, str): A(it)
    elif isinstance(it, Unc): emit_sync(A, it)
    else:
        for t in it: A(t)

class Inject:
    def __init__(self, A, L, every, skip=0): self.A, self.L, self.every, self.n = A, list(L), every, -skip
    def __call__(self, text):
        for t in text.split("\n"):
            self.A(t); self.n += 1
            if self.n <= 0: continue
            if self.L and self.n % self.every == self.every - 2 and self.L[0][0]: self.A(self.L[0][0])
            if self.L and self.n % self.every == 0: self.A(self.L.pop(0)[1])

def ln_part(A, publish=None):
    X, F, S, Vv = 64, 80, 112, 116
    A("s_mov_b32 s3, 0xffff0000")
    for i in range(16):
        A(f"v_lshlrev_b32 v{F+2*i}, 16, v{X+i}")
        A(f"v_and_b32 v{F+1+2*i}, s3, v{X+i}")
    def reduce32(r, t):
        for m in ("quad_perm:[1,0,3,2]", "quad_perm:[2,3,0,1]", "row_half_mirror", "row_mirror"):
            A(f"v_add_f32_dpp v{r}, v{r}, v{r} {m} row_mask:0xf bank_mask:0xf")
        A(f"v_mov_b32 v{t}, v{r}")
        A(f"v_permlane16_swap_b32 v{t}, v{r}")
        A(f"v_add_f32 v{r}, v{r}, v{t}")
    for i in range(2):
        A(f"v_pk_add_f32 v[{S+2*i}:{S+2*i+1}], v[{F+2*i}:{F+2*i+1}], v[{F+4+2*i}:{F+5+2*i}]")
    for b in range(2, 8):
        for i in range(2):
            A(f"v_pk_add_f32 v[{S+2*i}:{S+2*i+1}], v[{S+2*i}:{S+2*i+1}], v[{F+4*b+2*i}:{F+4*b+2*i+1}]")
    A(f"v_pk_add_f32 v[{S}:{S+1}], v[{S}:{S+1}], v[{S+2}:{S+3}]")
    A(f"v_add_f32 v{S}, v{S}, v{S+1}")
    reduce32(S, S + 1)
    A(f"v_mul_f32 v{S}, 0xba800000, v{S}")
    A(f"v_mov_b32 v{S+1}, v{S}")
    for i in range(16):
        t = X + 2 * (i % 4)
        A(f"v_pk_add_f32 v[{t}:{t+1}], v[{F+2*i}:{F+2*i+1}], v[{S}:{S+1}]")
        a = Vv + 2 * (i % 2)
        if i < 2:
            A(f"v_pk_mul_f32 v[{a}:{a+1}], v[{t}:{t+1}], v[{t}:{t+1}]")
        else:
            A(f"v_pk_fma_f32 v[{a}:{a+1}], v[{t}:{t+1}], v[{t}:{t+1}], v[{a}:{a+1}]")
    A(f"v_pk_add_f32 v[{Vv}:{Vv+1}], v[{Vv}:{Vv+1}], v[{Vv+2}:{Vv+3}]")
    A(f"v_add_f32 v{Vv}, v{Vv}, v{Vv+1}")
    A(f"v_cvt_pk_bf16_f32 v{S}, v{S}, v{S}\nv_and_b32 v{S}, s3, v{S}\nv_mov_b32 v{S+1}, v{S}")
    reduce32(Vv, Vv + 1)
    chain = [f"v_mul_f32 v{Vv}, 0x3a800000, v{Vv}", f"v_cvt_pk_bf16_f32 v{Vv}, v{Vv}, v{Vv}", f"v_and_b32 v{Vv}, s3, v{Vv}",
             f"v_add_f32 v{Vv}, {EPS5:#x}, v{Vv}", f"v_cvt_pk_bf16_f32 v{Vv}, v{Vv}, v{Vv}", f"v_and_b32 v{Vv}, s3, v{Vv}",
             f"v_sqrt_f32 v{Vv}, v{Vv}", f"v_cvt_pk_bf16_f32 v{Vv}, v{Vv}, v{Vv}", f"v_and_b32 v{Vv}, s3, v{Vv}",
             f"v_rcp_f32 v{Vv}, v{Vv}", f"v_mov_b32 v{Vv+1}, v{Vv}"]
    if publish:
        for c in chain[:8]: A(c)
        chain = chain[8:]
        publish(S, Vv)
    for i in range(16):
        a = F + 2 * i
        A(f"v_pk_add_f32 v[{a}:{a+1}], v[{a}:{a+1}], v[{S}:{S+1}]")
        if chain: A(chain.pop(0))
        A(f"v_cvt_pk_bf16_f32 v{a+1}, v{a}, v{a+1}")
        A(f"v_lshlrev_b32 v{a}, 16, v{a+1}\nv_and_b32 v{a+1}, s3, v{a+1}")
    for i in range(16):
        a = F + 2 * i
        A(f"v_pk_mul_f32 v[{a}:{a+1}], v[{a}:{a+1}], v[{Vv}:{Vv+1}]")
        A(f"v_cvt_pk_bf16_f32 v{X+i}, v{a}, v{a+1}")

def merge(a, b, f0=0.0, f1=1.0):
    i0, i1 = int(len(a) * f0), int(len(a) * f1)
    out = list(a[:i0]); b = list(b); n = len(b); done = 0
    for i, x in enumerate(a[i0:i1]):
        out.append(x)
        while b and done < n * (i + 1) // (i1 - i0):
            out.append(b.pop(0)); done += 1
    return out + b + list(a[i1:])

class K1:
    VO6, VO7, VOH, VX1 = 16, 17, 18, 19
    def __init__(self, A, typ):
        self.A = A; self.typ = typ
        ag = [4, 5, 6, 7, 16, 17, 18, 19] if typ == "Q" else [4, 5, 6, 7, 12, 13, 14, 15]
        self.acc = {}
        na = nv = 0
        for nb in range(20):
            for mb in range(4):
                if nb in ag: self.acc[(nb, mb)] = ("a", na); na += 4
                else: self.acc[(nb, mb)] = ("v", 64 + nv); nv += 4
        self.u = 0
    def q(self, nb, mb):
        f, r = self.acc[(nb, mb)]; assert f == "v"; return r
    def xfrag(self, xs, kh, mb): return 128 + xs * 32 + (kh * 4 + mb) * 4
    def reads(self, ring, nb, slot):
        out = []
        grp, sub = nb // 4, nb % 4
        for kh in range(2):
            for h4 in range(2):
                r = 32 + ring * 8 + kh * 4 + 2 * h4
                if self.typ == "KV" and grp == 4:
                    v, imm = 12 + sub % 2, slot * 8192 + (sub // 2) * 4096 + kh * 2048 + h4 * 256
                else:
                    v, imm = 4 + (grp // 2) * 4 + sub, (grp % 2) * 32768 + slot * 8192 + kh * 4096 + h4 * 512
                out.append(f"ds_read_b64_tr_b16 v[{r}:{r+1}], v{v} offset:{imm}")
        return out
    def mfmas(self, ring, nb, slot, first=False):
        out = []
        sw = self.typ == "KV" and nb < 8
        for mb in range(4):
            for kh in range(2):
                w = 32 + ring * 8 + kh * 4; x = self.xfrag(slot, kh, mb)
                wa, xa = f"v[{w}:{w+3}]", f"a[{x}:{x+3}]"
                f, r = self.acc[(nb, mb)]; acc = f"{f}[{r}:{r+3}]"
                out.append(f"v_mfma_f32_16x16x32_bf16 {acc}, {xa if sw else wa}, {wa if sw else xa}, {'0' if first and kh == 0 else acc}")
        return out
    def wloads(self, slot, fl):
        dma = []
        for grp in range(5):
            for half in range(2):
                s = 32 + 4 * grp
                isqkv = (grp == 2) if self.typ == "Q" else (grp < 2)
                if self.typ == "KV" and grp == 4:
                    pre = f"s_add_u32 m0, s79, {131072 + slot*8192 + half*2048}"
                    ins = f"buffer_load_dwordx4 v{self.VOH}, s[{s}:{s+3}], s{74+half} offen {fl} lds"
                else:
                    pre = f"s_add_u32 m0, s78, {grp*32768 + slot*8192 + half*4096}"
                    ins = f"buffer_load_dwordx4 v{self.VO6 if isqkv else self.VO7}, s[{s}:{s+3}], s{(72 if isqkv else 74)+half} offen {fl} lds"
                dma.append((pre, ins))
        return dma
    def xloads(self, slot, so=76):
        xl = []
        for kh in range(2):
            for mb in range(4):
                r = self.xfrag(slot, kh, mb)
                xl.append((None, f"buffer_load_dwordx4 a[{r}:{r+3}], v{2 if kh == 0 else self.VX1}, s[52:55], s{so} offen offset:{mb*1024} {F_XN}"))
        return xl
    def loads(self, slot):
        d, x = self.wloads(slot, F_W1), self.xloads(slot)
        L = []
        while d or x:
            if d: L.append(d.pop(0))
            if x: L.append(x.pop(0))
        return L
    def adv(self):
        return [f"s_add_u32 s72, s72, {64*6144}", f"s_add_u32 s73, s73, {64*6144}", f"s_add_u32 s74, s74, {64*7168}",
                f"s_add_u32 s75, s75, {64*7168}", "s_add_u32 s76, s76, 8192"]
    def l2pf(self):
        l = newlab("f")
        g = ["s_cmp_ge_u32 s90, 1024", f"s_cbranch_scc1 {l}", "s_mul_i32 s10, s90, 6144", "s_mul_i32 s30, s90, 7168",
             f"s_add_u32 s11, s10, {32*6144}", f"s_add_u32 s31, s30, {32*7168}"]
        for pre, ins in self.wloads(0, "nt"):
            ins = ins.replace("buffer_load_dwordx4 ", "buffer_load_dwordx4 v[28:31], ").replace(" lds", "")
            ins = ins.replace("s72", "s10").replace("s73", "s11").replace("s74", "s30").replace("s75", "s31")
            g.append(ins)
        g += [f"{l}:", "s_add_u32 s90, s90, 512"]
        return g
    def stage(self, slot, nxt_units, vmw, pf=(), lastld=False):
        ls = (slot + 3) % 4
        units = [(nb, slot) for nb in range(20)] + list(nxt_units)
        mf, fill = [], []
        for u in range(20):
            f = [[] for _ in range(8)]
            rd = self.reads((u + 2) % 4, *units[u + 2])
            if u == 18:
                f[1] += (["@wv x14", "s_waitcnt lgkmcnt(0)"] if lastld else [f"s_waitcnt vmcnt({vmw}) lgkmcnt(0)"]) + ["s_barrier"]
                for i, j in enumerate((2, 3, 4, 5)): f[j].append(rd[i])
                f[5].append("@tag t0")
            else:
                for i, j in enumerate((0, 2, 4, 6)): f[j].append(rd[i])
                if u == 19: f[6].append("@tag t1")
                f[7].append("s_waitcnt lgkmcnt(4)")
            if u == 19 and not lastld:
                a = self.adv()
                f[1] += a[0:2]; f[3] += a[2:4]; f[5] += a[4:5]
            mf += self.mfmas(u % 4, *units[u]); fill += f
        def odd(p): return p | 1
        W, X = self.wloads(ls, F_W1), self.xloads((slot + 2) % 4)
        wu = WU
        if lastld:
            X += [("s_add_u32 s76, s76, 8192" if i == 0 else None, ins) for i, (_, ins) in enumerate(self.xloads(ls))]
            wu = 10
        nx = len(X)
        if XFIRST:
            xu = 18 - wu
            pos = [odd(xu * 8 + 2 + i * (wu * 8 - 2) // 10) for i in range(10)] + [odd(2 + 2 * len(pf) + i * (xu * 8 - 2 * len(pf)) // nx) for i in range(nx)]
        else:
            pos = [odd(2 + 2 * len(pf) + i * (wu * 8 - 2 * len(pf)) // 10) for i in range(10)] + [odd(wu * 8 + 2 + i * ((18 - wu) * 8 - 2) // nx) for i in range(nx)]
        L = W + X
        for i, p in enumerate(pf): fill[1 + 2 * i] += p
        for (pre, ins), p in zip(L, pos):
            assert p < 145
            if pre: fill[p - 1].append(pre)
            fill[p].append(ins)
        if (C3 & 1) and slot == 0 and not lastld:
            for i, g in enumerate(self.c3pf()): fill[8 + 8 * i].append(g)
        fill[max(pos)].append("@tag kld")
        if lastld: fill[pos[17]].append("@tag x14")
        emit_stream(self.A, mf, fill, [])
    def c3setup(self):
        A = self.A
        A("s_mov_b32 s90, 0")
        for g in range(5):
            A(f"s_bfe_u32 s30, s{32+4*g}, 0x30007\ns_cmp_eq_u32 s30, 3\ns_cselect_b32 s30, {1 << g}, 0\ns_or_b32 s90, s90, s30")
        A("s_lshl_b32 s30, s26, 5\ns_add_u32 s30, s30, 128\ns_lshl_b32 s31, s24, 3\ns_add_u32 s31, s31, s30\nv_add_u32 v29, s31, v1")
        A("v_cmp_gt_u32 vcc, 8, v1\nv_mov_b32 v24, 0x40000")
        A("v_cndmask_b32 v29, v24, v29, vcc\nv_mul_u32_u24 v30, 7168, v29\nv_mul_u32_u24 v29, 6144, v29")
        if self.typ == "KV":
            A("s_and_b32 s31, s24, 1\ns_lshl_b32 s3, s29, 1\ns_add_u32 s31, s31, s3\ns_lshl_b32 s31, s31, 4\ns_lshr_b32 s31, s31, 1\ns_add_u32 s31, s31, s30")
            A("v_add_u32 v31, s31, v1\nv_cndmask_b32 v31, v24, v31, vcc\nv_mul_u32_u24 v31, 7168, v31")
    def c3pf(self):
        out = []
        for g in range(5):
            q = (g == 2) if self.typ == "Q" else (g < 2)
            v = 31 if (self.typ == "KV" and g == 4) else (29 if q else 30)
            l = newlab("q")
            out.append(Unc([f"s_bitcmp0_b32 s90, {g}", f"s_cbranch_scc1 {l}",
                            f"buffer_load_dword v24, v{v}, s[{32+4*g}:{35+4*g}], s{72 if q else 74} offen {F_W1}", f"{l}:"]))
        return out
    def stage0(self):
        units = [(nb, 0) for nb in range(20)] + [(0, 1), (1, 1)]
        mf, fill = [], []
        for u in range(20):
            f = [[] for _ in range(8)]
            rd = self.reads((u + 2) % 4, *units[u + 2])
            if u == 18:
                f[1] += ["@wv wp", "s_waitcnt lgkmcnt(0)", "s_barrier"]
                for i, j in enumerate((2, 3, 4, 5)): f[j].append(rd[i])
            else:
                for i, j in enumerate((0, 2, 4, 6)): f[j].append(rd[i])
                f[7].append("s_waitcnt lgkmcnt(4)")
            mf += self.mfmas(u % 4, *units[u], first=True); fill += f
        for i, (pre, ins) in enumerate(self.wloads(3, F_W1)):
            p = 3 + 6 * i
            fill[p - 1].append(pre); fill[p].append(ins)
        fill[61] += self.adv()[:4]
        ps, pc = int(opt("f0s", "63")), int(opt("f0c", "93"))
        fill[ps] += ["global_load_dword v25, v31, s[22:23] sc1", "@tag fs"]
        p, d = newlab("p"), newlab("d")
        chk = ["v_cmp_ne_u32 vcc, s90, v25", "s_cmp_eq_u64 vcc, 0", f"s_cbranch_scc1 {d}"]
        fill[pc] += ["@wv fs", Unc(chk + [f"s_mov_b32 s31, {SPIN}", f"{p}:", "global_load_dword v25, v31, s[22:23] sc1", "s_waitcnt vmcnt(0)"] + chk +
                                   ["s_sleep 2", "s_sub_u32 s31, s31, 1", "s_cmp_lg_u32 s31, 0", f"s_cbranch_scc1 {p}", f"{d}:"])]
        st = (158 - pc - 2) // 16
        for i, (_, ins) in enumerate(self.xloads(1) + self.xloads(2)):
            q = pc + 2 + (2 * i if i < 8 else 16 + (i - 8) * ((158 - pc - 20) // 8))
            fill[q].append(ins)
            if i in (7, 15): fill[q] += (["@tag x1"] if i == 7 else []) + ["s_add_u32 s76, s76, 8192"]
        fill[159].append("@wv x1")
        emit_stream(self.A, mf, fill, [])
    def fast_start(self):
        A = self.A; t = self.typ
        def issue(L):
            for pre, ins in L:
                if pre: A(pre)
                A(ins)
        R, U, ST = 128, 160, 224
        A("s_mul_i32 s30, s26, 24\ns_mul_i32 s31, s24, 6\ns_add_u32 s31, s31, s30\nv_add_u32 v24, s31, v1")
        A("v_mul_u32_u24 v25, 6144, v24\nv_mul_u32_u24 v24, 7168, v24")
        if t == "KV":
            A("s_and_b32 s31, s24, 1\ns_mul_i32 s31, s31, 12\ns_add_u32 s31, s31, s30\nv_add_u32 v26, s31, v1\nv_mul_u32_u24 v26, 7168, v26")
            A("s_mov_b64 exec, 0xfff")
            A(f"buffer_load_dword v124, v26, s[48:51], 0 offen {F_W1P}")
        A("s_mov_b64 exec, 63")
        for grp in range(5 if t == "Q" else 4):
            q = (grp == 2) if t == "Q" else (grp < 2)
            A(f"buffer_load_dword v124, v{25 if q else 24}, s[{32+4*grp}:{35+4*grp}], 0 offen {F_W1P}")
        A("s_mov_b64 exec, -1")
        raw = []
        for mb in range(4):
            for kh in range(2):
                r = R + (kh * 4 + mb) * 4
                raw.append(("v_add_u32 v127, 0x8000, v127" if (kh == 0 and mb) else None,
                            f"global_load_dwordx4 v[{r}:{r+3}], v127, s[4:5] offset:{kh*64}" + ("\n@tag raw" if (mb, kh) == (3, 1) else "")))
        RE = int(opt("rawe", "8"))
        issue(raw[:RE])
        A("s_lshl_b32 s10, s26, 5\ns_add_u32 s10, s20, s10\ns_addc_u32 s11, s21, 0")
        A("s_lshl_b32 s30, s26, 5\nv_mov_b32 v30, s30")
        A(f"s_waitcnt vmcnt({5 + RE})")
        stamp(A, 1)
        A("s_load_dword s90, s[10:11], 0")
        def publish(S, Vv):
            p, d = newlab("p"), newlab("d")
            A(f"v_bfi_b32 v{Vv+2}, s3, v{S}, v{Vv}")
            A(f"s_waitcnt lgkmcnt(0)\ns_cmp_lg_u32 s90, 0\ns_cbranch_scc1 {d}")
            emit_sync(A, spin(30, 20, 1, 126) + ["s_mov_b32 s90, s30", f"{d}:"])
            A(f"v_mov_b32 v{Vv+3}, s90\ns_mov_b32 s30, 1\ns_mov_b32 s31, 1\ns_mov_b64 exec, s[30:31]")
            A(f"global_store_dwordx2 v20, v[{Vv+2}:{Vv+3}], s[22:23] {SC}\ns_mov_b64 exec, -1")
            stamp(A, 10)
        def nxt(L): return [("\n".join(self.adv()[:4] + [L[0][0]]), L[0][1])] + L[1:]
        rest = raw[RE:] + self.wloads(0, F_W1P) + nxt(self.wloads(1, F_W1P)) + nxt(self.wloads(2, F_W1P))
        n1, n2 = 18 - RE, int(opt("fn2", "8"))
        inj = Inject(A, rest[:n1], 5, skip=104)
        ln_part(inj, publish)
        assert not inj.L
        for j in range(4):
            A(f"ds_write_b128 v22, v[{64+4*j}:{67+4*j}] offset:{24576 + (j%2)*4096 + (j//2)*32768}")
        A("s_waitcnt lgkmcnt(0)\ns_barrier")
        for j in range(4):
            A(f"ds_read_b128 v[{64+4*j}:{67+4*j}], v21 offset:{24576 + j*1024}")
        for j in range(4):
            A(f"s_waitcnt lgkmcnt({3-j})")
            A(f"global_store_dwordx4 v23, v[{64+4*j}:{67+4*j}], s[22:23] {SC}")
            if j < 3: A("v_add_u32 v23, 0x2000, v23")
        stamp(A, 2)
        A("@wv raw")
        inj = Inject(A, rest[n1:n1+n2], 8)
        for i in range(32):
            inj(f"v_lshlrev_b32 v{U+2*i}, 16, v{R+i}\nv_and_b32 v{U+2*i+1}, s3, v{R+i}")
        assert not inj.L
        if CPF:
            l = newlab("c")
            A(f"s_getpc_b64 s[10:11]\n{l}:\ns_sub_u32 s10, s10, {l}-{NAME}_kernel\ns_subb_u32 s11, s11, 0")
            A("s_lshr_b32 s30, s2, 3\ns_lshl_b32 s30, s30, 2\ns_add_u32 s30, s30, s24\ns_lshl_b32 s30, s30, 10")
            A(f"s_min_u32 s30, s30, L_end-{NAME}_kernel-1024\nv_add_u32 v28, s30, v2")
        A("s_mov_b32 s80, 3\ns_mov_b32 s76, 8192")
        if int(opt("fsl", "0")): A(f"s_sleep {opt('fsl')}")
        p, d = newlab("p"), newlab("d")
        A(f"s_mov_b32 s31, {SPIN}\n{p}:")
        n = A.nvm
        for mb in range(4):
            A(f"global_load_dwordx2 v[{ST+2*mb}:{ST+2*mb+1}], v125, s[22:23] offset:{mb*128} sc1")
        A.nvm = n
        A("s_waitcnt vmcnt(0)")
        A(f"v_xor_b32 v24, s90, v{ST+1}\nv_xor_b32 v25, s90, v{ST+3}\nv_xor_b32 v26, s90, v{ST+5}\nv_xor_b32 v27, s90, v{ST+7}")
        A("v_or3_b32 v24, v24, v25, v26\nv_or_b32 v24, v24, v27\nv_cmp_ne_u32 vcc, 0, v24\ns_cmp_eq_u64 vcc, 0")
        A(f"s_cbranch_scc1 {d}\ns_sleep 1\ns_sub_u32 s31, s31, 1\ns_cmp_lg_u32 s31, 0\ns_cbranch_scc1 {p}\n{d}:")
        stamp(A, 4)
        A("s_barrier")
        l = newlab("a")
        emit_sync(A, ["s_cmp_lg_u32 s24, 0", f"s_cbranch_scc1 {l}", "s_lshl_b32 s30, s27, 3", "s_add_u32 s30, s30, s25",
                      "s_lshl_b64 exec, 1, s30", "v_mov_b32 v25, s90", f"global_store_dword v31, v25, s[22:23] {SC}", "s_mov_b64 exec, -1", f"{l}:"])
        stamp(A, 3)
        for u in range(2):
            for r in self.reads(u, u, 0): A(r)
        inj = Inject(A, rest[n1+n2:], 240 // max(1, len(rest) - n1 - n2))
        for mb in range(4):
            m, r = ST + 8 + 4 * mb, ST + 10 + 4 * mb
            inj(f"v_lshlrev_b32 v{r}, 16, v{ST+2*mb}\nv_and_b32 v{m}, s3, v{ST+2*mb}\nv_rcp_f32 v{r}, v{r}\nv_mov_b32 v{m+1}, v{m}\nv_mov_b32 v{r+1}, v{r}")
        for f in range(8):
            mb = f % 4; m, r = ST + 8 + 4 * mb, ST + 10 + 4 * mb
            P = lambda x: f"v[{x}:{x+1}]"
            a = [U + 8 * f + 2 * i for i in range(4)]
            for x in a: inj(f"v_pk_add_f32 {P(x)}, {P(x)}, {P(m)}")
            for x in a: inj(f"v_cvt_pk_bf16_f32 v{x+1}, v{x}, v{x+1}")
            for x in a: inj(f"v_lshlrev_b32 v{x}, 16, v{x+1}\nv_and_b32 v{x+1}, s3, v{x+1}")
            for x in a: inj(f"v_pk_mul_f32 {P(x)}, {P(x)}, {P(r)}")
            for x in a: inj(f"v_cvt_pk_bf16_f32 v{x}, v{x}, v{x+1}")
            for i, x in enumerate(a): inj(f"v_accvgpr_write_b32 a{128+4*f+i}, v{x}")
        assert not inj.L
        A("@tag wp")
        for a in self.adv()[:4]: A(a)
        A("s_waitcnt lgkmcnt(4)")
        stamp(A, 5)
        self.stage0()
        A(f"s_branch L1{t}_s1")
    def phi(self, r, d0):
        it = [f"v_mul_f32 v{20+i}, s86, v{r+i}" for i in range(4)]
        for i in range(4):
            it += [f"v_exp_f32_e64 v{20+i}, v{20+i} clamp", f"v_max_f32 v{r+i}, s88, v{r+i}"]
        it += [f"v_add_f32 v{r+i}, v{r+i}, v{20+i}" for i in range(4)]
        it += [f"v_cvt_pk_bf16_f32 v{d0}, v{r}, v{r+1}", f"v_cvt_pk_bf16_f32 v{d0+1}, v{r+2}, v{r+3}"]
        return it
    def store_act(self, d, mb, ks, imm_k, fl):
        return f"buffer_store_dwordx4 v[{d}:{d+3}], v{2 if mb < 2 else 31 if False else 3}, s[56:59], s{ks} offen offset:{imm_k*2048 + (mb&1)*1024} {fl}"
    def gu(self, gb, ub, pos, pk=False):
        it = [f"s_add_u32 s84, s83, {pos*8192}"]
        if pk: it += ["v_mov_b32 v36, s87", "v_mov_b32 v37, s87", "v_mov_b32 v38, 1.0", "v_mov_b32 v39, 1.0"]
        P = lambda r: f"v[{r}:{r+1}]"
        for mb in range(4):
            d = self.q(gb, mb)
            for p in range(2):
                g = self.q(gb + p, mb); fu, u = self.acc[(ub + p, mb)]
                rd = [[f"v_accvgpr_read_b32 v{24+i}, a{u+i}"] if fu == "a" else [] for i in range(4)]
                if fu == "a": u = 24
                if pk: it += [f"v_pk_mul_f32 {P(20+i)}, {P(g+i)}, {P(36)}" for i in (0, 2)]
                else: it += [f"v_mul_f32 v{20+i}, s87, v{g+i}" for i in range(4)]
                for i in range(4):
                    it += [f"v_exp_f32 v{20+i}, v{20+i}"] + rd[i]
                if pk:
                    it += [f"v_pk_mul_f32 {P(g+i)}, {P(g+i)}, {P(u+i)}" for i in (0, 2)]
                    it += [f"v_pk_add_f32 {P(20+i)}, {P(20+i)}, {P(38)}" for i in (0, 2)]
                    it += [f"v_rcp_f32 v{20+i}, v{20+i}" for i in range(4)]
                    it += [f"v_pk_mul_f32 {P(g+i)}, {P(g+i)}, {P(20+i)}" for i in (0, 2)]
                else:
                    it += [f"v_add_f32 v{20+i}, 1.0, v{20+i}" for i in range(4)]
                    for i in range(4):
                        it += [f"v_rcp_f32 v{20+i}, v{20+i}", f"v_mul_f32 v{g+i}, v{g+i}, v{u+i}"]
                    it += [f"v_mul_f32 v{g+i}, v{g+i}, v{20+i}" for i in range(4)]
                it += [f"v_cvt_pk_bf16_f32 v{d+2*p}, v{g}, v{g+1}", f"v_cvt_pk_bf16_f32 v{d+2*p+1}, v{g+2}, v{g+3}"]
            it.append(self.store_act(d, mb, 84, 0, F_HST))
        return it
    def gub(self, gb, ub, pos, U):
        it = [f"s_add_u32 s84, s83, {pos*8192}"]
        P = lambda r: f"v[{r}:{r+1}]"
        T = list(range(20, 28)); carry = []; tailq = []
        for mb in range(4):
            g = [self.q(gb + p, mb) + i for p in range(2) for i in range(4)]
            src = [(self.acc[(ub + p, mb)][0], self.acc[(ub + p, mb)][1] + i) for p in range(2) for i in range(4)]
            u = [U[i // 4] + i % 4 if f == "a" else r for i, (f, r) in enumerate(src)]
            it.append(carry + [f"v_pk_mul_f32 {P(T[i])}, {P(g[i])}, s[86:87] op_sel:[0,1] op_sel_hi:[1,1]" for i in range(0, 8, 2)])
            ex = []
            for i in range(8):
                ex.append(f"v_exp_f32 v{T[i]}, v{T[i]}")
                if src[i][0] == "a": ex.append(f"v_accvgpr_read_b32 v{u[i]}, a{src[i][1]}")
            it += tailq + ex
            it.append([f"v_pk_mul_f32 {P(g[i])}, {P(g[i])}, {P(u[i])}" for i in range(0, 8, 2)] +
                      [f"v_pk_add_f32 {P(T[i])}, {P(T[i])}, s[52:53]" for i in range(0, 8, 2)])
            it += [f"v_rcp_f32 v{T[i]}, v{T[i]}" for i in range(8)]
            carry = [f"v_pk_mul_f32 {P(g[i])}, {P(g[i])}, {P(T[i])}" for i in range(0, 8, 2)]
            d = g[0]
            tailq = [f"v_cvt_pk_bf16_f32 v{d+i}, v{g[2*i]}, v{g[2*i+1]}" for i in range(4)] + [self.store_act(d, mb, 84, 0, F_HST)]
        return it + [carry] + tailq
    def phib(self, pairs):
        P = lambda r: f"v[{r}:{r+1}]"
        it = []; carry = []; tailq = []
        for k in range(0, len(pairs), 2):
            r = [pairs[k + p][0] + i for p in range(2) for i in range(4)]
            it.append(carry + [f"v_pk_mul_f32 {P(20+i)}, {P(r[i])}, s[86:87] op_sel:[0,0] op_sel_hi:[1,0]" for i in range(0, 8, 2)])
            it += tailq
            for i in range(8):
                it += [f"v_exp_f32_e64 v{20+i}, v{20+i} clamp", f"v_max_f32 v{r[i]}, s88, v{r[i]}"]
            carry = [f"v_pk_add_f32 {P(r[i])}, {P(r[i])}, {P(20+i)}" for i in range(0, 8, 2)]
            tailq = [f"v_cvt_pk_bf16_f32 v{pairs[k+p][1]+j}, v{r[4*p+2*j]}, v{r[4*p+2*j+1]}" for p in range(2) for j in range(2)]
        return it + [carry] + tailq
    def tail_units(self):
        if self.typ == "KV":
            nbs = [0,1,2,3, 4,5,6,7, 8,9,12,13, 10,11,14,15, 16,17,18,19]
        else:
            nbs = [0,1,4,5, 2,3,6,7, 8,9,10,11, 12,13,16,17, 14,15,18,19]
        return [(nb, s) for nb in nbs[:4] for s in (1, 2)] + [(nb, 3) for nb in nbs[:4]] + [(nb, s) for nb in nbs[4:] for s in (1, 2, 3)]
    def tail(self, batches):
        units = self.tail_units()
        mf, fill = [], []
        for u in range(60):
            f = [[] for _ in range(8)]
            if u == 5: f[7] += ["@wv kld", "s_barrier"]
            if u + 2 < 60:
                rd = self.reads((u + 2) % 4, *units[u + 2])
                for i, j in enumerate((0, 2, 4, 6)): f[j].append(rd[i])
                f[6].append(f"@tag t{u+2}")
            if u + 1 < 60: f[7].append(f"@wl t{u+1}")
            if STAMPS and opt("tailst") and u % 6 == 5:
                f[7] += ["s_memtime s[100:101]" if opt("cyc") else "s_memrealtime s[100:101]", "s_waitcnt lgkmcnt(0)", f"v_writelane_b32 v0, s100, {16 + u // 6}"]
            mf += self.mfmas(u % 4, *units[u]); fill += f
        emit_stream(self.A, mf, fill, batches)
    def batches_kv(self):
        B = []
        def ph(db):
            pr = [(self.q(db, mb), self.q(db, mb & 2) + 2 * (mb & 1)) for mb in range(4)]
            return self.phib(pr) if PKB else sum([self.phi(*x) for x in pr], [])
        def vp(eb):
            it = []
            for mb in range(4):
                f, r = self.acc[(4 + eb, mb)]
                d = self.q(eb, (mb & 2) + 1) + 2 * (mb & 1)
                if f == "a":
                    it += [f"v_accvgpr_read_b32 v{24+i}, a{r+i}" for i in range(4)]; r = 24
                it += [f"v_cvt_pk_bf16_f32 v{d}, v{r}, v{r+1}", f"v_cvt_pk_bf16_f32 v{d+1}, v{r+2}, v{r+3}"]
            return it
        pre = [f"v_mov_b32 v{28+i}, 0x3f803f80" for i in range(4)]
        pre += [["s_lshl_b32 s30, s24, 15", "v_add_u32 v16, s30, v2"],
                "v_lshrrev_b32 v19, 4, v1", "v_lshlrev_b32 v19, 4, v19",
                ["s_lshl_b32 s30, s24, 8", "s_add_u32 s30, s30, 0x20000", "v_add_u32 v17, s30, v19"],
                ["s_lshl_b32 s30, s24, 11", "v_add_u32 v18, s30, v2"],
                ["s_lshl_b32 s30, s24, 6", "v_add_u32 v19, s30, v19"]]
        B.append((0, 24, pre + ["s_mov_b32 s52, 1.0", "s_mov_b32 s53, 1.0"]))
        B.append((50, 78, K2.xaddr(24, 25) + K2.xres(24, 25)))
        B += [(78, 104, ph(0)), (104, 130, ph(1)), (130, 156, ph(2)), (156, 162, vp(0)), (162, 186, ph(3)),
              (186, 191, vp(1)), (191, 196, vp(2)), (198, 204, vp(3))]
        Z = 32
        it = []
        for sg in range(2):
            for hd in range(2):
                for db in range(2):
                    pk = self.q(hd * 2 + db, 2 * sg)
                    for eb in range(2):
                        vv = self.q(hd * 2 + eb, 2 * sg + 1)
                        d = ((hd * 2 + eb) * 2 + db) * 4
                        it.append(f"v_mfma_f32_16x16x32_bf16 a[{d}:{d+3}], v[{pk}:{pk+3}], v[{vv}:{vv+3}], {'0' if sg == 0 else f'a[{d}:{d+3}]'}")
                    d = Z + (hd * 2 + db) * 4
                    it.append(f"v_mfma_f32_16x16x32_bf16 a[{d}:{d+3}], v[{pk}:{pk+3}], v[28:31], {'0' if sg == 0 else f'a[{d}:{d+3}]'}")
        B.append((205, 215, it))
        it = [f"ds_write_b128 v16, a[{q*4}:{3+q*4}] offset:{q*1024}" for q in range(8)]
        it.append(["s_mov_b32 s30, 0x00010001", "s_mov_b32 s31, 0x00010001", "s_mov_b64 exec, s[30:31]"] +
                  [f"ds_write_b128 v17, a[{Z+q*4}:{Z+q*4+3}] offset:{q*64}" for q in range(4)] + ["s_mov_b64 exec, -1", "@tag kvw"])
        B.append((219, 225, it))
        it = [["@wl kvw", "s_barrier"], "v_add_u32 v16, 0x10000, v18", "v_add_u32 v17, 0x20000, v19"]
        for w in range(4):
            va = 18 if w < 2 else 16
            it.append(f"ds_read_b128 v[{64+w*12}:{67+w*12}], v{va} offset:{(w%2)*32768}")
            it.append(f"ds_read_b128 v[{68+w*12}:{71+w*12}], v{va} offset:{(w%2)*32768+1024}")
            it.append(f"ds_read_b128 v[{72+w*12}:{75+w*12}], v17 offset:{w*256}")
        it.append("@tag kvr")
        B.append((230, 237, it))
        it = ["@wl kvr"]
        for i in range(12):
            it += [f"v_add_f32 v{64+i}, v{64+i}, v{76+i}", f"v_add_f32 v{88+i}, v{88+i}, v{100+i}"]
        it += [f"v_add_f32 v{64+i}, v{64+i}, v{88+i}" for i in range(12)]
        it += [f"s_mul_i32 s10, s26, {KVP_STRIDE}", "s_add_u32 s11, s10, 8192",
               f"buffer_store_dwordx4 v[64:67], v18, s[60:63], s10 offen {SC}",
               f"buffer_store_dwordx4 v[68:71], v18, s[60:63], s10 offen offset:1024 {SC}",
               ["s_mov_b32 s30, 0x00010001", "s_mov_b32 s31, 0x00010001", "s_mov_b64 exec, s[30:31]",
                f"buffer_store_dwordx4 v[72:75], v19, s[60:63], s11 offen {SC}", "s_mov_b64 exec, -1", "@tag kvs"]]
        B.append((243, 254, it))
        g0 = self.gub(8, 12, 4, (112, 116)) if PKB else self.gu(8, 12, 4)
        k = len(g0) // 3
        pub = [["@wv kvs", "s_barrier"], "v_mov_b32 v16, s89", Unc(signal(16, 20, 17))]
        B.append((256, 286, self.k2.setup_early() + self.k2.c3pf(29)))
        smp, chk = self.hA()
        xf = self.k2.xfirst()
        fa, fb = float(opt("ka", "0.2")), float(opt("kb", "0.5"))
        k = int(len(g0) * fa)
        g0 = g0 + ["@tag hA"]
        B.append((294, 384, smp + g0[:k] + pub + merge(g0[k:], self.k2.wfirst(), 0, 0.95)))
        g1 = self.gub(10, 14, 6, (112, 116)) if PKB else self.gu(10, 14, 6)
        B.append((390, 480, merge(self.h1mix(g1, 768, f=fb), chk + xf, 0.0, 0.9)))
        self.last = self.gu(16, 18, 8, pk=True)
        self.lastld = []
        return B
    def hA(self):
        return ([["global_load_dword v29, v30, s[22:23] sc1", "@tag h1s"]],
                ["@wv h1s", Unc(spin(30, 22, 16, 29, True, sleep=4))])
    def h1mix(self, g, off, after=(), f=0.3, f1=1.0):
        k = int(len(g) * f)
        pub = [["@wv hA", "s_barrier"], Unc(signal(30, 22, 31, off))]
        return g[:k] + pub + merge(g[k:], after, 0, f1)
    def pquads(self):
        return [self.q(nb, mb) for nb in (0, 1, 2, 3) for mb in range(4)] + [self.q(nb, mb) for nb in (9, 11) for mb in range(4)]
    def batches_q(self):
        B = []
        def ph(nb):
            pr = [(self.q(8 + nb, mb), self.q(8 + (nb & 2), mb) + 2 * (nb & 1)) for mb in range(4)]
            return self.phib(pr) if PKB else sum([self.phi(*x) for x in pr], [])
        pre = ["v_mov_b32 v16, s89",
               "v_lshrrev_b32 v19, 4, v1", "v_lshlrev_b32 v19, 4, v19",
               ["s_lshl_b32 s30, s24, 11", "v_add_u32 v18, s30, v2"],
               ["s_lshl_b32 s30, s24, 6", "s_add_u32 s30, s30, 8192", "v_add_u32 v19, s30, v19"]]
        B.append((0, 24, pre + ["s_mov_b32 s52, 1.0", "s_mov_b32 s53, 1.0"]))
        B.append((50, 78, K2.xaddr(24, 25) + K2.xres(24, 25)))
        B.append((78, 102, self.k2.setup_early() + self.k2.c3pf(29)))
        B.append((102, 192, merge(self.gu(0, 4, 0), self.k2.l2pf(), 0, 0.8) + ["@tag hA"]))
        qa, qb, qc = float(opt("qa", "0.5")), float(opt("qb", "0.5")), float(opt("qc", "0.45"))
        wf = self.k2.wfirst()
        g1 = (self.gub(2, 6, 2, (self.q(1, 0), self.q(1, 1))) if PKB else self.gu(2, 6, 2))
        B.append((198, 288, self.h1mix(g1, 0, wf[:9], f=qa, f1=0.95) + ["@tag hA"]))
        smp, chk = self.hA()
        phq = ph(0) + ph(1) + ph(2) + ph(3)
        b = merge(self.h1mix(phq, 1024, f=qb), wf[9:] + smp, 0, qc - 0.2)
        xf = self.k2.xfirst()
        B.append((294, 388, merge(b, chk + xf[:int(opt("qx", "19"))], qc + 0.1, 1.0)))
        self.xrest = xf[int(opt("qx", "19")):]
        P = self.pquads()
        ld = []
        for p in range(8):
            ld.append([f"s_mov_b32 s10, {p*KVP_STRIDE}",
                       f"buffer_load_dwordx4 v[{P[3*p]}:{P[3*p]+3}], v18, s[60:63], s10 offen sc1"])
            ld.append(f"buffer_load_dwordx4 v[{P[3*p+1]}:{P[3*p+1]+3}], v18, s[60:63], s10 offen offset:1024 sc1")
            ld.append(f"buffer_load_dwordx4 v[{P[3*p+2]}:{P[3*p+2]+3}], v19, s[60:63], s10 offen sc1")
        ld.append("@tag kvl")
        chk = ["@wv kvp", Unc(spin(16, 20, 8, 17, True))]
        smp = ["global_load_dword v17, v16, s[20:21] sc1", "@tag kvp"]
        g2 = self.gu(12, 16, 10)
        f = float(opt("kvk", "0.3"))
        k0, k = int(len(g2) * (f - 0.25)), int(len(g2) * f)
        nl = int(opt("kvn", "25"))
        B.append((390, 480, g2[:k0] + smp + merge(g2[k0:k], self.xrest) + chk + merge(g2[k:], ld[:nl], 0, float(opt('kve', '0.7')))))
        self.lastld = ld[nl:]
        self.last = self.gu(14, 18, 12, pk=True)
        return B
    def opath1(self):
        P = self.pquads()
        it = ["@wv kvl"]
        for st in (4, 2, 1):
            for p in range(st):
                for j in range(3):
                    for i in (0, 2):
                        a, b = P[3 * p + j] + i, P[3 * (p + st) + j] + i
                        it.append(f"v_pk_add_f32 v[{a}:{a+1}], v[{a}:{a+1}], v[{b}:{b+1}]")
        for j in range(3):
            it += [f"v_cvt_pk_bf16_f32 v{40+2*j}, v{P[j]}, v{P[j]+1}", f"v_cvt_pk_bf16_f32 v{41+2*j}, v{P[j]+2}, v{P[j]+3}"]
        it += [["s_lshl_b32 s30, s24, 10", "s_add_u32 s30, s30, 0x20000", "v_add_u32 v18, s30, v2"], "ds_write_b128 v18, v[40:43]",
               ["s_lshr_b32 s30, s24, 1", "s_lshl_b32 s30, s30, 10", "s_and_b32 s31, s24, 1", "s_lshl_b32 s31, s31, 3",
                "s_add_u32 s30, s30, s31", "s_add_u32 s30, s30, 0x21000", "v_add_u32 v19, s30, v2"], "ds_write_b64 v19, v[44:45]",
               "v_add_u32 v18, 0x20000, v2"]
        return it
    def opath2(self):
        rd = [["s_waitcnt lgkmcnt(0)", "s_barrier"]] + [f"ds_read_b128 v[{40+i*4}:{43+i*4}], v18 offset:{i*1024}" for i in range(6)]
        den = lambda t: self.q(8 + 2 * (t // 4) + 1, t % 4)
        mm = ["s_waitcnt lgkmcnt(0)"]
        for t in range(8):
            pq = self.q(8 + 2 * (t // 4), t % 4); zf = 56 + (t // 4) * 4
            mm.append(f"v_mfma_f32_16x16x32_bf16 v[{den(t)}:{den(t)+3}], v[{zf}:{zf+3}], v[{pq}:{pq+3}], 0")
        side = [f"v_add_f32 v{den(t)}, s88, v{den(t)}" for t in range(8)] + [f"v_rcp_f32 v{den(t)}, v{den(t)}" for t in range(8)]
        side += [f"v_mov_b32 v{den(t)+1}, v{den(t)}" for t in range(8)]
        for t in range(8):
            pq = self.q(8 + 2 * (t // 4), t % 4); d = 64 + t * 8
            for eb in range(2):
                kf = 40 + ((t // 4) * 2 + eb) * 4
                mm.append(f"v_mfma_f32_16x16x32_bf16 v[{d+eb*4}:{d+eb*4+3}], v[{kf}:{kf+3}], v[{pq}:{pq+3}], 0")
                if t > 0:
                    for _ in range(2):
                        if side: mm.append(side.pop(0))
        mm += side
        fin = []
        for t in range(8):
            d = 64 + t * 8
            fin += [f"v_pk_mul_f32 v[{d+i}:{d+i+1}], v[{d+i}:{d+i+1}], v[{den(t)}:{den(t)+1}]" for i in range(0, 8, 2)]
            fin += [f"v_cvt_pk_bf16_f32 v{d+i}, v{d+2*i}, v{d+2*i+1}" for i in range(4)]
            if ODEF: self.k2.ostores.append(self.store_act(d, t % 4, 85, t // 4, F_HST))
            else: fin.append(self.store_act(d, t % 4, 85, t // 4, F_HST))
        return rd, mm, fin
    def body(self, k2):
        A = self.A; t = self.typ; self.k2 = k2
        def issue(L):
            for pre, ins in L:
                if pre: A(pre)
                A(ins)
        if FAST: self.fast_start()
        else:
            A("s_lshl_b32 s30, s26, 5\nv_mov_b32 v30, s30")
            if NSY:
                l = newlab("m")
                A(f"s_or_b32 s30, s25, s27\ns_xor_b32 s31, s24, 3\ns_or_b32 s30, s30, s31\ns_cmp_lg_u32 s30, 0\ns_cbranch_scc1 {l}")
                emit_sync(A, ["s_waitcnt vmcnt(4)", "v_mov_b32 v25, 1", "s_mov_b64 exec, 1", f"global_store_dword v30, v25, s[20:21] {SC}", "s_mov_b64 exec, -1", f"{l}:"])
            if int(opt("wpf", "0")):
                A("s_lshl_b32 s30, s26, 4\ns_lshl_b32 s31, s24, 2\ns_add_u32 s31, s31, s30\ns_add_u32 s31, s31, 64\nv_add_u32 v24, s31, v1")
                A("v_mul_u32_u24 v25, 6144, v24\nv_mul_u32_u24 v24, 7168, v24")
                if t == "KV":
                    A("s_and_b32 s31, s24, 1\ns_lshl_b32 s31, s31, 3\ns_add_u32 s31, s31, s30\ns_add_u32 s31, s31, 64\nv_add_u32 v26, s31, v1\nv_mul_u32_u24 v26, 7168, v26")
                    A("s_mov_b64 exec, 0xff")
                    A(f"buffer_load_dword v124, v26, s[48:51], 0 offen {F_W1P}")
                A("s_mov_b64 exec, 15")
                for grp in range(5 if t == "Q" else 4):
                    q = (grp == 2) if t == "Q" else (grp < 2)
                    A(f"buffer_load_dword v124, v{25 if q else 24}, s[{32+4*grp}:{35+4*grp}], 0 offen {F_W1P}")
                A("s_mov_b64 exec, -1")
            issue(self.wloads(0, F_W1P))
            for a in self.adv()[:4]: A(a)
            if W1E:
                issue(self.wloads(1, F_W1P))
                for a in self.adv()[:4]: A(a)
            A("s_waitcnt vmcnt(%d)" % (15 if int(opt("wpf", "0")) else 10))
            stamp(A, 1)
            inj = Inject(A, self.wloads(1, F_W1P)[:W1J], 10, skip=int(opt("w1s", "110")))
            ln_part(inj)
            assert not inj.L
            if NSY: A("global_load_dword v29, v30, s[20:21] sc1")
            for j in range(4):
                A(f"ds_write_b128 v22, v[{64+4*j}:{67+4*j}] offset:{24576 + (j%2)*4096 + (j//2)*32768}")
            A("s_waitcnt lgkmcnt(0)\ns_barrier")
            for j in range(4):
                A(f"ds_read_b128 v[{64+4*j}:{67+4*j}], v21 offset:{24576 + j*1024}")
            for j in range(4):
                A(f"s_waitcnt lgkmcnt({3-j})")
                A(f"global_store_dwordx4 v23, v[{64+4*j}:{67+4*j}], s[22:23] {SC}")
                if j < 3: A("v_add_u32 v23, 0x2000, v23")
            stamp(A, 2)
            zero = []
            for (nb, mb), (f, r) in self.acc.items():
                for i in range(4):
                    zero.append(f"v_accvgpr_write_b32 a{r+i}, 0" if f == "a" else f"v_mov_b32 v{r+i}, 0")
            zero.reverse()
            A("@tag xns")
            w2 = self.wloads(2, F_W1P)
            rest = self.wloads(1, F_W1P)[W1J:] + [("\n".join(self.adv()[:4] + [w2[0][0]]), w2[0][1])] + w2[1:]
            W1K = int(opt("w1k", "6"))
            inj = Inject(A, rest[:W1K], 6)
            for z in zero[:64]: inj(z)
            assert not inj.L
            A("@wv xns\ns_barrier")
            if NSY:
                l = newlab("a")
                emit_sync(A, ["s_cmp_lg_u32 s24, 0", f"s_cbranch_scc1 {l}"] + spin(30, 20, 1, 29, True) +
                          ["s_lshl_b32 s30, s27, 3", "s_add_u32 s30, s30, s25", "s_lshl_b64 exec, 1, s30", "v_mov_b32 v25, 1",
                           f"global_store_dword v31, v25, s[22:23] {SC}", "s_mov_b64 exec, -1", f"{l}:"])
            else:
                emit_sync(A, signal(30, 20, 25))
            stamp(A, 3)
            inj = Inject(A, rest[W1K:], 8)
            for z in zero[64:]: inj(z)
            assert not inj.L
            for a in self.adv()[:4]: A(a)
            if WPOLL:
                emit_sync(A, spin(30, 20, 1, 29, True))
                A(f"v_and_b32 v24, 7, v1\nv_lshlrev_b32 v24, 7, v24\ns_lshl_b32 s30, s26, 12\ns_lshl_b32 s31, s24, 10\ns_add_u32 s30, s30, s31\ns_add_u32 s30, s30, {XFL_OFF}\nv_add_u32 v24, s30, v24")
                p, d = newlab("p"), newlab("d")
                emit_sync(A, [f"s_mov_b32 s31, {SPIN}", f"{p}:", "global_load_dword v25, v24, s[22:23] sc1", "s_waitcnt vmcnt(0)",
                              "v_cmp_ne_u32 vcc, 1, v25", "s_cmp_eq_u64 vcc, 0", f"s_cbranch_scc1 {d}", f"s_sleep {opt('nsl', '2')}",
                              "s_sub_u32 s31, s31, 1", "s_cmp_lg_u32 s31, 0", f"s_cbranch_scc1 {p}", f"{d}:"])
            else:
                l = newlab("w")
                A(f"s_cmp_lg_u32 s24, 0\ns_cbranch_scc1 {l}")
                if NSY:
                    p, d = newlab("p"), newlab("d")
                    emit_sync(A, [f"s_mov_b32 s31, {SPIN}", f"{p}:", "global_load_dword v25, v31, s[22:23] sc1", "s_waitcnt vmcnt(0)",
                                  "v_cmp_ne_u32 vcc, 1, v25", "s_cmp_eq_u64 vcc, 0", f"s_cbranch_scc1 {d}", f"s_sleep {opt('nsl', '2')}",
                                  "s_sub_u32 s31, s31, 1", "s_cmp_lg_u32 s31, 0", f"s_cbranch_scc1 {p}", f"{d}:"])
                else:
                    A("s_waitcnt vmcnt(0)")
                    emit_sync(A, spin(30, 20, 32, 25, sleep=4))
                A(f"{l}:")
                A("s_barrier")
            stamp(A, 4)
            issue(self.xloads(0))
            A("s_add_u32 s76, s76, 8192")
            issue(self.xloads(1))
            A("s_add_u32 s76, s76, 8192")
            A("s_waitcnt vmcnt(8)")
            stamp(A, 5)
            for u in range(2):
                for r in self.reads(u, u, 0): A(r)
            A("s_mov_b32 s80, 3")
            if C3 & 1: self.c3setup()
            if CPF:
                l = newlab("c")
                A(f"s_getpc_b64 s[10:11]\n{l}:\ns_sub_u32 s10, s10, {l}-{NAME}_kernel\ns_subb_u32 s11, s11, 0")
                A("s_lshr_b32 s30, s2, 3\ns_lshl_b32 s30, s30, 2\ns_add_u32 s30, s30, s24\ns_lshl_b32 s30, s30, 10")
                A(f"s_min_u32 s30, s30, L_end-{NAME}_kernel-1024\nv_add_u32 v28, s30, v2")
            A("s_waitcnt lgkmcnt(4)")
        A.raw(".p2align 6")
        A(f"L1{t}_loop:")
        pw2 = ["buffer_load_dwordx4 v[20:23], v2, s[64:67], s81 offen", "s_add_u32 s81, s81, 0x100000"]
        pwo = ["buffer_load_dwordx4 v[20:23], v2, s[68:71], s82 offen", "s_add_u32 s82, s82, 0x100000"]
        px = ["buffer_load_dwordx4 v[24:27], v2, s[96:99], s94 offen", "s_add_u32 s94, s94, 0x100000"]
        pfs = [[pw2], [pw2], [pw2], [pwo]]
        if opt("nopf"): pfs = [[], [], [], []]
        if CPF: pfs[1].append(["global_load_dwordx4 v[28:31], v31, s[100:101]" if False else "global_load_dwordx4 v[24:27], v28, s[10:11]"])
        for s in range(4):
            n = (s + 1) % 4
            if s == 1: A(f"L1{t}_s1:")
            self.stage(s, [(0, n), (1, n)], 18 + len(pfs[s]), pf=pfs[s])
        A(f"s_sub_u32 s80, s80, 1\ns_cmp_lg_u32 s80, 0\ns_cbranch_scc1 L1{t}_loop")
        stamp(A, 6)
        self.stage(0, self.tail_units()[:2], 18, lastld=True)
        stamp(A, 7)
        self.tail(self.batches_kv() if t == "KV" else self.batches_q())
        stamp(A, 8)
        last = [["global_load_dword v29, v30, s[22:23] offset:1024 sc1", "@tag h2s"]] + self.last
        if t == "Q":
            n = len(last); rd, mm, fin = self.opath2()
            a, b, c = int(n * float(opt("oa", "0.05"))), int(n * float(opt("ob", "0.2"))), int(n * float(opt("oc", "0.35")))
            st = lambda i: [["s_memtime s[100:101]", "s_waitcnt lgkmcnt(0)", f"v_writelane_b32 v0, s100, {i}"]] if (STAMPS and opt("ost")) else []
            o1 = self.opath1()
            last = (merge(last[:a], self.lastld, 0, 0.6) + st(26) + o1[:1] + st(27) + o1[1:] + st(28) + last[a:b] + rd + st(29) + last[b:c] + mm + st(30) +
                    merge(last[c:], fin))
        for x in last: emit_group(A, x)
        stamp(A, 9)
        k2.setup()
        A(f"s_mov_b32 s51, {int(t == 'Q')}")
        for z in k2.zero(): A(z)
        stamp(A, 11)
        k2.pre()
        A("s_branch L2_start")

class K2:
    def __init__(self, A): self.A = A; self.ostores = []
    def issue(self, L):
        for pre, ins in L:
            if pre: self.A(pre)
            self.A(ins)
    def xfrag(self, slot, k, mb): return slot * 32 + (k * 2 + mb) * 4
    def reads(self, ring, nb, slot, kp):
        out = []
        for k2 in range(2):
            for h in range(2):
                r = 32 + ring * 8 + k2 * 4 + 2 * h
                imm = (slot & 1) * 32768 + (nb >> 2) * 16384 + (kp * 2 + k2) * 4096 + h * 2048
                out.append(f"ds_read_b64_tr_b16 v[{r}:{r+1}], v{4 + (slot >> 1) * 4 + (nb & 3)} offset:{imm}")
        return out
    def mfmas(self, ring, nb, slot, kp, accb):
        out = []
        for mb in range(2):
            for k2 in range(2):
                w = 32 + ring * 8 + k2 * 4; x = self.xfrag(slot, kp * 2 + k2, mb); a = accb + (nb * 2 + mb) * 4
                out.append(f"v_mfma_f32_16x16x32_bf16 v[{a}:{a+3}], v[{w}:{w+3}], a[{x}:{x+3}], v[{a}:{a+3}]")
        return out
    def wloads(self, slot, so=72, ngrp=2):
        L = []
        for j in range(4):
            for grp in range(ngrp):
                d = (32, 44)[grp]
                L.append((f"s_add_u32 m0, s78, {slot*32768 + grp*16384 + j*1024}",
                          f"buffer_load_dwordx4 v28, s[{d}:{d+3}], s{(72, 96, 97, 98)[j]} offen {opt('w2')} lds"))
        return L
    def xloads(self, slot, va=None):
        L = []
        for k in range(4):
            for mb in range(2):
                r = self.xfrag(slot, k, mb)
                L.append((None, f"buffer_load_dwordx4 a[{r}:{r+3}], v2, s[36:39], s{73 if k < 2 else 76} offen offset:{((k&1)*2+mb)*1024} {F_H}"))
        return L
    def loads(self, slot, ngrp):
        d, x = self.wloads(slot, ngrp=ngrp), self.xloads(slot)
        if opt("hk2") == "halfw":
            d = [y for n, y in enumerate(d) if n % 2 == 0]
            return [y for i in range(4) for y in (d[i], x[2*i], x[2*i+1])]
        if opt("hk2") == "halfx": x = [(p, i if n % 2 else i.replace("s[36:39]", "s[64:67]")) for n, (p, i) in enumerate(x)]
        if opt("hk2") == "nox": x = [(p, i.replace("s[36:39]", "s[64:67]")) for n, (p, i) in enumerate(x)]
        if ngrp == 2 and opt("k2c") == "wx": return d + x
        if ngrp == 2 and opt("k2c") == "xw": return x + d
        if ngrp == 2: return [y for p in zip(d, x) for y in p]
        return [y for i in range(4) for y in (d[i], x[2*i], x[2*i+1])]
    ORDER = [0, 4, 1, 5, 8, 12, 9, 13, 10, 11, 2, 6, 3, 7]
    def advx(self):
        if opt("hk2") == "xl2": return ["s_xor_b32 s73, s73, 8192", "s_xor_b32 s76, s76, 8192"]
        return ["s_add_u32 s73, s73, 8192", "s_add_u32 s76, s76, 8192"]
    def woff(self): return [f"s_add_u32 s{95+j}, s72, {j*16384}" for j in (1, 2, 3)]
    def advw(self, perm=True):
        if perm: return ["s_lshr_b64 s[48:49], s[48:49], 4", "s_and_b32 s72, s48, 15", "s_lshl_b32 s72, s72, 16", "s_add_u32 s72, s72, s75"] + self.woff()
        return [f"s_add_u32 s72, s72, {128*2048}"] + self.woff()
    def adv(self, perm=True):
        return ["s_add_u32 s99, s99, 1", "s_add_u32 s73, s73, s66",
                ["s_cmp_eq_u32 s99, 14", "s_cselect_b32 s75, s64, s75", "s_cselect_b32 s73, s65, s73", "s_cselect_b32 s66, s68, s66"],
                "s_add_u32 s76, s73, 4096"] + self.advw(perm)
    def setup_early(self):
        class Rec(list):
            def __call__(self, t): self.extend(t.split("\n"))
        it = ["v_lshrrev_b32 v29, 4, v1", "v_bfe_u32 v28, v1, 1, 2", "v_xor_b32 v28, v28, v29", "v_lshlrev_b32 v28, 5, v28",
              "v_and_b32 v29, 1, v1", "v_lshl_add_u32 v28, v29, 4, v28", "v_lshrrev_b32 v29, 3, v1", "v_lshl_add_u32 v28, v29, 11, v28"]
        def grp(f):
            r = Rec(); f(r); it.append(list(r))
        grp(lambda A: A("s_lshl_b32 s78, s24, 12\ns_and_b32 s79, s94, 0x7ff"))
        grp(lambda A: (A(f"s_sub_u32 s31, {3584*2048}, s79"), srd(A, 32, 16, "s79", "s31")))
        grp(lambda A: (A(f"s_xor_b32 s30, s79, {512 if CMAP else 128}\ns_sub_u32 s31, {3584*2048}, s30"), srd(A, 44, 16, "s30", "s31")))
        grp(lambda A: (A("s_lshr_b32 s30, s95, 3\ns_lshl_b32 s30, s30, 2\ns_add_u32 s30, s30, s24"),
                       A(f"s_mul_i32 s30, s30, {144*2048}\ns_add_u32 s30, s30, {ACT_OFF}"), srd(A, 36, 22, "s30", 144 * 2048)))
        grp(lambda A: (A(f"s_lshl_b32 s30, s95, 16\ns_lshl_b32 s31, s24, 14\ns_add_u32 s30, s30, s31\ns_add_u32 s30, s30, {P_OFF}"),
                       srd(A, 40, 22, "s30", 16384)))
        grp(lambda A: A("s_lshl_b32 s74, s91, 13\ns_xor_b32 s77, s74, 8192"))
        tab = sum(c << (4 * i) for i, c in enumerate(self.ORDER + self.ORDER[:11:-1]))
        grp(lambda A: A(f"s_mov_b32 s48, {tab & 0xffffffff:#x}\ns_mov_b32 s49, {tab >> 32:#x}"))
        grp(lambda A: A(f"s_lshl_b32 s75, s91, 2\ns_add_u32 s75, s75, s24\ns_mul_i32 s75, s75, {14*32*2048}\ns_mov_b32 s72, s75"))
        grp(lambda A: A(f"s_mul_i32 s73, s91, {14*8192}\ns_add_u32 s76, s73, 4096\ns_mov_b32 s80, 3\ns_mov_b32 s50, 32"))
        grp(lambda A: A(f"s_xor_b32 s30, s91, 1\ns_lshl_b32 s64, s30, 2\ns_add_u32 s64, s64, s24\ns_mul_i32 s64, s64, {14*32*2048}"
                        f"\ns_mul_i32 s65, s30, {14*8192}\ns_add_u32 s65, s65, {13*8192}"))
        grp(lambda A: A("s_mov_b32 s66, 8192\ns_mov_b32 s68, -8192\ns_mov_b32 s99, 2"))
        grp(lambda A: A("s_mov_b32 s67, 12" if DYN else f"s_cmp_lt_u32 s25, 4\ns_cselect_b32 s67, {NKV}, {28-NKV}"))
        it.append(self.woff())
        it.append("v_mov_b32 v30, s92")

        return it
    def l2pf(self):
        if not int(opt("l2w", "0")): return []
        it = [["s_bitcmp1_b32 s26, 0", "s_cselect_b32 s64, s44, s32", "s_cselect_b32 s65, s45, s33", "s_cselect_b32 s66, s46, s34"],
              ["s_lshr_b32 s81, s26, 1", "s_lshl_b32 s81, s81, 14", "s_add_u32 s81, s81, s75"]]
        n = int(opt("l2n", "14"))
        for c in reversed(self.ORDER[2:n]):
            it.append([f"s_add_u32 s82, s81, {c << 16}", "buffer_load_dwordx4 a[144:147], v28, s[64:67], s82 offen"])
        return it
    def c3addr(self, tmp):
        return [["s_lshl_b32 s30, s27, 3", "s_add_u32 s30, s30, s26", "s_mul_i32 s30, s30, 14", f"v_min_u32 v{tmp}, 13, v1", f"v_add_u32 v{tmp}, s30, v{tmp}"],
                ["s_lshr_b32 s30, s16, 7", "s_sub_u32 s30, 3, s30", "s_and_b32 s30, s30, 7", "s_lshl_b32 s30, s30, 7", "s_and_b32 s31, s79, 1024",
                 "s_add_u32 s30, s30, s31", "s_add_u32 s30, s30, s75", f"v_lshl_add_u32 v{tmp}, v{tmp}, 11, s30"]]
    def c3pf(self, tmp):
        if not C3 & 2: return []
        return (self.c3addr(tmp) if tmp != 31 else []) + [f"global_load_dword a144, v{tmp}, s[16:17]"]
    def c3wo(self):
        if not C3 & 2: return []
        l = newlab("q")
        return ["s_add_u32 s30, s8, s79", "s_bfe_u32 s30, s30, 0x30007", "s_cmp_lg_u32 s30, 3", f"s_cbranch_scc1 {l}",
                "global_load_dword a144, v18, s[8:9]", f"{l}:"]
    def wfirst(self):
        g = lambda LL: [[pre, "s_nop 0", ins] for pre, ins in LL]
        return g(self.wloads(0)) + [self.advw()] + g(self.wloads(1)) + [self.advw()]
    def xfirst(self):
        return [i for _, i in self.xloads(0)] + ["@tag k20", self.advx()] + [i for _, i in self.xloads(1)] + [self.advx()]
    def setup(self):
        A = self.A
        A("v_lshrrev_b32 v12, 2, v1\nv_bfe_u32 v13, v1, 3, 2\nv_and_b32 v14, 3, v1")
        for nb in range(4):
            A(f"v_xor_b32 v15, {nb}, v13\nv_lshlrev_b32 v15, 5, v15\nv_lshl_add_u32 v15, v12, 7, v15")
            A(f"v_lshl_add_u32 v{4+nb}, v14, 3, v15\nv_add_u32 v{8+nb}, 0x10000, v{4+nb}")
    @staticmethod
    def xaddr(a, b):
        return [f"v_and_b32 v{a}, 15, v1", f"v_lshlrev_b32 v{a}, 11, v{a}", f"v_bfe_u32 v{b}, v1, 4, 1", f"v_lshl_add_u32 v{a}, v{b}, 5, v{a}",
                f"v_lshrrev_b32 v{b}, 5, v1", f"v_lshl_add_u32 v{a}, v{b}, 4, v{a}", f"v_add_u32 v{a}, s94, v{a}", f"v_add_u32 v{b}, {16*2048}, v{a}"]
    @staticmethod
    def xres(a, b):
        it = []
        for mb in range(2):
            for p in range(2):
                r = 128 + (p * 2 + mb) * 4
                it.append(f"global_load_dwordx4 a[{r}:{r+3}], v{(a, b)[mb]}, s[4:5] offset:{p*64} {F_X0}")
        return it
    def zero(self):
        return [f"v_mov_b64 v[{i}:{i+1}], 0" for i in range(192, 256, 2)]
    def run(self, units, nxt, accb, ld, bar, batches=()):
        n = len(units); al = list(units) + list(nxt)
        mf, fill = [], [[] for _ in range(4 * n)]
        for u in range(n):
            if u in bar:
                fill[4 * u - 1] += [bar[u], "s_barrier"] if isinstance(bar[u], str) else list(bar[u])
            if u + 3 < len(al):
                rd = self.reads((u + 3) % 4, *al[u + 3])
                if opt("hack"):
                    for i in (0, 2): fill[4 * u + i].append(rd[i])
                else:
                    for i in range(4): fill[4 * u + i].append(rd[i])
            rem = min(len(al), u + 4) - (u + 2)
            if opt("hack"):
                if u % 2 == 1: fill[4 * u + 3].append("s_waitcnt lgkmcnt(4)")
            elif u + 1 < len(al): fill[4 * u + 3].append(f"s_waitcnt lgkmcnt({4 * max(rem, 0)})")
            mf += self.mfmas(u % 4, *units[u], accb)
        for slot, ngrp, post, *pos in ([ld] if isinstance(ld, tuple) else (ld or [])):
            L = self.loads(slot, ngrp)
            p0, span = pos if pos else (0, 4 * n - 4 if n == 8 else 48)
            for i, (pre, ins) in enumerate(L):
                p = p0 + i * span // len(L)
                if pre: fill[p].append(pre)
                fill[p + 1].append(ins)
            fill[p + 1].append(f"@tag ld{slot}")
            a = self.adv(ngrp == 2)
            for i in range(0, len(a), 2): fill[min(p + 2 + i // 2, 4 * n - 1)] += a[i:i+2]
            assert not post
        emit_stream(self.A, mf, fill, list(batches))
    def pre(self):
        A = self.A
        A("v_mov_b32 v24, s92\nv_add_u32 v26, 256, v24\nv_add_u32 v27, 512, v24")
        A("s_and_b32 s30, s25, 4\ns_lshl_b32 s30, s30, 6\nv_add_u32 v24, s30, v26")
        if int(opt("cpf2", "0")):
            l = newlab("c")
            A(f"s_getpc_b64 s[10:11]\n{l}:\ns_add_u32 s10, s10, L2_loop-{l}\ns_addc_u32 s11, s11, 0")
            A("s_bfe_u32 s30, s2, 0x30003\ns_lshl_b32 s30, s30, 2\ns_add_u32 s30, s30, s24\ns_lshl_b32 s30, s30, 10")
            A("s_min_u32 s30, s30, L_end-L2_loop-1024\nv_add_u32 v18, s30, v2")
        if C3 & 4:
            for g in self.c3addr(31): emit_group(A, g)
        if DYN:
            A("s_andn2_b32 s30, s93, 128\ns_add_u32 s30, s30, 64\nv_mov_b32 v22, s30\nv_mov_b32 v21, 1\nv_mov_b32 v23, 99")
            A("v_lshlrev_b32 v20, 2, v1\nv_add_u32 v20, 0x27000, v20")
        A("@wv h2s")
        emit_sync(A, spin(30, 22, 16, 29, True, sleep=4, off=1024))
        A("s_barrier")
    def sunits(self, slot, order=range(8)): return [(nb, slot, kp) for nb in order for kp in range(2)]
    def body(self):
        A = self.A
        A("L2_start:")
        stamp(A, 12)
        for u in range(3):
            for r in self.reads(u, *self.sunits(0)[u]): A(r)
        A("s_waitcnt lgkmcnt(8)")
        A.raw(".p2align 6")
        A("L2_loop:")
        phs = range(4) if DYN else sorted({(NKV - 2) % 4, (26 - NKV) % 4})
        for s in range(4):
            bt = [(56, 57, ["global_load_dword v25, v26, s[22:23] sc1"])] if s == 2 else []
            if s == 0:
                l = newlab("g")
                bt = [(52, 53, [Unc(["s_lshl_b32 s30, s24, 2", "s_add_u32 s30, s30, s80", "s_cmp_lg_u32 s30, 3", f"s_cbranch_scc1 {l}",
                                     "v_mov_b32 v25, 1", "s_mov_b64 exec, 1", "global_atomic_add v24, v25, s[22:23] sc1",
                                     "s_mov_b64 exec, -1", f"{l}:"])]),
                      (56, 57, ["global_load_dword v29, v30, s[22:23] offset:768 sc1"])]
            if s == 1: bt = [(62, 63, [Unc(spin(30, 22, 16, 29, True, sleep=2, off=768))])]
            if s == 3 and int(opt("cpf2", "0")):
                bt.append((54, 55, ["global_load_dwordx4 v[12:15], v18, s[10:11]"]))
            if s == 3 and C3 & 4: bt += [(53, 54, self.c3pf(31))]
            bar = ["s_waitcnt vmcnt(%d)" % (12 if opt("hk2") == "halfw" else 16), "s_barrier"]
            if DYN:
                l1, l2 = newlab("a"), newlab("b")
                g = ["s_lshl_b32 s30, s24, 8", "s_sub_i32 s30, s99, s30", "s_cmp_lt_i32 s30, 11"]
                cp = 52 if DYN == 2 else 0
                bt.insert(0, (cp, cp + 1, [Unc(g + [f"s_cbranch_scc1 {l1}", "s_mov_b64 exec, 1", "global_atomic_add v23, v22, v21, s[22:23] sc0 sc1",
                                              "s_mov_b64 exec, -1", f"{l1}:"])]))
                bar = ["s_waitcnt vmcnt(16)",
                       g[:2] + ["s_cmp_lt_i32 s30, 12", f"s_cbranch_scc1 {l2}", f"ds_write_b32 v20, v23 offset:{(s % 2) * 256}", "s_waitcnt lgkmcnt(0)", f"{l2}:"],
                       "s_barrier", f"ds_read_b32 v19, v20 offset:{(s % 2) * 256}"]
            self.run(self.sunits(s), self.sunits((s + 1) % 4)[:3], 192, ((s + 2) % 4, 2, [], 1, 47), {13: bar}, bt)
            if s == 3:
                emit_sync(A, spin(26, 22, 16, 25, True))
                A("v_mov_b32 v26, v27\ns_mov_b32 s80, 0")
            if DYN:
                A("v_readfirstlane_b32 s30, v19\ns_cmp_lt_u32 s30, 4\ns_cselect_b32 s30, s99, 0\ns_cmp_eq_u32 s30, s67\ns_addc_u32 s67, s67, 0")
            if (s + 1) % 4 in phs: A(f"s_cmp_ge_u32 s99, s67\ns_cbranch_scc1 L2_fin{(s + 1) % 4}")
        A("s_branch L2_loop")
        for ph in phs: self.final(ph)
    def final(self, ph):
        A = self.A
        A(f"L2_fin{ph}:")
        stamp(A, 13)
        if STAMPS: A("s_mul_i32 s30, s67, 100\nv_readlane_b32 s31, v0, 0\ns_add_u32 s30, s30, s31\nv_writelane_b32 v0, s30, 14")
        A("@tag k2l")
        A(f"s_add_u32 s32, s8, s79\ns_addc_u32 s33, s9, 0\ns_sub_u32 s34, {1024*2048}, s79\ns_lshl_b32 s72, s24, 16")
        def gpart(q):
            o, p = 192 + q * 4, 128 + q * 4
            if P16:
                it = [f"@wv P{q//2}"] if q % 2 == 0 else []
                pp = 128 + q * 2
                it += [f"v_lshlrev_b32 v20, 16, v{pp}", f"v_and_b32 v21, s3, v{pp}", f"v_lshlrev_b32 v22, 16, v{pp+1}", f"v_and_b32 v23, s3, v{pp+1}"]
                it += [f"v_add_f32 v{o+i}, v{o+i}, v{20+i}" for i in range(4)]
            else:
                it = [f"@wv P{q}"]
                it += [f"v_add_f32 v{o+i}, v{o+i}, v{p+i}" for i in range(4)]
            it += [f"v_mul_f32 v{20+i}, s87, v{o+i}" for i in range(4)]
            it += [f"v_exp_f32 v{20+i}, v{20+i}" for i in range(4)]
            it += [f"v_add_f32 v{20+i}, 1.0, v{20+i}" for i in range(4)]
            it += [f"v_rcp_f32 v{20+i}, v{20+i}" for i in range(4)]
            it += [f"v_mul_f32 v{o+i}, v{o+i}, v{20+i}" for i in range(4)]
            return it
        def xpart(p, mb):
            r = 128 + (p * 2 + mb) * 4
            q0, q1 = 96 + ((2 * p) * 2 + mb) * 4, 96 + ((2 * p + 1) * 2 + mb) * 4
            it = [f"v_accvgpr_read_b32 v{12+i}, a{r+i}" for i in range(4)]
            it += ["v_permlane16_swap_b32 v12, v14", "v_permlane16_swap_b32 v13, v15"]
            for q, s in ((q0, 12), (q1, 14)):
                it += [f"v_lshlrev_b32 v{q}, 16, v{s}", f"v_and_b32 v{q+1}, s3, v{s}", f"v_lshlrev_b32 v{q+2}, 16, v{s+1}", f"v_and_b32 v{q+3}, s3, v{s+1}"]
            return it
        def fin(p, mb):
            it = []
            qs = [(2 * p) * 2 + mb, (2 * p + 1) * 2 + mb]
            for q in qs:
                it += [f"v_fmac_f32 v{96+q*4+i}, v{64+q*4+i}, v{192+q*4+i}" for i in range(4)]
            d = 192 + qs[0] * 4
            for j, q in enumerate(qs):
                it += [f"v_cvt_pk_bf16_f32 v{d+2*j}, v{96+q*4}, v{97+q*4}", f"v_cvt_pk_bf16_f32 v{d+2*j+1}, v{98+q*4}, v{99+q*4}"]
            it += [f"v_permlane16_swap_b32 v{d}, v{d+2}", f"v_permlane16_swap_b32 v{d+1}, v{d+3}",
                   f"global_store_dwordx4 v{16+mb}, v[{d}:{d+3}], s[18:19] offset:{p*64} {opt('out', 'nt')}"]
            return it
        l = newlab("f")
        flag = Unc(["s_cmp_lg_u32 s24, 0", f"s_cbranch_scc1 {l}", "v_mov_b32 v25, 1", "s_mov_b64 exec, 1",
                    f"global_store_dword v27, v25, s[22:23] {SC}", "s_mov_b64 exec, -1", f"{l}:"])
        S = [(ph + i) % 4 for i in range(4)]
        un = self.sunits(S[0], [0, 1, 4, 5, 6, 7]) + self.sunits(S[1], [4, 5, 6, 7]) + self.sunits(S[0], [2, 3]) + self.sunits(S[1], [0, 1, 2, 3])
        WL = [S[2]*32768, S[2]*32768+16384, S[3]*32768, S[3]*32768+16384, 131072, 147456, S[0]*32768, S[0]*32768+16384]
        XR = [S[2]*32, S[3]*32, 144, 176, 208, S[0]*32, S[1]*32, S[2]*32]
        def sreads(ring, t, nb, kp):
            out = []
            base = WL[t]; v = (4, 8, 160)[base >> 16] + nb
            for k2 in range(2):
                for h in range(2):
                    r = 32 + ring * 8 + k2 * 4 + 2 * h
                    out.append(f"ds_read_b64_tr_b16 v[{r}:{r+1}], v{v} offset:{(base & 0xffff) + (kp * 2 + k2) * 4096 + h * 2048}")
            return out
        def smf(ring, t, nb, kp):
            out = []
            for mb in range(2):
                for k2 in range(2):
                    w = 32 + ring * 8 + k2 * 4; x = XR[t] + ((kp * 2 + k2) * 2 + mb) * 4; a = 64 + (nb * 2 + mb) * 4
                    out.append(f"v_mfma_f32_16x16x32_bf16 v[{a}:{a+3}], v[{w}:{w+3}], a[{x}:{x+3}], v[{a}:{a+3}]")
            return out
        sun = [(t, nb, kp) for t in range(8) for nb in range(4) for kp in range(2)]
        N = 96
        rdu = lambda u: self.reads(u % 4, *un[u]) if u < 32 else sreads(u % 4, *sun[u - 32])
        mfu = lambda u: self.mfmas(u % 4, *un[u], 192) if u < 32 else smf(u % 4, *sun[u - 32])
        mf, fill = [], [[] for _ in range(4 * N)]
        bars = {9: "@wv k2l", 29: "@wv W1", 45: "@wv W3", 61: "@wv W5", 77: "@wv W7", int(opt("fb", "37")): "@wv ps"}
        for u in range(N):
            if u in bars: fill[4 * u - 1] += [bars[u], "s_barrier"] + ([flag] if bars[u] == "@wv ps" else [])
            if u >= 32 and u % 8 == 0: fill[4 * u - 1].append(f"@wv X{(u - 32) // 8}")
            if u + 3 < N:
                for i, r in enumerate(rdu(u + 3)): fill[4 * u + i].append(r)
            if u + 1 < N: fill[4 * u + 3].append(f"s_waitcnt lgkmcnt({4 * max(min(N, u + 4) - (u + 2), 0)})")
            mf += mfu(u)
        def pairbase(t): return [f"s_add_u32 s98, s75, {t//2}", "s_and_b32 s98, s98, 3", "s_lshl_b32 s97, s98, 19", "s_add_u32 s97, s97, s72",
                                 "s_lshl_b32 s98, s98, 14"]
        def wl(t): return [((pairbase(t) if (j == 0 and t % 2 == 0) else []) +
                            [f"s_add_u32 m0, s78, {WL[t] + j*1024}", f"s_add_u32 s96, s97, {(t%2)*128*2048 + j*16384}"],
                            [f"buffer_load_dwordx4 v28, s[32:35], s96 offen {opt('w2')} lds"] + ([f"@tag W{t}"] if j == 3 else [])) for j in range(4)]
        def xl(t): return [([f"s_add_u32 s73, s98, {112*2048 + (t%2)*8192 + (i//4)*4096}"] if i % 4 == 0 else [],
                            [f"buffer_load_dwordx4 a[{XR[t]+i*4}:{XR[t]+i*4+3}], v2, s[36:39], s73 offen offset:{(i%4)*1024} {F_H}"] +
                            ([f"@tag X{t}"] if i == 7 else [])) for i in range(8)]
        A("s_add_u32 s75, s26, s27" if int(opt("srot", "0")) else "s_mov_b32 s75, 0")
        L = []
        for t in range(0, 8, 2): L += wl(t) + wl(t + 1) + xl(t) + xl(t + 1)
        r1, r2 = float(opt("r1", "3.6")), float(opt("r2", "3.0"))
        p = 1.0; pos = []
        for pre, ins in L:
            q = int(p); pos.append(q)
            fill[q - 1] += pre; fill[q] += ins
            p += r1 if p < 128 else r2
        assert pos[24] > 36 and pos[72] > 116 and pos[64] > 96 and pos[80] > 128 and pos[88] > 160
        for t in range(8):
            assert pos[(t // 2) * 24 + 8 + (t % 2) * 8 + 7] < 128 + 32 * t - 1
        for i, b in enumerate((29, 45, 61, 77)): assert pos[i * 24 + 7] < 4 * b - 1
        misc = (["v_mov_b32 v27, s93", "v_xor_b32 v26, 128, v27", "s_mov_b32 s3, 0xffff0000"] + self.xaddr(16, 17) +
                [f"v_add_u32 v{160+i}, 0x20000, v{4+i}" for i in range(4)] + [f"v_mov_b32 v{i}, 0" for i in range(64, 96)])
        bt = [(0, 60, misc)]
        for j in range(4):
            a = 224 + j * 8
            it = [f"v_cvt_pk_bf16_f32 v{a+i}, v{a+2*i}, v{a+2*i+1}" for i in range(4)]
            it.append([f"buffer_store_dwordx4 v[{a}:{a+3}], v2, s[40:43], s74 offen offset:{j*1024} {SC}"] + (["@tag ps"] if j == 3 else []))
            bt.append((62 + 8 * j, 62 + 8 * j + 6, it))
        pc = int(opt("pc", "224"))
        sd, gd = int(opt("sd", "32")), int(opt("gd", "36"))
        bt.append((pc - sd, pc - sd + 1, [["global_load_dword v25, v26, s[22:23] sc1", "@tag pp"]]))
        bt.append((pc - sd + 2, pc - 1, xpart(0, 0) + xpart(0, 1)))
        it = ["@wv pp", Unc(spin(26, 22, 1, 25, True))]
        for q in range(4):
            it.append([f"buffer_load_dwordx4 v[{128+q*4}:{131+q*4}], v2, s[40:43], s77 offen offset:{q*1024} sc1", f"@tag P{q}"])
        bt.append((pc, pc + 8, it))
        bt.append((pc + 9, pc + gd - 1, xpart(1, 0) + xpart(1, 1)))
        bt.append((pc + gd, 372, sum([gpart(q) for q in range(8)], [])))
        bt.append((374, 384, fin(0, 0) + fin(0, 1)))
        bt.append((390, 391, fin(1, 0) + fin(1, 1)))
        if STAMPS and not opt("tailst"):
            for t in range(9):
                fill[127 + 32 * t] += ["s_memtime s[100:101]" if opt("cyc") else "s_memrealtime s[100:101]", "s_waitcnt lgkmcnt(0)", f"v_writelane_b32 v0, s100, {17 + t}"]
        emit_stream(A, mf, fill, bt)
        if opt("padfrom"):
            A(f"s_waitcnt vmcnt(0)\nv_readlane_b32 s30, v0, {opt('padfrom')}\ns_add_u32 s30, s30, 10000")
            A(f"Lpad{ph}:\ns_memrealtime s[100:101]\ns_waitcnt lgkmcnt(0)\ns_sub_u32 s31, s100, s30\ns_cmp_lt_i32 s31, 0\ns_cbranch_scc1 Lpad{ph}")
        stamp_out(A, 15, f"a{ph}")
        A("s_endpgm")

def kernel(A):
    name = NAME + "_kernel"
    A.raw(f".globl {name}\n.p2align 8\n.type {name},@function")
    A(f"{name}:")
    A("s_cmp_ge_u32 s2, 256\ns_cbranch_scc1 L_end")
    if STAMPS: A("s_memtime s[98:99]" if opt("cyc") else "s_memrealtime s[98:99]")
    if FAST: A("s_memrealtime s[96:97]")
    A("s_load_dwordx4 s[4:7], s[0:1], 0\ns_load_dwordx2 s[8:9], s[0:1], 16")
    A("s_load_dwordx4 s[12:15], s[0:1], 32\ns_load_dwordx4 s[16:19], s[0:1], 48\ns_load_dwordx4 s[20:23], s[0:1], 64")
    if ECPF:
        l = newlab("c")
        A(f"s_getpc_b64 s[10:11]\n{l}:\ns_sub_u32 s10, s10, {l}-{name}\ns_subb_u32 s11, s11, 0")
        A("s_lshr_b32 s30, s2, 3\ns_lshl_b32 s30, s30, 12\nv_lshl_add_u32 v28, v0, 4, s30")
        A(f"v_min_u32 v28, L_end-{name}-16, v28")
        A("global_load_dwordx4 v[120:123], v28, s[10:11]")
    A("v_and_b32 v1, 63, v0\nv_lshrrev_b32 v2, 6, v0\nv_readfirstlane_b32 s24, v2")
    A("s_and_b32 s25, s2, 7\ns_bfe_u32 s26, s2, 0x30003\ns_lshr_b32 s27, s2, 6\ns_and_b32 s29, s27, 1")
    A("s_and_b32 s28, s25, 3\ns_lshl_b32 s28, s28, 2\ns_add_u32 s28, s28, s27")
    A("s_lshl_b32 s30, s27, 3\ns_add_u32 s30, s30, s25\ns_lshl_b32 s30, s30, 3\ns_lshl_b32 s31, s26, 8\ns_add_u32 s30, s30, s31")
    A("v_lshrrev_b32 v21, 5, v0\nv_add_u32 v21, s30, v21\nv_and_b32 v22, 31, v0")
    A("v_lshlrev_b32 v20, 11, v21\nv_lshl_add_u32 v20, v22, 4, v20")
    A(f"v_lshlrev_b32 v31, 7, v22\ns_lshl_b32 s30, s26, 12\ns_add_u32 s30, s30, {XFL_OFF}\nv_add_u32 v31, s30, v31\nv_mov_b32 v24, 0")
    A("s_or_b32 s3, s25, s27\ns_xor_b32 s30, s24, 3\ns_or_b32 s3, s3, s30")
    A("s_waitcnt lgkmcnt(0)")
    if FAST:
        l = newlab("z")
        n = A.nvm
        A(f"s_cmp_lg_u32 s3, 0\ns_cbranch_scc1 {l}\ns_or_b32 s30, s96, 1\nv_mov_b32 v24, s30\ns_lshl_b32 s30, s26, 5\nv_mov_b32 v25, s30")
        A(f"s_mov_b64 exec, 1\nglobal_store_dword v25, v24, s[20:21] {SC}\ns_mov_b64 exec, -1\n{l}:")
        A.nvm = n
    elif NSY:
        l = newlab("z")
        A(f"s_cmp_lg_u32 s3, 0\ns_cbranch_scc1 {l}\nglobal_store_dword v31, v24, s[22:23] {SC}\n{l}:")
    for j in range(4):
        A(f"global_load_dwordx4 v[{64+4*j}:{67+4*j}], v20, s[4:5] offset:{512*j} {F_X0}")
    if FAST:
        A("s_lshl_b32 s30, s26, 2\ns_add_u32 s30, s30, s24\ns_lshl_b32 s30, s30, 6\nv_and_b32 v24, 15, v1\nv_add_u32 v24, s30, v24")
        A(f"v_lshlrev_b32 v125, 3, v24\nv_add_u32 v125, {STAT_OFF}, v125")
        A("v_lshlrev_b32 v24, 11, v24\nv_lshrrev_b32 v25, 4, v1\nv_lshl_add_u32 v127, v25, 4, v24")
        A(f"v_lshlrev_b32 v20, 3, v21\nv_add_u32 v20, {STAT_OFF}, v20")
    if opt("tlb"):
        A("v_lshlrev_b32 v29, 20, v1")
        A("global_load_dword v124, v29, s[22:23]")
        A("v_and_b32 v30, 3, v1\nv_lshlrev_b32 v30, 20, v30")
        A("global_load_dword v125, v30, s[18:19]")
        A("v_min_u32 v30, 6, v1\nv_lshlrev_b32 v30, 20, v30")
        A("global_load_dword v126, v30, s[16:17]\nglobal_load_dword v126, v30, s[12:13]\nglobal_load_dword v126, v30, s[14:15]")
        A("v_min_u32 v30, 5, v1\nv_lshlrev_b32 v30, 20, v30\nglobal_load_dword v126, v30, s[6:7]")
        A("v_min_u32 v30, 1, v1\nv_lshlrev_b32 v30, 20, v30\nglobal_load_dword v126, v30, s[8:9]")
    if STAMPS: A("v_writelane_b32 v0, s98, 0")
    A("v_lshlrev_b32 v2, 4, v1")
    A("v_lshrrev_b32 v24, 3, v1\ns_lshl_b32 s30, s24, 3\nv_add_u32 v24, s30, v24")
    A("v_bfe_u32 v25, v1, 4, 1\ns_and_b32 s30, s24, 1\ns_lshl_b32 s30, s30, 1\nv_or_b32 v25, s30, v25")
    A("v_bfe_u32 v26, v1, 1, 2\nv_xor_b32 v26, v26, v25\nv_lshlrev_b32 v26, 5, v26")
    A("v_and_b32 v27, 1, v1\nv_lshl_add_u32 v26, v27, 4, v26")
    A(f"v_mul_u32_u24 v{K1.VO6}, 6144, v24\nv_add_u32 v{K1.VO6}, v{K1.VO6}, v26")
    A(f"v_mul_u32_u24 v{K1.VO7}, 7168, v24\nv_add_u32 v{K1.VO7}, v{K1.VO7}, v26")
    A("v_lshrrev_b32 v24, 2, v1\ns_and_b32 s30, s24, 1\ns_lshl_b32 s30, s30, 4\nv_add_u32 v24, s30, v24")
    A("v_bfe_u32 v25, v1, 1, 1\nv_lshrrev_b32 v26, 5, v1\nv_xor_b32 v25, v25, v26\nv_lshlrev_b32 v25, 5, v25")
    A("v_lshl_add_u32 v25, v27, 4, v25")
    A(f"v_mul_u32_u24 v{K1.VOH}, 7168, v24\nv_add_u32 v{K1.VOH}, v{K1.VOH}, v25")
    A(f"v_add_u32 v{K1.VX1}, 4096, v2\nv_add_u32 v3, {144*2048}, v2")
    A(f"s_mov_b32 s72, 0\ns_mov_b32 s74, 0\ns_mov_b32 s73, {32*6144}\ns_mov_b32 s75, {32*7168}\ns_mov_b32 s76, 0")
    A("s_lshl_b32 s78, s24, 10")
    A("s_lshr_b32 s79, s24, 1\ns_lshl_b32 s79, s79, 12\ns_and_b32 s30, s24, 1\ns_lshl_b32 s30, s30, 10\ns_add_u32 s79, s79, s30")
    A("s_lshl_b32 s10, s26, 2\ns_add_u32 s10, s10, s24\ns_lshl_b32 s30, s10, 17")
    srd(A, 52, 22, "s30", 131072)
    A(f"s_mul_i32 s30, s10, {2*144*2048}\ns_add_u32 s30, s30, {ACT_OFF}")
    srd(A, 56, 22, "s30", 2 * 144 * 2048)
    A(f"s_mul_i32 s30, s28, {8*KVP_STRIDE}\ns_add_u32 s30, s30, {KVP_OFF}")
    srd(A, 60, 22, "s30", 8 * KVP_STRIDE)
    srd(A, 64, 16, 0, 3584 * 2048); srd(A, 68, 8, 0, 1024 * 2048)
    A("s_lshl_b32 s81, s2, 2\ns_add_u32 s81, s81, s24\ns_lshl_b32 s81, s81, 10\ns_mov_b32 s82, s81")
    A(f"s_mov_b32 s86, {LOG2E:#x}\ns_mov_b32 s87, {NLOG2E:#x}\ns_mov_b32 s88, {EPS6:#x}")
    A("s_lshl_b32 s89, s28, 4\ns_add_u32 s89, s89, 8")
    ob = [b for b in range(3) if b != RB]
    A(f"s_lshl_b32 s95, s26, 1\ns_bfe_u32 s30, s25, {0x10000 + ob[0]:#x}")
    if int(opt("xp", "0")): A(f"s_bfe_u32 s31, s25, {0x10000 + RB:#x}\ns_xor_b32 s30, s30, s31")
    A("s_add_u32 s95, s95, s30\ns_lshl_b32 s95, s95, 3")
    A(f"s_bfe_u32 s30, s25, {0x10000 + ob[1]:#x}\ns_lshl_b32 s30, s30, 2\ns_add_u32 s95, s95, s30\ns_add_u32 s95, s95, s27")
    if opt("jx"): A(f"s_xor_b32 s95, s95, {opt('jx')}")
    A(f"s_bfe_u32 s91, s25, {0x10000 + RB:#x}")
    if RINV: A("s_xor_b32 s91, s91, 1")
    A("s_lshr_b32 s94, s95, 3\ns_lshl_b32 s94, s94, 2\ns_add_u32 s94, s94, s24\ns_lshl_b32 s94, s94, 16")
    if CMAP:
        A("s_and_b32 s30, s95, 3\ns_lshl_b32 s30, s30, 7\ns_add_u32 s94, s94, s30\ns_and_b32 s30, s95, 4\ns_lshl_b32 s30, s30, 8\ns_add_u32 s94, s94, s30")
        A("s_lshl_b32 s31, s91, 9\ns_add_u32 s94, s94, s31\ns_lshl_b32 s31, s91, 7")
    else:
        A("s_and_b32 s30, s95, 7\ns_lshl_b32 s30, s30, 8\ns_add_u32 s94, s94, s30\ns_lshl_b32 s31, s91, 7\ns_add_u32 s94, s94, s31")
    A(f"s_lshl_b32 s92, s26, 11\ns_add_u32 s92, s92, {FLAG_OFF}")
    A(f"s_lshl_b32 s93, s95, 8\ns_add_u32 s93, s93, {FLAG_OFF + 16384}\ns_add_u32 s93, s93, s31")
    l = newlab("z")
    A(f"s_cmp_lg_u32 s24, 0\ns_cbranch_scc1 {l}")
    A("v_mov_b32 v24, 0\nv_lshl_add_u32 v25, v1, 8, s92\nv_subrev_u32 v25, 256, v25\nv_mov_b32 v26, s93")
    A("v_cmp_eq_u32 vcc, 0, v1\nv_cndmask_b32 v25, v25, v26, vcc")
    A("s_or_b32 s30, s25, s27\ns_cmp_eq_u32 s30, 0\ns_cselect_b32 s30, 63, 1\ns_mov_b32 s31, 0\ns_mov_b64 exec, s[30:31]")
    A(f"global_store_dword v25, v24, s[22:23] {SC}")
    if DYN:
        A(f"s_mov_b64 exec, 1\nv_and_b32 v26, 0xffffff7f, v26\nglobal_store_dword v26, v24, s[22:23] offset:64 {SC}")
    A("s_mov_b64 exec, -1")
    A(f"{l}:")
    A("v_xor_b32 v24, v21, v22\nv_and_b32 v24, 7, v24\nv_lshlrev_b32 v24, 4, v24\nv_lshl_add_u32 v22, v22, 7, v24")
    A("v_readfirstlane_b32 s30, v21")
    A("s_lshr_b32 s31, s30, 6\ns_lshl_b32 s31, s31, 17\ns_bfe_u32 s3, s30, 0x20004\ns_lshl_b32 s3, s3, 10\ns_add_u32 s31, s31, s3")
    A("s_and_b32 s30, s30, 8\ns_lshl_b32 s30, s30, 4\ns_add_u32 s31, s31, s30\ns_lshl_b32 s30, s24, 15\ns_add_u32 s31, s31, s30")
    A("v_lshrrev_b32 v23, 5, v1\nv_lshlrev_b32 v23, 12, v23\nv_bfe_u32 v24, v1, 3, 2\nv_lshl_add_u32 v23, v24, 8, v23")
    A("v_lshrrev_b32 v24, 3, v1\nv_xor_b32 v24, v24, v1\nv_and_b32 v24, 7, v24\nv_lshl_add_u32 v23, v24, 4, v23\nv_add_u32 v23, s31, v23")
    A("s_lshr_b32 s30, s24, 1\ns_lshl_b32 s30, s30, 15\ns_and_b32 s31, s24, 1\ns_lshl_b32 s31, s31, 12\ns_add_u32 s30, s30, s31\nv_add_u32 v21, s30, v2")
    A("v_lshrrev_b32 v24, 4, v1\nv_bfe_u32 v25, v1, 2, 2\nv_and_b32 v26, 3, v1")
    A("v_lshl_add_u32 v27, v24, 3, v25")
    A("v_lshrrev_b32 v28, 1, v25\nv_and_b32 v29, 1, v24\nv_lshl_or_b32 v28, v29, 1, v28")
    for nb in range(4):
        A(f"v_xor_b32 v30, {nb}, v28\nv_lshlrev_b32 v30, 5, v30\nv_lshl_add_u32 v30, v27, 7, v30")
        A(f"v_lshl_add_u32 v{4+nb}, v26, 3, v30\nv_add_u32 v{8+nb}, 0x10000, v{4+nb}\nv_add_u32 v{12+nb}, 0x20000, v{4+nb}")
    A("s_lshr_b32 s83, s28, 3\ns_mul_i32 s83, s83, 56\ns_bfe_u32 s30, s28, 0x20001\ns_add_u32 s83, s83, s30\ns_lshl_b32 s83, s83, 11")
    A("s_lshr_b32 s10, s28, 1\ns_mul_i32 s10, s10, 896\ns_lshl_b32 s11, s28, 7")
    NQ, NF = 1024 * 6144, 1024 * 7168
    def wsrd(d, lo, off, tot):
        A(f"s_sub_u32 s31, {tot}, {off}")
        srd(A, d, lo, off, "s31")
    k2 = K2(A)
    A("s_cmp_ge_u32 s25, 4\ns_cbranch_scc1 L1_typeQ")
    for nb in range(2):
        A(f"v_xor_b32 v30, {nb}, v29\nv_lshlrev_b32 v30, 5, v30\nv_lshl_add_u32 v30, v27, 6, v30")
        A(f"v_lshl_add_u32 v30, v26, 3, v30\nv_add_u32 v{12+nb}, 0x20000, v30")
    A("s_add_u32 s30, s11, 2048"); wsrd(32, 6, "s30", NQ)
    A("s_add_u32 s30, s11, 4096"); wsrd(36, 6, "s30", NQ)
    A("s_lshl_b32 s30, s29, 8\ns_add_u32 s30, s30, 512\ns_add_u32 s30, s30, s10")
    wsrd(40, 12, "s30", NF); wsrd(44, 14, "s30", NF)
    A("s_lshl_b32 s31, s29, 13\ns_add_u32 s83, s83, s31")
    A("s_lshl_b32 s30, s29, 6\ns_add_u32 s30, s30, 640\ns_add_u32 s30, s30, s10")
    A("s_cmp_ge_u32 s24, 2\ns_cselect_b32 s10, s14, s12\ns_cselect_b32 s11, s15, s13")
    wsrd(48, 10, "s30", NF)
    K1(A, "KV").body(k2)
    A("L1_typeQ:")
    wsrd(40, 6, "s11", NQ)
    A("s_lshl_b32 s30, s29, 8\ns_add_u32 s30, s30, s10")
    wsrd(32, 12, "s30", NF); wsrd(36, 14, "s30", NF)
    A("s_lshl_b32 s31, s29, 13\ns_add_u32 s83, s83, s31")
    A("s_add_u32 s30, s30, 128")
    wsrd(44, 12, "s30", NF); wsrd(48, 14, "s30", NF)
    A(f"s_lshl_b32 s85, s28, 12\ns_add_u32 s85, s85, {112*2048}")
    K1(A, "Q").body(k2)
    k2.body()
    A("L_end:")
    A("s_endpgm")
    A.raw('.section .rodata,"a"\n.p2align 6')
    A.raw(f".amdhsa_kernel {name}")
    for l in (".amdhsa_next_free_vgpr 512", ".amdhsa_next_free_sgpr 102", ".amdhsa_accum_offset 256", ".amdhsa_group_segment_fixed_size 0",
              ".amdhsa_kernarg_size 80", ".amdhsa_user_sgpr_count 2", ".amdhsa_user_sgpr_kernarg_segment_ptr 1",
              ".amdhsa_system_sgpr_workgroup_id_x 1", ".amdhsa_float_denorm_mode_32 3", ".end_amdhsa_kernel"):
        A.raw(l)

def main(out):
    A = Asm()
    for l in open("cdna_kernels/" + NAME + ".s.ref").read().split("\n"):
        if l.startswith("; @launch") or l.startswith("; Override") or l.startswith("; grid=ceil"): continue
        if not l.startswith(";"): break
        A.raw(l)
    if "--list" in sys.argv:
        A.raw(f"; @launch kernel={NAME}_kernel grid=(256,1,1) block=(256,1,1) lds=163840")
    else:
        A.raw("; @launch grid=(256,1,1) block=(256,1,1) lds=163840")
    A.raw('.amdgcn_target "amdgcn-amd-amdhsa--gfx950"')
    A.raw(MAC)
    A.raw(".text")
    kernel(A)
    open(out, "w").write(A.finalize())
main(sys.argv[1])
```

```python
import sys
from asmlib import Asm, MAC, cost

NAME = "recurrent_scan__linear_attn_block__glu_gated_swiglu__prompt"
XN_OFF = 0
ACT_OFF = 4 << 20
KVP_OFF = 24 << 20
KVP_STRIDE = 8448
P_OFF = 32 << 20
FLAG_OFF = (48 << 20) + (int([a for a in sys.argv if a.startswith('--fo=')][0][5:]) if any(a.startswith('--fo=') for a in sys.argv) else 0)
XFL_OFF = 49 << 20
STAT_OFF = 50 << 20
STAMP_OFF = 56 << 20
LOG2E = 0x3fb8aa3b
NLOG2E = 0xbfb8aa3b
EPS6 = 0x358637bd
EPS5 = 0x3727c5ac
SPIN = 0x40000

def opt(name, default=""):
    for a in sys.argv:
        if a.startswith("--" + name + "="): return a.split("=", 1)[1].replace("+", " ")
    return default
STAMPS = "--stamps" in sys.argv
ROT = int(opt("rot", "0"))
L2PF = int(opt("l2pf", "0"))
XFIRST = int(opt("xfirst", "1"))
WU = int(opt("wu", "10"))
RB = int(opt("rb", "2"))
RINV = int(opt("rinv", "0"))
CPF = int(opt("cpf", "1"))
ECPF = int(opt("ecpf", "1"))
W1E = int(opt("w1e", "0"))
W1J = int(opt("w1j", "4"))
NSY = int(opt("nsy", "1"))
ODEF = int(opt("odef", "0"))
FAST = int(opt("fast", "0"))
PKB = int(opt("pkb", "1"))
DYN = int(opt("dyn", "0"))
CMAP = int(opt("cmap", "0"))
WPOLL = int(opt("wpoll", "0"))
C3 = int(opt("c3", "0"))
NKV = int(opt("nkv", "15"))
P16 = int(opt("p16", "1"))

NA = int(opt("na", "12"))
F_X0 = opt("x0", "nt")
F_W1P = opt("w1p", "nt")
F_W1 = opt("w1", "nt")
SC = "sc0 sc1"
F_XN = opt("xn", "sc1")
F_H = opt("h", "sc1")
F_HST = opt("hst", SC)

def stamp(A, idx, tail=False):
    if not STAMPS: return
    if opt("tailst") and 16 <= idx < 26 and not tail: return
    A("s_memtime s[100:101]" if opt("cyc") else "s_memrealtime s[100:101]")
    A("s_waitcnt lgkmcnt(0)")
    A(f"v_writelane_b32 v0, s100, {idx}")
def stamp_out(A, idx, tag):
    if not STAMPS: return
    A("s_waitcnt vmcnt(0)")
    stamp(A, idx)
    A(f"s_cmp_lg_u32 s24, 0\ns_cbranch_scc1 LS_{tag}")
    A(f"s_lshl_b32 s100, s2, 7\ns_add_u32 s100, s100, {STAMP_OFF}")
    A("v_lshl_add_u32 v20, v1, 2, s100")
    A("s_mov_b64 exec, 0xffffffff")
    A("global_store_dword v20, v0, s[22:23]")
    if opt("dbgst"):
        A(f"s_cmp_lg_u32 s2, 0\ns_cbranch_scc1 LS_{tag}")
        A("v_readlane_b32 s30, v0, 0\ns_mov_b64 exec, 1")
        for w, idx in zip((1, 3, 4, 5, 7, 9, 11, 12, 13, 15), (1, 3, 5, 6, 8, 9, 11, 12, 13, 15)):
            A(f"v_readlane_b32 s31, v0, {idx}\ns_sub_u32 s31, s31, s30\nv_mov_b32 v21, s31\nv_mov_b32 v22, {w*4}")
            A("global_store_dword v22, v21, s[20:21]")
    A(f"LS_{tag}:")

def srd(A, d, lo, off, nrec):
    A(f"s_add_u32 s{d}, s{lo}, {off}")
    A(f"s_addc_u32 s{d+1}, s{lo+1}, 0")
    A(f"s_mov_b32 s{d+2}, {nrec}")
    A(f"s_mov_b32 s{d+3}, 0x20000")

_lab = [0]
def newlab(p):
    _lab[0] += 1
    return f"L{p}{_lab[0]}"

def spin(vaddr, base, target, vtmp, first_loaded=False, sleep=1, off=0):
    l, d = newlab("p"), newlab("d")
    g = []
    if first_loaded:
        g += [f"v_readfirstlane_b32 s30, v{vtmp}", f"s_cmp_ge_u32 s30, {target}", f"s_cbranch_scc1 {d}"]
    g += [f"s_mov_b32 s31, {SPIN}", f"{l}:",
          f"global_load_dword v{vtmp}, v{vaddr}, s[{base}:{base+1}] offset:{off} sc1", "s_waitcnt vmcnt(0)",
          f"v_readfirstlane_b32 s30, v{vtmp}", f"s_cmp_ge_u32 s30, {target}", f"s_cbranch_scc1 {d}",
          f"s_sleep {sleep}", "s_sub_u32 s31, s31, 1", "s_cmp_lg_u32 s31, 0", f"s_cbranch_scc1 {l}", f"{d}:"]
    return g

def signal(vaddr, base, v1, off=0):
    l = newlab("s")
    return ["s_cmp_lg_u32 s24, 0", f"s_cbranch_scc1 {l}", f"v_mov_b32 v{v1}, 1", "s_mov_b64 exec, 1",
            f"global_atomic_add v{vaddr}, v{v1}, s[{base}:{base+1}] offset:{off} sc1", "s_mov_b64 exec, -1", f"{l}:"]

def emit_group(A, it, uncounted=False):
    if isinstance(it, str): it = [it]
    for t in it: A(t)

def emit_stream(A, mf, fill, batches):
    bi = 0; pos = 0; done = 0
    def icost(it):
        if isinstance(it, str): return cost(it)
        if it and it[0].startswith('v_pk_'): return 0
        return sum(cost(t) for t in it[:6])
    tot = [sum(icost(x) for x in b[2]) for b in batches]
    for i, m in enumerate(mf):
        A(m)
        for t in fill[i]: emit_group(A, t)
        while bi < len(batches) and batches[bi][0] <= i:
            st, en, items = batches[bi]
            want = tot[bi] * min(1.0, (i - st + 1) / max(1, en - st))
            while pos < len(items) and done < want:
                emit_group(A, items[pos]); done += icost(items[pos]); pos += 1
            while pos < len(items) and icost(items[pos]) == 0:
                emit_group(A, items[pos]); pos += 1
            if pos >= len(items):
                bi += 1; pos = 0; done = 0
            else:
                break
    while bi < len(batches):
        items = batches[bi][2]
        while pos < len(items):
            emit_group(A, items[pos]); pos += 1
        bi += 1; pos = 0

def emit_sync(A, g):
    n = A.nvm
    for t in g: A(t)
    A.nvm = n
class Unc(list):
    pass
def emit_group(A, it):
    if isinstance(it, str): A(it)
    elif isinstance(it, Unc): emit_sync(A, it)
    else:
        for t in it: A(t)

class Inject:
    def __init__(self, A, L, every, skip=0): self.A, self.L, self.every, self.n = A, list(L), every, -skip
    def __call__(self, text):
        for t in text.split("\n"):
            self.A(t); self.n += 1
            if self.n <= 0: continue
            if self.L and self.n % self.every == self.every - 2 and self.L[0][0]: self.A(self.L[0][0])
            if self.L and self.n % self.every == 0: self.A(self.L.pop(0)[1])

def ln_part(A, publish=None):
    X, F, S, Vv = 64, 80, 112, 116
    A("s_mov_b32 s3, 0xffff0000")
    for i in range(16):
        A(f"v_lshlrev_b32 v{F+2*i}, 16, v{X+i}")
        A(f"v_and_b32 v{F+1+2*i}, s3, v{X+i}")
    def reduce32(r, t):
        for m in ("quad_perm:[1,0,3,2]", "quad_perm:[2,3,0,1]", "row_half_mirror", "row_mirror"):
            A(f"v_add_f32_dpp v{r}, v{r}, v{r} {m} row_mask:0xf bank_mask:0xf")
        A(f"v_mov_b32 v{t}, v{r}")
        A(f"v_permlane16_swap_b32 v{t}, v{r}")
        A(f"v_add_f32 v{r}, v{r}, v{t}")
    for i in range(2):
        A(f"v_pk_add_f32 v[{S+2*i}:{S+2*i+1}], v[{F+2*i}:{F+2*i+1}], v[{F+4+2*i}:{F+5+2*i}]")
    for b in range(2, 8):
        for i in range(2):
            A(f"v_pk_add_f32 v[{S+2*i}:{S+2*i+1}], v[{S+2*i}:{S+2*i+1}], v[{F+4*b+2*i}:{F+4*b+2*i+1}]")
    A(f"v_pk_add_f32 v[{S}:{S+1}], v[{S}:{S+1}], v[{S+2}:{S+3}]")
    A(f"v_add_f32 v{S}, v{S}, v{S+1}")
    reduce32(S, S + 1)
    A(f"v_mul_f32 v{S}, 0xba800000, v{S}")
    A(f"v_mov_b32 v{S+1}, v{S}")
    for i in range(16):
        t = X + 2 * (i % 4)
        A(f"v_pk_add_f32 v[{t}:{t+1}], v[{F+2*i}:{F+2*i+1}], v[{S}:{S+1}]")
        a = Vv + 2 * (i % 2)
        if i < 2:
            A(f"v_pk_mul_f32 v[{a}:{a+1}], v[{t}:{t+1}], v[{t}:{t+1}]")
        else:
            A(f"v_pk_fma_f32 v[{a}:{a+1}], v[{t}:{t+1}], v[{t}:{t+1}], v[{a}:{a+1}]")
    A(f"v_pk_add_f32 v[{Vv}:{Vv+1}], v[{Vv}:{Vv+1}], v[{Vv+2}:{Vv+3}]")
    A(f"v_add_f32 v{Vv}, v{Vv}, v{Vv+1}")
    A(f"v_cvt_pk_bf16_f32 v{S}, v{S}, v{S}\nv_and_b32 v{S}, s3, v{S}\nv_mov_b32 v{S+1}, v{S}")
    reduce32(Vv, Vv + 1)
    chain = [f"v_mul_f32 v{Vv}, 0x3a800000, v{Vv}", f"v_cvt_pk_bf16_f32 v{Vv}, v{Vv}, v{Vv}", f"v_and_b32 v{Vv}, s3, v{Vv}",
             f"v_add_f32 v{Vv}, {EPS5:#x}, v{Vv}", f"v_cvt_pk_bf16_f32 v{Vv}, v{Vv}, v{Vv}", f"v_and_b32 v{Vv}, s3, v{Vv}",
             f"v_sqrt_f32 v{Vv}, v{Vv}", f"v_cvt_pk_bf16_f32 v{Vv}, v{Vv}, v{Vv}", f"v_and_b32 v{Vv}, s3, v{Vv}",
             f"v_rcp_f32 v{Vv}, v{Vv}", f"v_mov_b32 v{Vv+1}, v{Vv}"]
    if publish:
        for c in chain[:8]: A(c)
        chain = chain[8:]
        publish(S, Vv)
    for i in range(16):
        a = F + 2 * i
        A(f"v_pk_add_f32 v[{a}:{a+1}], v[{a}:{a+1}], v[{S}:{S+1}]")
        if chain: A(chain.pop(0))
        A(f"v_cvt_pk_bf16_f32 v{a+1}, v{a}, v{a+1}")
        A(f"v_lshlrev_b32 v{a}, 16, v{a+1}\nv_and_b32 v{a+1}, s3, v{a+1}")
    for i in range(16):
        a = F + 2 * i
        A(f"v_pk_mul_f32 v[{a}:{a+1}], v[{a}:{a+1}], v[{Vv}:{Vv+1}]")
        A(f"v_cvt_pk_bf16_f32 v{X+i}, v{a}, v{a+1}")

def merge(a, b, f0=0.0, f1=1.0):
    i0, i1 = int(len(a) * f0), int(len(a) * f1)
    out = list(a[:i0]); b = list(b); n = len(b); done = 0
    for i, x in enumerate(a[i0:i1]):
        out.append(x)
        while b and done < n * (i + 1) // (i1 - i0):
            out.append(b.pop(0)); done += 1
    return out + b + list(a[i1:])

class K1:
    VO6, VO7, VOH, VX1 = 16, 17, 18, 19
    def __init__(self, A, typ):
        self.A = A; self.typ = typ
        ag = [4, 5, 6, 7, 16, 17, 18, 19] if typ == "Q" else [4, 5, 6, 7, 12, 13, 14, 15]
        self.acc = {}
        na = nv = 0
        for nb in range(20):
            for mb in range(4):
                if nb in ag: self.acc[(nb, mb)] = ("a", na); na += 4
                else: self.acc[(nb, mb)] = ("v", 64 + nv); nv += 4
        self.u = 0
    def q(self, nb, mb):
        f, r = self.acc[(nb, mb)]; assert f == "v"; return r
    def xfrag(self, xs, kh, mb): return 128 + xs * 32 + (kh * 4 + mb) * 4
    def reads(self, ring, nb, slot):
        out = []
        grp, sub = nb // 4, nb % 4
        for kh in range(2):
            for h4 in range(2):
                r = 32 + ring * 8 + kh * 4 + 2 * h4
                if self.typ == "KV" and grp == 4:
                    v, imm = 12 + sub % 2, slot * 8192 + (sub // 2) * 4096 + kh * 2048 + h4 * 256
                else:
                    v, imm = 4 + (grp // 2) * 4 + sub, (grp % 2) * 32768 + slot * 8192 + kh * 4096 + h4 * 512
                out.append(f"ds_read_b64_tr_b16 v[{r}:{r+1}], v{v} offset:{imm}")
        return out
    def mfmas(self, ring, nb, slot, first=False):
        out = []
        sw = self.typ == "KV" and nb < 8
        for mb in range(4):
            for kh in range(2):
                w = 32 + ring * 8 + kh * 4; x = self.xfrag(slot, kh, mb)
                wa, xa = f"v[{w}:{w+3}]", f"a[{x}:{x+3}]"
                f, r = self.acc[(nb, mb)]; acc = f"{f}[{r}:{r+3}]"
                out.append(f"v_mfma_f32_16x16x32_bf16 {acc}, {xa if sw else wa}, {wa if sw else xa}, {'0' if first and kh == 0 else acc}")
        return out
    def wloads(self, slot, fl):
        dma = []
        for grp in range(5):
            for half in range(2):
                s = 32 + 4 * grp
                isqkv = (grp == 2) if self.typ == "Q" else (grp < 2)
                if self.typ == "KV" and grp == 4:
                    pre = f"s_add_u32 m0, s79, {131072 + slot*8192 + half*2048}"
                    ins = f"buffer_load_dwordx4 v{self.VOH}, s[{s}:{s+3}], s{74+half} offen {fl} lds"
                else:
                    pre = f"s_add_u32 m0, s78, {grp*32768 + slot*8192 + half*4096}"
                    ins = f"buffer_load_dwordx4 v{self.VO6 if isqkv else self.VO7}, s[{s}:{s+3}], s{(72 if isqkv else 74)+half} offen {fl} lds"
                dma.append((pre, ins))
        return dma
    def xloads(self, slot, so=76):
        xl = []
        for kh in range(2):
            for mb in range(4):
                r = self.xfrag(slot, kh, mb)
                xl.append((None, f"buffer_load_dwordx4 a[{r}:{r+3}], v{2 if kh == 0 else self.VX1}, s[52:55], s{so} offen offset:{mb*1024} {F_XN}"))
        return xl
    def loads(self, slot):
        d, x = self.wloads(slot, F_W1), self.xloads(slot)
        L = []
        while d or x:
            if d: L.append(d.pop(0))
            if x: L.append(x.pop(0))
        return L
    def adv(self):
        return [f"s_add_u32 s72, s72, {64*6144}", f"s_add_u32 s73, s73, {64*6144}", f"s_add_u32 s74, s74, {64*7168}",
                f"s_add_u32 s75, s75, {64*7168}", "s_add_u32 s76, s76, 8192"]
    def l2pf(self):
        l = newlab("f")
        g = ["s_cmp_ge_u32 s90, 1024", f"s_cbranch_scc1 {l}", "s_mul_i32 s10, s90, 6144", "s_mul_i32 s30, s90, 7168",
             f"s_add_u32 s11, s10, {32*6144}", f"s_add_u32 s31, s30, {32*7168}"]
        for pre, ins in self.wloads(0, "nt"):
            ins = ins.replace("buffer_load_dwordx4 ", "buffer_load_dwordx4 v[28:31], ").replace(" lds", "")
            ins = ins.replace("s72", "s10").replace("s73", "s11").replace("s74", "s30").replace("s75", "s31")
            g.append(ins)
        g += [f"{l}:", "s_add_u32 s90, s90, 512"]
        return g
    def stage(self, slot, nxt_units, vmw, pf=(), lastld=False):
        ls = (slot + 3) % 4
        units = [(nb, slot) for nb in range(20)] + list(nxt_units)
        mf, fill = [], []
        for u in range(20):
            f = [[] for _ in range(8)]
            rd = self.reads((u + 2) % 4, *units[u + 2])
            if u == 18:
                f[1] += (["@wv x14", "s_waitcnt lgkmcnt(0)"] if lastld else [f"s_waitcnt vmcnt({vmw}) lgkmcnt(0)"]) + ["s_barrier"]
                for i, j in enumerate((2, 3, 4, 5)): f[j].append(rd[i])
                f[5].append("@tag t0")
            else:
                for i, j in enumerate((0, 2, 4, 6)): f[j].append(rd[i])
                if u == 19: f[6].append("@tag t1")
                f[7].append("s_waitcnt lgkmcnt(4)")
            if u == 19 and not lastld:
                a = self.adv()
                f[1] += a[0:2]; f[3] += a[2:4]; f[5] += a[4:5]
            mf += self.mfmas(u % 4, *units[u]); fill += f
        def odd(p): return p | 1
        W, X = self.wloads(ls, F_W1), self.xloads((slot + 2) % 4)
        wu = WU
        if lastld:
            X += [("s_add_u32 s76, s76, 8192" if i == 0 else None, ins) for i, (_, ins) in enumerate(self.xloads(ls))]
            wu = 10
        nx = len(X)
        if XFIRST:
            xu = 18 - wu
            pos = [odd(xu * 8 + 2 + i * (wu * 8 - 2) // 10) for i in range(10)] + [odd(2 + 2 * len(pf) + i * (xu * 8 - 2 * len(pf)) // nx) for i in range(nx)]
        else:
            pos = [odd(2 + 2 * len(pf) + i * (wu * 8 - 2 * len(pf)) // 10) for i in range(10)] + [odd(wu * 8 + 2 + i * ((18 - wu) * 8 - 2) // nx) for i in range(nx)]
        L = W + X
        for i, p in enumerate(pf): fill[1 + 2 * i] += p
        for (pre, ins), p in zip(L, pos):
            assert p < 145
            if pre: fill[p - 1].append(pre)
            fill[p].append(ins)
        if (C3 & 1) and slot == 0 and not lastld:
            for i, g in enumerate(self.c3pf()): fill[8 + 8 * i].append(g)
        fill[max(pos)].append("@tag kld")
        if lastld: fill[pos[17]].append("@tag x14")
        emit_stream(self.A, mf, fill, [])
    def c3setup(self):
        A = self.A
        A("s_mov_b32 s90, 0")
        for g in range(5):
            A(f"s_bfe_u32 s30, s{32+4*g}, 0x30007\ns_cmp_eq_u32 s30, 3\ns_cselect_b32 s30, {1 << g}, 0\ns_or_b32 s90, s90, s30")
        A("s_lshl_b32 s30, s26, 5\ns_add_u32 s30, s30, 128\ns_lshl_b32 s31, s24, 3\ns_add_u32 s31, s31, s30\nv_add_u32 v29, s31, v1")
        A("v_cmp_gt_u32 vcc, 8, v1\nv_mov_b32 v24, 0x40000")
        A("v_cndmask_b32 v29, v24, v29, vcc\nv_mul_u32_u24 v30, 7168, v29\nv_mul_u32_u24 v29, 6144, v29")
        if self.typ == "KV":
            A("s_and_b32 s31, s24, 1\ns_lshl_b32 s3, s29, 1\ns_add_u32 s31, s31, s3\ns_lshl_b32 s31, s31, 4\ns_lshr_b32 s31, s31, 1\ns_add_u32 s31, s31, s30")
            A("v_add_u32 v31, s31, v1\nv_cndmask_b32 v31, v24, v31, vcc\nv_mul_u32_u24 v31, 7168, v31")
    def c3pf(self):
        out = []
        for g in range(5):
            q = (g == 2) if self.typ == "Q" else (g < 2)
            v = 31 if (self.typ == "KV" and g == 4) else (29 if q else 30)
            l = newlab("q")
            out.append(Unc([f"s_bitcmp0_b32 s90, {g}", f"s_cbranch_scc1 {l}",
                            f"buffer_load_dword v24, v{v}, s[{32+4*g}:{35+4*g}], s{72 if q else 74} offen {F_W1}", f"{l}:"]))
        return out
    def stage0(self):
        units = [(nb, 0) for nb in range(20)] + [(0, 1), (1, 1)]
        mf, fill = [], []
        for u in range(20):
            f = [[] for _ in range(8)]
            rd = self.reads((u + 2) % 4, *units[u + 2])
            if u == 18:
                f[1] += ["@wv wp", "s_waitcnt lgkmcnt(0)", "s_barrier"]
                for i, j in enumerate((2, 3, 4, 5)): f[j].append(rd[i])
            else:
                for i, j in enumerate((0, 2, 4, 6)): f[j].append(rd[i])
                f[7].append("s_waitcnt lgkmcnt(4)")
            mf += self.mfmas(u % 4, *units[u], first=True); fill += f
        for i, (pre, ins) in enumerate(self.wloads(3, F_W1)):
            p = 3 + 6 * i
            fill[p - 1].append(pre); fill[p].append(ins)
        fill[61] += self.adv()[:4]
        ps, pc = int(opt("f0s", "63")), int(opt("f0c", "93"))
        fill[ps] += ["global_load_dword v25, v31, s[22:23] sc1", "@tag fs"]
        p, d = newlab("p"), newlab("d")
        chk = ["v_cmp_ne_u32 vcc, s90, v25", "s_cmp_eq_u64 vcc, 0", f"s_cbranch_scc1 {d}"]
        fill[pc] += ["@wv fs", Unc(chk + [f"s_mov_b32 s31, {SPIN}", f"{p}:", "global_load_dword v25, v31, s[22:23] sc1", "s_waitcnt vmcnt(0)"] + chk +
                                   ["s_sleep 2", "s_sub_u32 s31, s31, 1", "s_cmp_lg_u32 s31, 0", f"s_cbranch_scc1 {p}", f"{d}:"])]
        st = (158 - pc - 2) // 16
        for i, (_, ins) in enumerate(self.xloads(1) + self.xloads(2)):
            q = pc + 2 + (2 * i if i < 8 else 16 + (i - 8) * ((158 - pc - 20) // 8))
            fill[q].append(ins)
            if i in (7, 15): fill[q] += (["@tag x1"] if i == 7 else []) + ["s_add_u32 s76, s76, 8192"]
        fill[159].append("@wv x1")
        emit_stream(self.A, mf, fill, [])
    def fast_start(self):
        A = self.A; t = self.typ
        def issue(L):
            for pre, ins in L:
                if pre: A(pre)
                A(ins)
        R, U, ST = 128, 160, 224
        A("s_mul_i32 s30, s26, 24\ns_mul_i32 s31, s24, 6\ns_add_u32 s31, s31, s30\nv_add_u32 v24, s31, v1")
        A("v_mul_u32_u24 v25, 6144, v24\nv_mul_u32_u24 v24, 7168, v24")
        if t == "KV":
            A("s_and_b32 s31, s24, 1\ns_mul_i32 s31, s31, 12\ns_add_u32 s31, s31, s30\nv_add_u32 v26, s31, v1\nv_mul_u32_u24 v26, 7168, v26")
            A("s_mov_b64 exec, 0xfff")
            A(f"buffer_load_dword v123, v26, s[48:51], 0 offen {F_W1P}")
        A("s_mov_b64 exec, 63")
        for grp in range(5 if t == "Q" else 4):
            q = (grp == 2) if t == "Q" else (grp < 2)
            A(f"buffer_load_dword v123, v{25 if q else 24}, s[{32+4*grp}:{35+4*grp}], 0 offen {F_W1P}")
        A("s_mov_b64 exec, -1")
        raw = [(f"s_add_u32 m0, s3, {24576 + i*1024}\ns_add_u32 s30, s31, {i*16384}",
                f"buffer_load_dwordx4 v127, s[96:99], s30 offen lds" + ("\n@tag raw" if i == 7 else "")) for i in range(8)]
        A("s_lshl_b32 s3, s24, 15\ns_lshl_b32 s31, s26, 2\ns_add_u32 s31, s31, s24\ns_lshl_b32 s31, s31, 17")
        srd(A, 96, 4, 0, 2048 * 2048)
        RE = 8
        issue(raw[:RE])
        A("s_lshl_b32 s10, s26, 5\ns_add_u32 s10, s20, s10\ns_addc_u32 s11, s21, 0")
        A("s_lshl_b32 s30, s26, 5\nv_mov_b32 v30, s30")
        A(f"s_waitcnt vmcnt({5 + RE})")
        stamp(A, 1)
        A("s_load_dword s90, s[10:11], 0")
        def publish(S, Vv):
            p, d = newlab("p"), newlab("d")
            A(f"v_bfi_b32 v{Vv+2}, s3, v{S}, v{Vv}")
            A(f"s_waitcnt lgkmcnt(0)\ns_cmp_lg_u32 s90, 0\ns_cbranch_scc1 {d}")
            emit_sync(A, spin(30, 20, 1, 123) + ["s_mov_b32 s90, s30", f"{d}:"])
            A(f"v_mov_b32 v{Vv+3}, s90\ns_mov_b32 s30, 1\ns_mov_b32 s31, 1\ns_mov_b64 exec, s[30:31]")
            A(f"global_store_dwordx2 v20, v[{Vv+2}:{Vv+3}], s[22:23] {SC}\ns_mov_b64 exec, -1")
            stamp(A, 10)
        def nxt(L): return [("\n".join(self.adv()[:4] + [L[0][0]]), L[0][1])] + L[1:]
        rest = raw[RE:] + self.wloads(0, F_W1P) + nxt(self.wloads(1, F_W1P)) + nxt(self.wloads(2, F_W1P))
        n1, n2 = int(opt("fn1", "10")), int(opt("fn2", "6"))
        assert n1 + n2 <= 20
        inj = Inject(A, rest[:n1], 9, skip=104)
        ln_part(inj, publish)
        assert not inj.L
        for j in range(4):
            A(f"ds_write_b128 v22, v[{64+4*j}:{67+4*j}] offset:{16384 + (j%2)*4096 + (j//2)*32768}")
        A("s_waitcnt lgkmcnt(0)\ns_barrier")
        for j in range(4):
            A(f"ds_read_b128 v[{64+4*j}:{67+4*j}], v21 offset:{16384 + j*1024}")
        for j in range(4):
            A(f"s_waitcnt lgkmcnt({3-j})")
            A(f"global_store_dwordx4 v23, v[{64+4*j}:{67+4*j}], s[22:23] {SC}")
            if j < 3: A("v_add_u32 v23, 0x2000, v23")
        stamp(A, 2)
        A("@wv raw")
        for f in range(8):
            A(f"ds_read_b128 v[{R+4*f}:{R+4*f+3}], v{126 if f < 4 else 124} offset:{24576 + (f % 4) * 2048}")
        A("s_waitcnt lgkmcnt(0)")
        inj = Inject(A, rest[n1:n1+n2], 8)
        for i in range(32):
            inj(f"v_lshlrev_b32 v{U+2*i}, 16, v{R+i}\nv_and_b32 v{U+2*i+1}, s3, v{R+i}")
        assert not inj.L
        if CPF:
            l = newlab("c")
            A(f"s_getpc_b64 s[10:11]\n{l}:\ns_sub_u32 s10, s10, {l}-{NAME}_kernel\ns_subb_u32 s11, s11, 0")
            A("s_lshr_b32 s30, s2, 3\ns_lshl_b32 s30, s30, 2\ns_add_u32 s30, s30, s24\ns_lshl_b32 s30, s30, 10")
            A(f"s_min_u32 s30, s30, L_end-{NAME}_kernel-1024\nv_add_u32 v28, s30, v2")
            A("v_mov_b32 v29, s11\nv_add_co_u32 v28, vcc, s10, v28\nv_addc_co_u32 v29, vcc, 0, v29, vcc")
        A("s_mov_b32 s80, 3\ns_mov_b32 s76, 8192")
        if int(opt("fsl", "0")): A(f"s_sleep {opt('fsl')}")
        p, d = newlab("p"), newlab("d")
        A(f"s_mov_b32 s31, {SPIN}\n{p}:")
        n = A.nvm
        for mb in range(4):
            A(f"global_load_dwordx2 v[{ST+2*mb}:{ST+2*mb+1}], v125, s[22:23] offset:{mb*128} sc1")
        A.nvm = n
        A("s_waitcnt vmcnt(0)")
        A(f"v_xor_b32 v24, s90, v{ST+1}\nv_xor_b32 v25, s90, v{ST+3}\nv_xor_b32 v26, s90, v{ST+5}\nv_xor_b32 v27, s90, v{ST+7}")
        A("v_or3_b32 v24, v24, v25, v26\nv_or_b32 v24, v24, v27\nv_cmp_ne_u32 vcc, 0, v24\ns_cmp_eq_u64 vcc, 0")
        A(f"s_cbranch_scc1 {d}\ns_sleep 1\ns_sub_u32 s31, s31, 1\ns_cmp_lg_u32 s31, 0\ns_cbranch_scc1 {p}\n{d}:")
        stamp(A, 4)
        A("s_barrier")
        l = newlab("a")
        emit_sync(A, ["s_cmp_lg_u32 s24, 0", f"s_cbranch_scc1 {l}", "s_lshl_b32 s30, s27, 3", "s_add_u32 s30, s30, s25",
                      "s_lshl_b64 exec, 1, s30", "v_mov_b32 v25, s90", f"global_store_dword v31, v25, s[22:23] {SC}", "s_mov_b64 exec, -1", f"{l}:"])
        stamp(A, 3)
        for u in range(2):
            for r in self.reads(u, u, 0): A(r)
        inj = Inject(A, rest[n1+n2:], 240 // max(1, len(rest) - n1 - n2))
        for mb in range(4):
            m, r = ST + 8 + 4 * mb, ST + 10 + 4 * mb
            inj(f"v_lshlrev_b32 v{r}, 16, v{ST+2*mb}\nv_and_b32 v{m}, s3, v{ST+2*mb}\nv_rcp_f32 v{r}, v{r}\nv_mov_b32 v{m+1}, v{m}\nv_mov_b32 v{r+1}, v{r}")
        for f in range(8):
            mb = f % 4; m, r = ST + 8 + 4 * mb, ST + 10 + 4 * mb
            P = lambda x: f"v[{x}:{x+1}]"
            a = [U + 8 * f + 2 * i for i in range(4)]
            for x in a: inj(f"v_pk_add_f32 {P(x)}, {P(x)}, {P(m)}")
            for x in a: inj(f"v_cvt_pk_bf16_f32 v{x+1}, v{x}, v{x+1}")
            for x in a: inj(f"v_lshlrev_b32 v{x}, 16, v{x+1}\nv_and_b32 v{x+1}, s3, v{x+1}")
            for x in a: inj(f"v_pk_mul_f32 {P(x)}, {P(x)}, {P(r)}")
            for x in a: inj(f"v_cvt_pk_bf16_f32 v{x}, v{x}, v{x+1}")
            for i, x in enumerate(a): inj(f"v_accvgpr_write_b32 a{128+4*f+i}, v{x}")
        assert not inj.L
        A("@tag wp")
        for a in self.adv()[:4]: A(a)
        A("s_waitcnt lgkmcnt(4)")
        stamp(A, 5)
        self.stage0()
        A(f"s_branch L1{t}_s1")
    def phi(self, r, d0):
        it = [f"v_mul_f32 v{20+i}, s86, v{r+i}" for i in range(4)]
        for i in range(4):
            it += [f"v_exp_f32_e64 v{20+i}, v{20+i} clamp", f"v_max_f32 v{r+i}, s88, v{r+i}"]
        it += [f"v_add_f32 v{r+i}, v{r+i}, v{20+i}" for i in range(4)]
        it += [f"v_cvt_pk_bf16_f32 v{d0}, v{r}, v{r+1}", f"v_cvt_pk_bf16_f32 v{d0+1}, v{r+2}, v{r+3}"]
        return it
    def store_act(self, d, mb, ks, imm_k, fl):
        return f"buffer_store_dwordx4 v[{d}:{d+3}], v{2 if mb < 2 else 31 if False else 3}, s[56:59], s{ks} offen offset:{imm_k*2048 + (mb&1)*1024} {fl}"
    def gu(self, gb, ub, pos, pk=False):
        it = [f"s_add_u32 s84, s83, {pos*8192}"]
        if pk: it += ["v_mov_b32 v36, s87", "v_mov_b32 v37, s87", "v_mov_b32 v38, 1.0", "v_mov_b32 v39, 1.0"]
        P = lambda r: f"v[{r}:{r+1}]"
        for mb in range(4):
            d = self.q(gb, mb)
            for p in range(2):
                g = self.q(gb + p, mb); fu, u = self.acc[(ub + p, mb)]
                rd = [[f"v_accvgpr_read_b32 v{24+i}, a{u+i}"] if fu == "a" else [] for i in range(4)]
                if fu == "a": u = 24
                if pk: it += [f"v_pk_mul_f32 {P(20+i)}, {P(g+i)}, {P(36)}" for i in (0, 2)]
                else: it += [f"v_mul_f32 v{20+i}, s87, v{g+i}" for i in range(4)]
                for i in range(4):
                    it += [f"v_exp_f32 v{20+i}, v{20+i}"] + rd[i]
                if pk:
                    it += [f"v_pk_mul_f32 {P(g+i)}, {P(g+i)}, {P(u+i)}" for i in (0, 2)]
                    it += [f"v_pk_add_f32 {P(20+i)}, {P(20+i)}, {P(38)}" for i in (0, 2)]
                    it += [f"v_rcp_f32 v{20+i}, v{20+i}" for i in range(4)]
                    it += [f"v_pk_mul_f32 {P(g+i)}, {P(g+i)}, {P(20+i)}" for i in (0, 2)]
                else:
                    it += [f"v_add_f32 v{20+i}, 1.0, v{20+i}" for i in range(4)]
                    for i in range(4):
                        it += [f"v_rcp_f32 v{20+i}, v{20+i}", f"v_mul_f32 v{g+i}, v{g+i}, v{u+i}"]
                    it += [f"v_mul_f32 v{g+i}, v{g+i}, v{20+i}" for i in range(4)]
                it += [f"v_cvt_pk_bf16_f32 v{d+2*p}, v{g}, v{g+1}", f"v_cvt_pk_bf16_f32 v{d+2*p+1}, v{g+2}, v{g+3}"]
            it.append(self.store_act(d, mb, 84, 0, F_HST))
        return it
    def gub(self, gb, ub, pos, U):
        it = [f"s_add_u32 s84, s83, {pos*8192}"]
        P = lambda r: f"v[{r}:{r+1}]"
        T = list(range(20, 28)); carry = []; tailq = []
        for mb in range(4):
            g = [self.q(gb + p, mb) + i for p in range(2) for i in range(4)]
            src = [(self.acc[(ub + p, mb)][0], self.acc[(ub + p, mb)][1] + i) for p in range(2) for i in range(4)]
            u = [U[i // 4] + i % 4 if f == "a" else r for i, (f, r) in enumerate(src)]
            it.append(carry + [f"v_pk_mul_f32 {P(T[i])}, {P(g[i])}, s[86:87] op_sel:[0,1] op_sel_hi:[1,1]" for i in range(0, 8, 2)])
            ex = []
            for i in range(8):
                ex.append(f"v_exp_f32 v{T[i]}, v{T[i]}")
                if src[i][0] == "a": ex.append(f"v_accvgpr_read_b32 v{u[i]}, a{src[i][1]}")
            it += tailq + ex
            it.append([f"v_pk_mul_f32 {P(g[i])}, {P(g[i])}, {P(u[i])}" for i in range(0, 8, 2)] +
                      [f"v_pk_add_f32 {P(T[i])}, {P(T[i])}, s[52:53]" for i in range(0, 8, 2)])
            it += [f"v_rcp_f32 v{T[i]}, v{T[i]}" for i in range(8)]
            carry = [f"v_pk_mul_f32 {P(g[i])}, {P(g[i])}, {P(T[i])}" for i in range(0, 8, 2)]
            d = g[0]
            tailq = [f"v_cvt_pk_bf16_f32 v{d+i}, v{g[2*i]}, v{g[2*i+1]}" for i in range(4)] + [self.store_act(d, mb, 84, 0, F_HST)]
        return it + [carry] + tailq
    def phib(self, pairs):
        P = lambda r: f"v[{r}:{r+1}]"
        it = []; carry = []; tailq = []
        for k in range(0, len(pairs), 2):
            r = [pairs[k + p][0] + i for p in range(2) for i in range(4)]
            it.append(carry + [f"v_pk_mul_f32 {P(20+i)}, {P(r[i])}, s[86:87] op_sel:[0,0] op_sel_hi:[1,0]" for i in range(0, 8, 2)])
            it += tailq
            for i in range(8):
                it += [f"v_exp_f32_e64 v{20+i}, v{20+i} clamp", f"v_max_f32 v{r[i]}, s88, v{r[i]}"]
            carry = [f"v_pk_add_f32 {P(r[i])}, {P(r[i])}, {P(20+i)}" for i in range(0, 8, 2)]
            tailq = [f"v_cvt_pk_bf16_f32 v{pairs[k+p][1]+j}, v{r[4*p+2*j]}, v{r[4*p+2*j+1]}" for p in range(2) for j in range(2)]
        return it + [carry] + tailq
    def tail_units(self):
        if self.typ == "KV":
            nbs = [0,1,2,3, 4,5,6,7, 8,9,12,13, 10,11,14,15, 16,17,18,19]
        else:
            nbs = [0,1,4,5, 2,3,6,7, 8,9,10,11, 12,13,16,17, 14,15,18,19]
        return [(nb, s) for nb in nbs[:4] for s in (1, 2)] + [(nb, 3) for nb in nbs[:4]] + [(nb, s) for nb in nbs[4:] for s in (1, 2, 3)]
    def tail(self, batches):
        units = self.tail_units()
        mf, fill = [], []
        for u in range(60):
            f = [[] for _ in range(8)]
            if u == 5: f[7] += ["@wv kld", "s_barrier"]
            if u + 2 < 60:
                rd = self.reads((u + 2) % 4, *units[u + 2])
                for i, j in enumerate((0, 2, 4, 6)): f[j].append(rd[i])
                f[6].append(f"@tag t{u+2}")
            if u + 1 < 60: f[7].append(f"@wl t{u+1}")
            if STAMPS and opt("tailst") and u % 6 == 5:
                f[7] += ["s_memtime s[100:101]" if opt("cyc") else "s_memrealtime s[100:101]", "s_waitcnt lgkmcnt(0)", f"v_writelane_b32 v0, s100, {16 + u // 6}"]
            mf += self.mfmas(u % 4, *units[u]); fill += f
        emit_stream(self.A, mf, fill, batches)
    def batches_kv(self):
        B = []
        def ph(db):
            pr = [(self.q(db, mb), self.q(db, mb & 2) + 2 * (mb & 1)) for mb in range(4)]
            return self.phib(pr) if PKB else sum([self.phi(*x) for x in pr], [])
        def vp(eb):
            it = []
            for mb in range(4):
                f, r = self.acc[(4 + eb, mb)]
                d = self.q(eb, (mb & 2) + 1) + 2 * (mb & 1)
                if f == "a":
                    it += [f"v_accvgpr_read_b32 v{24+i}, a{r+i}" for i in range(4)]; r = 24
                it += [f"v_cvt_pk_bf16_f32 v{d}, v{r}, v{r+1}", f"v_cvt_pk_bf16_f32 v{d+1}, v{r+2}, v{r+3}"]
            return it
        pre = [f"v_mov_b32 v{28+i}, 0x3f803f80" for i in range(4)]
        pre += [["s_lshl_b32 s30, s24, 15", "v_add_u32 v16, s30, v2"],
                "v_lshrrev_b32 v19, 4, v1", "v_lshlrev_b32 v19, 4, v19",
                ["s_lshl_b32 s30, s24, 8", "s_add_u32 s30, s30, 0x20000", "v_add_u32 v17, s30, v19"],
                ["s_lshl_b32 s30, s24, 11", "v_add_u32 v18, s30, v2"],
                ["s_lshl_b32 s30, s24, 6", "v_add_u32 v19, s30, v19"]]
        B.append((0, 24, pre + ["s_mov_b32 s52, 1.0", "s_mov_b32 s53, 1.0"]))
        B.append((50, 78, K2.xaddr(24, 25) + K2.xres(24, 25)))
        B += [(78, 104, ph(0)), (104, 130, ph(1)), (130, 156, ph(2)), (156, 162, vp(0)), (162, 186, ph(3)),
              (186, 191, vp(1)), (191, 196, vp(2)), (198, 204, vp(3))]
        Z = 32
        it = []
        for sg in range(2):
            for hd in range(2):
                for db in range(2):
                    pk = self.q(hd * 2 + db, 2 * sg)
                    for eb in range(2):
                        vv = self.q(hd * 2 + eb, 2 * sg + 1)
                        d = ((hd * 2 + eb) * 2 + db) * 4
                        it.append(f"v_mfma_f32_16x16x32_bf16 a[{d}:{d+3}], v[{pk}:{pk+3}], v[{vv}:{vv+3}], {'0' if sg == 0 else f'a[{d}:{d+3}]'}")
                    d = Z + (hd * 2 + db) * 4
                    it.append(f"v_mfma_f32_16x16x32_bf16 a[{d}:{d+3}], v[{pk}:{pk+3}], v[28:31], {'0' if sg == 0 else f'a[{d}:{d+3}]'}")
        B.append((205, 215, it))
        it = [f"ds_write_b128 v16, a[{q*4}:{3+q*4}] offset:{q*1024}" for q in range(8)]
        it.append(["s_mov_b32 s30, 0x00010001", "s_mov_b32 s31, 0x00010001", "s_mov_b64 exec, s[30:31]"] +
                  [f"ds_write_b128 v17, a[{Z+q*4}:{Z+q*4+3}] offset:{q*64}" for q in range(4)] + ["s_mov_b64 exec, -1", "@tag kvw"])
        B.append((219, 225, it))
        it = [["@wl kvw", "s_barrier"], "v_add_u32 v16, 0x10000, v18", "v_add_u32 v17, 0x20000, v19"]
        for w in range(4):
            va = 18 if w < 2 else 16
            it.append(f"ds_read_b128 v[{64+w*12}:{67+w*12}], v{va} offset:{(w%2)*32768}")
            it.append(f"ds_read_b128 v[{68+w*12}:{71+w*12}], v{va} offset:{(w%2)*32768+1024}")
            it.append(f"ds_read_b128 v[{72+w*12}:{75+w*12}], v17 offset:{w*256}")
        it.append("@tag kvr")
        B.append((230, 237, it))
        it = ["@wl kvr"]
        for i in range(12):
            it += [f"v_add_f32 v{64+i}, v{64+i}, v{76+i}", f"v_add_f32 v{88+i}, v{88+i}, v{100+i}"]
        it += [f"v_add_f32 v{64+i}, v{64+i}, v{88+i}" for i in range(12)]
        it += [f"s_mul_i32 s10, s26, {KVP_STRIDE}", "s_add_u32 s11, s10, 8192",
               f"buffer_store_dwordx4 v[64:67], v18, s[60:63], s10 offen {SC}",
               f"buffer_store_dwordx4 v[68:71], v18, s[60:63], s10 offen offset:1024 {SC}",
               ["s_mov_b32 s30, 0x00010001", "s_mov_b32 s31, 0x00010001", "s_mov_b64 exec, s[30:31]",
                f"buffer_store_dwordx4 v[72:75], v19, s[60:63], s11 offen {SC}", "s_mov_b64 exec, -1", "@tag kvs"]]
        B.append((243, 254, it))
        g0 = self.gub(8, 12, 4, (112, 116)) if PKB else self.gu(8, 12, 4)
        k = len(g0) // 3
        pub = [["@wv kvs", "s_barrier"], "v_mov_b32 v16, s89", Unc(signal(16, 20, 17))]
        B.append((256, 286, self.k2.setup_early() + self.k2.c3pf(29)))
        smp, chk = self.hA()
        xf = self.k2.xfirst()
        fa, fb = float(opt("ka", "0.2")), float(opt("kb", "0.5"))
        k = int(len(g0) * fa)
        g0 = g0 + ["@tag hA"]
        B.append((294, 384, smp + g0[:k] + pub + merge(g0[k:], self.k2.wfirst(), 0, 0.95)))
        g1 = self.gub(10, 14, 6, (112, 116)) if PKB else self.gu(10, 14, 6)
        B.append((390, 480, merge(self.h1mix(g1, 768, f=fb), chk + xf, 0.0, 0.9)))
        self.last = self.gu(16, 18, 8, pk=True)
        self.lastld = []
        return B
    def hA(self):
        return ([["global_load_dword v29, v30, s[22:23] sc1", "@tag h1s"]],
                ["@wv h1s", Unc(spin(30, 22, 16, 29, True, sleep=4))])
    def h1mix(self, g, off, after=(), f=0.3, f1=1.0):
        k = int(len(g) * f)
        pub = [["@wv hA", "s_barrier"], Unc(signal(30, 22, 31, off))]
        return g[:k] + pub + merge(g[k:], after, 0, f1)
    def pquads(self):
        return [self.q(nb, mb) for nb in (0, 1, 2, 3) for mb in range(4)] + [self.q(nb, mb) for nb in (9, 11) for mb in range(4)]
    def batches_q(self):
        B = []
        def ph(nb):
            pr = [(self.q(8 + nb, mb), self.q(8 + (nb & 2), mb) + 2 * (nb & 1)) for mb in range(4)]
            return self.phib(pr) if PKB else sum([self.phi(*x) for x in pr], [])
        pre = ["v_mov_b32 v16, s89",
               "v_lshrrev_b32 v19, 4, v1", "v_lshlrev_b32 v19, 4, v19",
               ["s_lshl_b32 s30, s24, 11", "v_add_u32 v18, s30, v2"],
               ["s_lshl_b32 s30, s24, 6", "s_add_u32 s30, s30, 8192", "v_add_u32 v19, s30, v19"]]
        B.append((0, 24, pre + ["s_mov_b32 s52, 1.0", "s_mov_b32 s53, 1.0"]))
        B.append((50, 78, K2.xaddr(24, 25) + K2.xres(24, 25)))
        B.append((78, 102, self.k2.setup_early() + self.k2.c3pf(29)))
        B.append((102, 192, merge(self.gu(0, 4, 0), self.k2.l2pf(), 0, 0.8) + ["@tag hA"]))
        qa, qb, qc = float(opt("qa", "0.5")), float(opt("qb", "0.5")), float(opt("qc", "0.45"))
        wf = self.k2.wfirst()
        g1 = (self.gub(2, 6, 2, (self.q(1, 0), self.q(1, 1))) if PKB else self.gu(2, 6, 2))
        B.append((198, 288, self.h1mix(g1, 0, wf[:9], f=qa, f1=0.95) + ["@tag hA"]))
        smp, chk = self.hA()
        phq = ph(0) + ph(1) + ph(2) + ph(3)
        b = merge(self.h1mix(phq, 1024, f=qb), wf[9:] + smp, 0, qc - 0.2)
        xf = self.k2.xfirst()
        B.append((294, 388, merge(b, chk + xf[:int(opt("qx", "19"))], qc + 0.1, 1.0)))
        self.xrest = xf[int(opt("qx", "19")):]
        P = self.pquads()
        ld = []
        for p in range(8):
            ld.append([f"s_mov_b32 s10, {p*KVP_STRIDE}",
                       f"buffer_load_dwordx4 v[{P[3*p]}:{P[3*p]+3}], v18, s[60:63], s10 offen sc1"])
            ld.append(f"buffer_load_dwordx4 v[{P[3*p+1]}:{P[3*p+1]+3}], v18, s[60:63], s10 offen offset:1024 sc1")
            ld.append(f"buffer_load_dwordx4 v[{P[3*p+2]}:{P[3*p+2]+3}], v19, s[60:63], s10 offen sc1")
        ld.append("@tag kvl")
        chk = ["@wv kvp", Unc(spin(16, 20, 8, 17, True))]
        smp = ["global_load_dword v17, v16, s[20:21] sc1", "@tag kvp"]
        g2 = self.gu(12, 16, 10)
        f = float(opt("kvk", "0.3"))
        k0, k = int(len(g2) * (f - 0.25)), int(len(g2) * f)
        nl = int(opt("kvn", "25"))
        B.append((390, 480, g2[:k0] + smp + merge(g2[k0:k], self.xrest) + chk + merge(g2[k:], ld[:nl], 0, float(opt('kve', '0.7')))))
        self.lastld = ld[nl:]
        self.last = self.gu(14, 18, 12, pk=True)
        return B
    def opath1(self):
        P = self.pquads()
        it = ["@wv kvl"]
        for st in (4, 2, 1):
            for p in range(st):
                for j in range(3):
                    for i in (0, 2):
                        a, b = P[3 * p + j] + i, P[3 * (p + st) + j] + i
                        it.append(f"v_pk_add_f32 v[{a}:{a+1}], v[{a}:{a+1}], v[{b}:{b+1}]")
        for j in range(3):
            it += [f"v_cvt_pk_bf16_f32 v{40+2*j}, v{P[j]}, v{P[j]+1}", f"v_cvt_pk_bf16_f32 v{41+2*j}, v{P[j]+2}, v{P[j]+3}"]
        it += [["s_lshl_b32 s30, s24, 10", "s_add_u32 s30, s30, 0x20000", "v_add_u32 v18, s30, v2"], "ds_write_b128 v18, v[40:43]",
               ["s_lshr_b32 s30, s24, 1", "s_lshl_b32 s30, s30, 10", "s_and_b32 s31, s24, 1", "s_lshl_b32 s31, s31, 3",
                "s_add_u32 s30, s30, s31", "s_add_u32 s30, s30, 0x21000", "v_add_u32 v19, s30, v2"], "ds_write_b64 v19, v[44:45]",
               "v_add_u32 v18, 0x20000, v2"]
        return it
    def opath2(self):
        rd = [["s_waitcnt lgkmcnt(0)", "s_barrier"]] + [f"ds_read_b128 v[{40+i*4}:{43+i*4}], v18 offset:{i*1024}" for i in range(6)]
        den = lambda t: self.q(8 + 2 * (t // 4) + 1, t % 4)
        mm = ["s_waitcnt lgkmcnt(0)"]
        for t in range(8):
            pq = self.q(8 + 2 * (t // 4), t % 4); zf = 56 + (t // 4) * 4
            mm.append(f"v_mfma_f32_16x16x32_bf16 v[{den(t)}:{den(t)+3}], v[{zf}:{zf+3}], v[{pq}:{pq+3}], 0")
        side = [f"v_add_f32 v{den(t)}, s88, v{den(t)}" for t in range(8)] + [f"v_rcp_f32 v{den(t)}, v{den(t)}" for t in range(8)]
        side += [f"v_mov_b32 v{den(t)+1}, v{den(t)}" for t in range(8)]
        for t in range(8):
            pq = self.q(8 + 2 * (t // 4), t % 4); d = 64 + t * 8
            for eb in range(2):
                kf = 40 + ((t // 4) * 2 + eb) * 4
                mm.append(f"v_mfma_f32_16x16x32_bf16 v[{d+eb*4}:{d+eb*4+3}], v[{kf}:{kf+3}], v[{pq}:{pq+3}], 0")
                if t > 0:
                    for _ in range(2):
                        if side: mm.append(side.pop(0))
        mm += side
        fin = []
        for t in range(8):
            d = 64 + t * 8
            fin += [f"v_pk_mul_f32 v[{d+i}:{d+i+1}], v[{d+i}:{d+i+1}], v[{den(t)}:{den(t)+1}]" for i in range(0, 8, 2)]
            fin += [f"v_cvt_pk_bf16_f32 v{d+i}, v{d+2*i}, v{d+2*i+1}" for i in range(4)]
            if ODEF: self.k2.ostores.append(self.store_act(d, t % 4, 85, t // 4, F_HST))
            else: fin.append(self.store_act(d, t % 4, 85, t // 4, F_HST))
        return rd, mm, fin
    def body(self, k2):
        A = self.A; t = self.typ; self.k2 = k2
        def issue(L):
            for pre, ins in L:
                if pre: A(pre)
                A(ins)
        if FAST: self.fast_start()
        else:
            A("s_lshl_b32 s30, s26, 5\nv_mov_b32 v30, s30")
            if NSY:
                l = newlab("m")
                A(f"s_or_b32 s30, s25, s27\ns_xor_b32 s31, s24, 3\ns_or_b32 s30, s30, s31\ns_cmp_lg_u32 s30, 0\ns_cbranch_scc1 {l}")
                emit_sync(A, ["s_waitcnt vmcnt(4)", "v_mov_b32 v25, 1", "s_mov_b64 exec, 1", f"global_store_dword v30, v25, s[20:21] {SC}", "s_mov_b64 exec, -1", f"{l}:"])
            if int(opt("wpf", "0")):
                A("s_lshl_b32 s30, s26, 4\ns_lshl_b32 s31, s24, 2\ns_add_u32 s31, s31, s30\ns_add_u32 s31, s31, 64\nv_add_u32 v24, s31, v1")
                A("v_mul_u32_u24 v25, 6144, v24\nv_mul_u32_u24 v24, 7168, v24")
                if t == "KV":
                    A("s_and_b32 s31, s24, 1\ns_lshl_b32 s31, s31, 3\ns_add_u32 s31, s31, s30\ns_add_u32 s31, s31, 64\nv_add_u32 v26, s31, v1\nv_mul_u32_u24 v26, 7168, v26")
                    A("s_mov_b64 exec, 0xff")
                    A(f"buffer_load_dword v124, v26, s[48:51], 0 offen {F_W1P}")
                A("s_mov_b64 exec, 15")
                for grp in range(5 if t == "Q" else 4):
                    q = (grp == 2) if t == "Q" else (grp < 2)
                    A(f"buffer_load_dword v124, v{25 if q else 24}, s[{32+4*grp}:{35+4*grp}], 0 offen {F_W1P}")
                A("s_mov_b64 exec, -1")
            issue(self.wloads(0, F_W1P))
            for a in self.adv()[:4]: A(a)
            if W1E:
                issue(self.wloads(1, F_W1P))
                for a in self.adv()[:4]: A(a)
            A("s_waitcnt vmcnt(%d)" % (15 if int(opt("wpf", "0")) else 10))
            stamp(A, 1)
            inj = Inject(A, self.wloads(1, F_W1P)[:W1J], 10, skip=int(opt("w1s", "110")))
            ln_part(inj)
            assert not inj.L
            if NSY: A("global_load_dword v29, v30, s[20:21] sc1")
            for j in range(4):
                A(f"ds_write_b128 v22, v[{64+4*j}:{67+4*j}] offset:{24576 + (j%2)*4096 + (j//2)*32768}")
            A("s_waitcnt lgkmcnt(0)\ns_barrier")
            for j in range(4):
                A(f"ds_read_b128 v[{64+4*j}:{67+4*j}], v21 offset:{24576 + j*1024}")
            for j in range(4):
                A(f"s_waitcnt lgkmcnt({3-j})")
                A(f"global_store_dwordx4 v23, v[{64+4*j}:{67+4*j}], s[22:23] {SC}")
                if j < 3: A("v_add_u32 v23, 0x2000, v23")
            stamp(A, 2)
            zero = []
            for (nb, mb), (f, r) in self.acc.items():
                for i in range(4):
                    zero.append(f"v_accvgpr_write_b32 a{r+i}, 0" if f == "a" else f"v_mov_b32 v{r+i}, 0")
            zero.reverse()
            A("@tag xns")
            w2 = self.wloads(2, F_W1P)
            rest = self.wloads(1, F_W1P)[W1J:] + [("\n".join(self.adv()[:4] + [w2[0][0]]), w2[0][1])] + w2[1:]
            W1K = int(opt("w1k", "6"))
            inj = Inject(A, rest[:W1K], 6)
            for z in zero[:64]: inj(z)
            assert not inj.L
            A("@wv xns\ns_barrier")
            if NSY:
                l = newlab("a")
                emit_sync(A, ["s_cmp_lg_u32 s24, 0", f"s_cbranch_scc1 {l}"] + spin(30, 20, 1, 29, True) +
                          ["s_lshl_b32 s30, s27, 3", "s_add_u32 s30, s30, s25", "s_lshl_b64 exec, 1, s30", "v_mov_b32 v25, 1",
                           f"global_store_dword v31, v25, s[22:23] {SC}", "s_mov_b64 exec, -1", f"{l}:"])
            else:
                emit_sync(A, signal(30, 20, 25))
            stamp(A, 3)
            inj = Inject(A, rest[W1K:], 8)
            for z in zero[64:]: inj(z)
            assert not inj.L
            for a in self.adv()[:4]: A(a)
            assert not WPOLL and not C3 & 1
            for u in range(2):
                for r in self.reads(u, u, 0): A(r)
            A("s_mov_b32 s80, 3")
            if C3 & 1: self.c3setup()
            if CPF:
                l = newlab("c")
                A(f"s_getpc_b64 s[10:11]\n{l}:\ns_sub_u32 s10, s10, {l}-{NAME}_kernel\ns_subb_u32 s11, s11, 0")
                A("s_lshr_b32 s30, s2, 3\ns_lshl_b32 s30, s30, 2\ns_add_u32 s30, s30, s24\ns_lshl_b32 s30, s30, 10")
                A(f"s_min_u32 s30, s30, L_end-{NAME}_kernel-1024\nv_add_u32 v28, s30, v2")
                A("v_mov_b32 v29, s11\nv_add_co_u32 v28, vcc, s10, v28\nv_addc_co_u32 v29, vcc, 0, v29, vcc")
            if WPOLL:
                emit_sync(A, spin(30, 20, 1, 29, True))
                A(f"v_and_b32 v24, 7, v1\nv_lshlrev_b32 v24, 7, v24\ns_lshl_b32 s30, s26, 12\ns_lshl_b32 s31, s24, 10\ns_add_u32 s30, s30, s31\ns_add_u32 s30, s30, {XFL_OFF}\nv_add_u32 v24, s30, v24")
                p, d = newlab("p"), newlab("d")
                emit_sync(A, [f"s_mov_b32 s31, {SPIN}", f"{p}:", "global_load_dword v25, v24, s[22:23] sc1", "s_waitcnt vmcnt(0)",
                              "v_cmp_ne_u32 vcc, 1, v25", "s_cmp_eq_u64 vcc, 0", f"s_cbranch_scc1 {d}", f"s_sleep {opt('nsl', '2')}",
                              "s_sub_u32 s31, s31, 1", "s_cmp_lg_u32 s31, 0", f"s_cbranch_scc1 {p}", f"{d}:"])
            else:
                l = newlab("w")
                A(f"s_cmp_lg_u32 s24, 0\ns_cbranch_scc1 {l}")
                if NSY:
                    p, d = newlab("p"), newlab("d")
                    emit_sync(A, [f"s_mov_b32 s31, {SPIN}", f"{p}:", "global_load_dword v25, v31, s[22:23] sc1", "s_waitcnt vmcnt(0)",
                                  "v_cmp_ne_u32 vcc, 1, v25", "s_cmp_eq_u64 vcc, 0", f"s_cbranch_scc1 {d}", f"s_sleep {opt('nsl', '2')}",
                                  "s_sub_u32 s31, s31, 1", "s_cmp_lg_u32 s31, 0", f"s_cbranch_scc1 {p}", f"{d}:"])
                else:
                    A("s_waitcnt vmcnt(0)")
                    emit_sync(A, spin(30, 20, 32, 25, sleep=4))
                A(f"{l}:")
                A("s_barrier")
            stamp(A, 4)
            issue(self.xloads(0))
            A("s_add_u32 s76, s76, 8192")
            issue(self.xloads(1))
            A("s_add_u32 s76, s76, 8192")
            A("s_waitcnt vmcnt(8) lgkmcnt(4)")
            stamp(A, 5)
        A.raw(".p2align 6")
        A(f"L1{t}_loop:")
        pw2 = ["buffer_load_dwordx4 v[20:23], v2, s[64:67], s81 offen", "s_add_u32 s81, s81, 0x100000"]
        pwo = ["buffer_load_dwordx4 v[20:23], v2, s[68:71], s82 offen", "s_add_u32 s82, s82, 0x100000"]
        px = ["buffer_load_dwordx4 v[24:27], v2, s[96:99], s94 offen", "s_add_u32 s94, s94, 0x100000"]
        pfs = [[pw2], [pw2], [pw2], [pwo]]
        if opt("nopf"): pfs = [[], [], [], []]
        if CPF: pfs[1].append(["global_load_dwordx4 v[24:27], v[28:29], off"])
        for s in range(4):
            n = (s + 1) % 4
            if s == 1: A(f"L1{t}_s1:")
            self.stage(s, [(0, n), (1, n)], 18 + len(pfs[s]), pf=pfs[s])
        A(f"s_sub_u32 s80, s80, 1\ns_cmp_lg_u32 s80, 0\ns_cbranch_scc1 L1{t}_loop")
        stamp(A, 6)
        self.stage(0, self.tail_units()[:2], 18, lastld=True)
        stamp(A, 7)
        self.tail(self.batches_kv() if t == "KV" else self.batches_q())
        stamp(A, 8)
        last = [["global_load_dword v29, v30, s[22:23] offset:1024 sc1", "@tag h2s"]] + self.last
        if t == "Q":
            n = len(last); rd, mm, fin = self.opath2()
            a, b, c = int(n * float(opt("oa", "0.05"))), int(n * float(opt("ob", "0.2"))), int(n * float(opt("oc", "0.35")))
            st = lambda i: [["s_memtime s[100:101]", "s_waitcnt lgkmcnt(0)", f"v_writelane_b32 v0, s100, {i}"]] if (STAMPS and opt("ost")) else []
            o1 = self.opath1()
            last = (merge(last[:a], self.lastld, 0, 0.6) + st(26) + o1[:1] + st(27) + o1[1:] + st(28) + last[a:b] + rd + st(29) + last[b:c] + mm + st(30) +
                    merge(last[c:], fin))
        for x in last: emit_group(A, x)
        stamp(A, 9)
        k2.setup()
        A(f"s_mov_b32 s51, {int(t == 'Q')}")
        for z in k2.zero(): A(z)
        stamp(A, 11)
        k2.pre()
        A("s_branch L2_start")

class K2:
    def __init__(self, A): self.A = A; self.ostores = []
    def issue(self, L):
        for pre, ins in L:
            if pre: self.A(pre)
            self.A(ins)
    def xfrag(self, slot, k, mb): return slot * 32 + (k * 2 + mb) * 4
    def reads(self, ring, nb, slot, kp):
        out = []
        for k2 in range(2):
            for h in range(2):
                r = 32 + ring * 8 + k2 * 4 + 2 * h
                imm = (slot & 1) * 32768 + (nb >> 2) * 16384 + (kp * 2 + k2) * 4096 + h * 2048
                out.append(f"ds_read_b64_tr_b16 v[{r}:{r+1}], v{4 + (slot >> 1) * 4 + (nb & 3)} offset:{imm}")
        return out
    def mfmas(self, ring, nb, slot, kp, accb):
        out = []
        for mb in range(2):
            for k2 in range(2):
                w = 32 + ring * 8 + k2 * 4; x = self.xfrag(slot, kp * 2 + k2, mb); a = accb + (nb * 2 + mb) * 4
                out.append(f"v_mfma_f32_16x16x32_bf16 v[{a}:{a+3}], v[{w}:{w+3}], a[{x}:{x+3}], v[{a}:{a+3}]")
        return out
    def wloads(self, slot, so=72, ngrp=2):
        L = []
        for j in range(4):
            for grp in range(ngrp):
                d = (32, 44)[grp]
                L.append((f"s_add_u32 m0, s78, {slot*32768 + grp*16384 + j*1024}",
                          f"buffer_load_dwordx4 v28, s[{d}:{d+3}], s{(72, 96, 97, 98)[j]} offen {opt('w2')} lds"))
        return L
    def xloads(self, slot, va=None):
        L = []
        for k in range(4):
            for mb in range(2):
                r = self.xfrag(slot, k, mb)
                L.append((None, f"buffer_load_dwordx4 a[{r}:{r+3}], v2, s[36:39], s{73 if k < 2 else 76} offen offset:{((k&1)*2+mb)*1024} {F_H}"))
        return L
    def loads(self, slot, ngrp):
        d, x = self.wloads(slot, ngrp=ngrp), self.xloads(slot)
        if opt("hk2") == "halfw":
            d = [y for n, y in enumerate(d) if n % 2 == 0]
            return [y for i in range(4) for y in (d[i], x[2*i], x[2*i+1])]
        if opt("hk2") == "halfx": x = [(p, i if n % 2 else i.replace("s[36:39]", "s[64:67]")) for n, (p, i) in enumerate(x)]
        if opt("hk2") == "nox": x = [(p, i.replace("s[36:39]", "s[64:67]")) for n, (p, i) in enumerate(x)]
        if ngrp == 2 and opt("k2c") == "wx": return d + x
        if ngrp == 2 and opt("k2c") == "xw": return x + d
        if ngrp == 2: return [y for p in zip(d, x) for y in p]
        return [y for i in range(4) for y in (d[i], x[2*i], x[2*i+1])]
    ORDER = [0, 4, 1, 5, 8, 12, 9, 13, 10, 11, 2, 6, 3, 7]
    def advx(self):
        if opt("hk2") == "xl2": return ["s_xor_b32 s73, s73, 8192", "s_xor_b32 s76, s76, 8192"]
        return ["s_add_u32 s73, s73, 8192", "s_add_u32 s76, s76, 8192"]
    def woff(self): return [f"s_add_u32 s{95+j}, s72, {j*16384}" for j in (1, 2, 3)]
    def advw(self, perm=True):
        if perm: return ["s_lshr_b64 s[48:49], s[48:49], 4", "s_and_b32 s72, s48, 15", "s_lshl_b32 s72, s72, 16", "s_add_u32 s72, s72, s75"] + self.woff()
        return [f"s_add_u32 s72, s72, {128*2048}"] + self.woff()
    def adv(self, perm=True):
        return ["s_add_u32 s99, s99, 1", "s_add_u32 s73, s73, s66",
                ["s_cmp_eq_u32 s99, 14", "s_cselect_b32 s75, s64, s75", "s_cselect_b32 s73, s65, s73", "s_cselect_b32 s66, s68, s66"],
                "s_add_u32 s76, s73, 4096"] + self.advw(perm)
    def setup_early(self):
        class Rec(list):
            def __call__(self, t): self.extend(t.split("\n"))
        it = ["v_lshrrev_b32 v29, 4, v1", "v_bfe_u32 v28, v1, 1, 2", "v_xor_b32 v28, v28, v29", "v_lshlrev_b32 v28, 5, v28",
              "v_and_b32 v29, 1, v1", "v_lshl_add_u32 v28, v29, 4, v28", "v_lshrrev_b32 v29, 3, v1", "v_lshl_add_u32 v28, v29, 11, v28"]
        def grp(f):
            r = Rec(); f(r); it.append(list(r))
        grp(lambda A: A("s_lshl_b32 s78, s24, 12\ns_and_b32 s79, s94, 0x7ff"))
        grp(lambda A: (A(f"s_sub_u32 s31, {3584*2048}, s79"), srd(A, 32, 16, "s79", "s31")))
        grp(lambda A: (A(f"s_xor_b32 s30, s79, {512 if CMAP else 128}\ns_sub_u32 s31, {3584*2048}, s30"), srd(A, 44, 16, "s30", "s31")))
        grp(lambda A: (A("s_lshr_b32 s30, s95, 3\ns_lshl_b32 s30, s30, 2\ns_add_u32 s30, s30, s24"),
                       A(f"s_mul_i32 s30, s30, {144*2048}\ns_add_u32 s30, s30, {ACT_OFF}"), srd(A, 36, 22, "s30", 144 * 2048)))
        grp(lambda A: (A(f"s_lshl_b32 s30, s95, 16\ns_lshl_b32 s31, s24, 14\ns_add_u32 s30, s30, s31\ns_add_u32 s30, s30, {P_OFF}"),
                       srd(A, 40, 22, "s30", 16384)))
        grp(lambda A: A("s_lshl_b32 s74, s91, 13\ns_xor_b32 s77, s74, 8192"))
        tab = sum(c << (4 * i) for i, c in enumerate(self.ORDER + self.ORDER[:11:-1]))
        grp(lambda A: A(f"s_mov_b32 s48, {tab & 0xffffffff:#x}\ns_mov_b32 s49, {tab >> 32:#x}"))
        grp(lambda A: A(f"s_lshl_b32 s75, s91, 2\ns_add_u32 s75, s75, s24\ns_mul_i32 s75, s75, {14*32*2048}\ns_mov_b32 s72, s75"))
        grp(lambda A: A(f"s_mul_i32 s73, s91, {14*8192}\ns_add_u32 s76, s73, 4096\ns_mov_b32 s80, 3\ns_mov_b32 s50, 32"))
        grp(lambda A: A(f"s_xor_b32 s30, s91, 1\ns_lshl_b32 s64, s30, 2\ns_add_u32 s64, s64, s24\ns_mul_i32 s64, s64, {14*32*2048}"
                        f"\ns_mul_i32 s65, s30, {14*8192}\ns_add_u32 s65, s65, {13*8192}"))
        grp(lambda A: A("s_mov_b32 s66, 8192\ns_mov_b32 s68, -8192\ns_mov_b32 s99, 2"))
        grp(lambda A: A("s_mov_b32 s67, 12" if DYN else f"s_cmp_lt_u32 s25, 4\ns_cselect_b32 s67, {NKV}, {28-NKV}"))
        it.append(self.woff())
        it.append("v_mov_b32 v30, s92")

        return it
    def l2pf(self):
        if not int(opt("l2w", "0")): return []
        it = [["s_bitcmp1_b32 s26, 0", "s_cselect_b32 s64, s44, s32", "s_cselect_b32 s65, s45, s33", "s_cselect_b32 s66, s46, s34"],
              ["s_lshr_b32 s81, s26, 1", "s_lshl_b32 s81, s81, 14", "s_add_u32 s81, s81, s75"]]
        n = int(opt("l2n", "14"))
        for c in reversed(self.ORDER[2:n]):
            it.append([f"s_add_u32 s82, s81, {c << 16}", "buffer_load_dwordx4 a[144:147], v28, s[64:67], s82 offen"])
        return it
    def c3addr(self, tmp):
        return [["s_lshl_b32 s30, s27, 3", "s_add_u32 s30, s30, s26", "s_mul_i32 s30, s30, 14", f"v_min_u32 v{tmp}, 13, v1", f"v_add_u32 v{tmp}, s30, v{tmp}"],
                ["s_lshr_b32 s30, s16, 7", "s_sub_u32 s30, 3, s30", "s_and_b32 s30, s30, 7", "s_lshl_b32 s30, s30, 7", "s_and_b32 s31, s79, 1024",
                 "s_add_u32 s30, s30, s31", "s_add_u32 s30, s30, s75", f"v_lshl_add_u32 v{tmp}, v{tmp}, 11, s30"]]
    def c3pf(self, tmp):
        if not C3 & 2: return []
        return (self.c3addr(tmp) if tmp != 31 else []) + [f"global_load_dword a144, v{tmp}, s[16:17]"]
    def c3wo(self):
        if not C3 & 2: return []
        l = newlab("q")
        return ["s_add_u32 s30, s8, s79", "s_bfe_u32 s30, s30, 0x30007", "s_cmp_lg_u32 s30, 3", f"s_cbranch_scc1 {l}",
                "global_load_dword a144, v18, s[8:9]", f"{l}:"]
    def wfirst(self):
        g = lambda LL: [[pre, "s_nop 0", ins] for pre, ins in LL]
        return g(self.wloads(0)) + [self.advw()] + g(self.wloads(1)) + [self.advw()]
    def xfirst(self):
        return [i for _, i in self.xloads(0)] + ["@tag k20", self.advx()] + [i for _, i in self.xloads(1)] + [self.advx()]
    def setup(self):
        A = self.A
        A("v_lshrrev_b32 v12, 2, v1\nv_bfe_u32 v13, v1, 3, 2\nv_and_b32 v14, 3, v1")
        for nb in range(4):
            A(f"v_xor_b32 v15, {nb}, v13\nv_lshlrev_b32 v15, 5, v15\nv_lshl_add_u32 v15, v12, 7, v15")
            A(f"v_lshl_add_u32 v{4+nb}, v14, 3, v15\nv_add_u32 v{8+nb}, 0x10000, v{4+nb}")
    @staticmethod
    def xaddr(a, b):
        return [f"v_and_b32 v{a}, 15, v1", f"v_lshlrev_b32 v{a}, 11, v{a}", f"v_bfe_u32 v{b}, v1, 4, 1", f"v_lshl_add_u32 v{a}, v{b}, 5, v{a}",
                f"v_lshrrev_b32 v{b}, 5, v1", f"v_lshl_add_u32 v{a}, v{b}, 4, v{a}", f"v_add_u32 v{a}, s94, v{a}", f"v_add_u32 v{b}, {16*2048}, v{a}"]
    @staticmethod
    def xres(a, b):
        it = []
        for mb in range(2):
            for p in range(2):
                r = 128 + (p * 2 + mb) * 4
                it.append(f"global_load_dwordx4 a[{r}:{r+3}], v{(a, b)[mb]}, s[4:5] offset:{p*64} {F_X0}")
        return it
    def zero(self):
        return [f"v_mov_b64 v[{i}:{i+1}], 0" for i in range(192, 256, 2)]
    def run(self, units, nxt, accb, ld, bar, batches=()):
        n = len(units); al = list(units) + list(nxt)
        mf, fill = [], [[] for _ in range(4 * n)]
        for u in range(n):
            if u in bar:
                fill[4 * u - 1] += [bar[u], "s_barrier"] if isinstance(bar[u], str) else list(bar[u])
            if u + 3 < len(al):
                rd = self.reads((u + 3) % 4, *al[u + 3])
                if opt("hack"):
                    for i in (0, 2): fill[4 * u + i].append(rd[i])
                else:
                    for i in range(4): fill[4 * u + i].append(rd[i])
            rem = min(len(al), u + 4) - (u + 2)
            if opt("hack"):
                if u % 2 == 1: fill[4 * u + 3].append("s_waitcnt lgkmcnt(4)")
            elif u + 1 < len(al): fill[4 * u + 3].append(f"s_waitcnt lgkmcnt({4 * max(rem, 0)})")
            mf += self.mfmas(u % 4, *units[u], accb)
        for slot, ngrp, post, *pos in ([ld] if isinstance(ld, tuple) else (ld or [])):
            L = self.loads(slot, ngrp)
            p0, span = pos if pos else (0, 4 * n - 4 if n == 8 else 48)
            for i, (pre, ins) in enumerate(L):
                p = p0 + i * span // len(L)
                if pre: fill[p].append(pre)
                fill[p + 1].append(ins)
            fill[p + 1].append(f"@tag ld{slot}")
            a = self.adv(ngrp == 2)
            for i in range(0, len(a), 2): fill[min(p + 2 + i // 2, 4 * n - 1)] += a[i:i+2]
            assert not post
        emit_stream(self.A, mf, fill, list(batches))
    def pre(self):
        A = self.A
        A("v_mov_b32 v24, s92\nv_add_u32 v26, 256, v24\nv_add_u32 v27, 512, v24")
        A("s_and_b32 s30, s25, 4\ns_lshl_b32 s30, s30, 6\nv_add_u32 v24, s30, v26")
        if int(opt("cpf2", "0")):
            l = newlab("c")
            A(f"s_getpc_b64 s[10:11]\n{l}:\ns_add_u32 s10, s10, L2_loop-{l}\ns_addc_u32 s11, s11, 0")
            A("s_bfe_u32 s30, s2, 0x30003\ns_lshl_b32 s30, s30, 2\ns_add_u32 s30, s30, s24\ns_lshl_b32 s30, s30, 10")
            A("s_min_u32 s30, s30, L_end-L2_loop-1024\nv_add_u32 v18, s30, v2")
        if C3 & 4:
            for g in self.c3addr(31): emit_group(A, g)
        if DYN:
            A("s_andn2_b32 s30, s93, 128\ns_add_u32 s30, s30, 64\nv_mov_b32 v22, s30\nv_mov_b32 v21, 1\nv_mov_b32 v23, 99")
            A("v_lshlrev_b32 v20, 2, v1\nv_add_u32 v20, 0x27000, v20")
        A("@wv h2s")
        emit_sync(A, spin(30, 22, 16, 29, True, sleep=4, off=1024))
        A("s_barrier")
    def sunits(self, slot, order=range(8)): return [(nb, slot, kp) for nb in order for kp in range(2)]
    def body(self):
        A = self.A
        A("L2_start:")
        stamp(A, 12)
        for u in range(3):
            for r in self.reads(u, *self.sunits(0)[u]): A(r)
        A("s_waitcnt lgkmcnt(8)")
        A.raw(".p2align 6")
        A("L2_loop:")
        phs = range(4) if DYN else sorted({(NKV - 2) % 4, (26 - NKV) % 4})
        for s in range(4):
            bt = [(56, 57, ["global_load_dword v25, v26, s[22:23] sc1"])] if s == 2 else []
            if s == 0:
                l = newlab("g")
                bt = [(52, 53, [Unc(["s_lshl_b32 s30, s24, 2", "s_add_u32 s30, s30, s80", "s_cmp_lg_u32 s30, 3", f"s_cbranch_scc1 {l}",
                                     "v_mov_b32 v25, 1", "s_mov_b64 exec, 1", "global_atomic_add v24, v25, s[22:23] sc1",
                                     "s_mov_b64 exec, -1", f"{l}:"])]),
                      (56, 57, ["global_load_dword v29, v30, s[22:23] offset:768 sc1"])]
            if s == 1: bt = [(62, 63, [Unc(spin(30, 22, 16, 29, True, sleep=2, off=768))])]
            if s == 3 and int(opt("cpf2", "0")):
                bt.append((54, 55, ["global_load_dwordx4 v[12:15], v18, s[10:11]"]))
            if s == 3 and C3 & 4: bt += [(53, 54, self.c3pf(31))]
            bar = ["s_waitcnt vmcnt(%d)" % (12 if opt("hk2") == "halfw" else 16), "s_barrier"]
            if DYN:
                l1, l2 = newlab("a"), newlab("b")
                g = ["s_lshl_b32 s30, s24, 8", "s_sub_i32 s30, s99, s30", "s_cmp_lt_i32 s30, 11"]
                cp = 52 if DYN == 2 else 0
                bt.insert(0, (cp, cp + 1, [Unc(g + [f"s_cbranch_scc1 {l1}", "s_mov_b64 exec, 1", "global_atomic_add v23, v22, v21, s[22:23] sc0 sc1",
                                              "s_mov_b64 exec, -1", f"{l1}:"])]))
                bar = ["s_waitcnt vmcnt(16)",
                       g[:2] + ["s_cmp_lt_i32 s30, 12", f"s_cbranch_scc1 {l2}", f"ds_write_b32 v20, v23 offset:{(s % 2) * 256}", "s_waitcnt lgkmcnt(0)", f"{l2}:"],
                       "s_barrier", f"ds_read_b32 v19, v20 offset:{(s % 2) * 256}"]
            self.run(self.sunits(s), self.sunits((s + 1) % 4)[:3], 192, ((s + 2) % 4, 2, [], 1, 47), {13: bar}, bt)
            if s == 3:
                emit_sync(A, spin(26, 22, 16, 25, True))
                A("v_mov_b32 v26, v27\ns_mov_b32 s80, 0")
            if DYN:
                A("v_readfirstlane_b32 s30, v19\ns_cmp_lt_u32 s30, 4\ns_cselect_b32 s30, s99, 0\ns_cmp_eq_u32 s30, s67\ns_addc_u32 s67, s67, 0")
            if (s + 1) % 4 in phs: A(f"s_cmp_ge_u32 s99, s67\ns_cbranch_scc1 L2_fin{(s + 1) % 4}")
        A("s_branch L2_loop")
        for ph in phs: self.final(ph)
    def final(self, ph):
        A = self.A
        A(f"L2_fin{ph}:")
        stamp(A, 13)
        if STAMPS: A("s_mul_i32 s30, s67, 100\nv_readlane_b32 s31, v0, 0\ns_add_u32 s30, s30, s31\nv_writelane_b32 v0, s30, 14")
        A("@tag k2l")
        A(f"s_add_u32 s32, s8, s79\ns_addc_u32 s33, s9, 0\ns_sub_u32 s34, {1024*2048}, s79\ns_lshl_b32 s72, s24, 16")
        def gpart(q):
            o, p = 192 + q * 4, 128 + q * 4
            if P16:
                it = [f"@wv P{q//2}"] if q % 2 == 0 else []
                pp = 128 + q * 2
                it += [f"v_lshlrev_b32 v20, 16, v{pp}", f"v_and_b32 v21, s3, v{pp}", f"v_lshlrev_b32 v22, 16, v{pp+1}", f"v_and_b32 v23, s3, v{pp+1}"]
                it += [f"v_add_f32 v{o+i}, v{o+i}, v{20+i}" for i in range(4)]
            else:
                it = [f"@wv P{q}"]
                it += [f"v_add_f32 v{o+i}, v{o+i}, v{p+i}" for i in range(4)]
            it += [f"v_mul_f32 v{20+i}, s87, v{o+i}" for i in range(4)]
            it += [f"v_exp_f32 v{20+i}, v{20+i}" for i in range(4)]
            it += [f"v_add_f32 v{20+i}, 1.0, v{20+i}" for i in range(4)]
            it += [f"v_rcp_f32 v{20+i}, v{20+i}" for i in range(4)]
            it += [f"v_mul_f32 v{o+i}, v{o+i}, v{20+i}" for i in range(4)]
            return it
        def xpart(p, mb):
            r = 128 + (p * 2 + mb) * 4
            q0, q1 = 96 + ((2 * p) * 2 + mb) * 4, 96 + ((2 * p + 1) * 2 + mb) * 4
            it = [f"v_accvgpr_read_b32 v{12+i}, a{r+i}" for i in range(4)]
            it += ["v_permlane16_swap_b32 v12, v14", "v_permlane16_swap_b32 v13, v15"]
            for q, s in ((q0, 12), (q1, 14)):
                it += [f"v_lshlrev_b32 v{q}, 16, v{s}", f"v_and_b32 v{q+1}, s3, v{s}", f"v_lshlrev_b32 v{q+2}, 16, v{s+1}", f"v_and_b32 v{q+3}, s3, v{s+1}"]
            return it
        def fin(p, mb):
            it = []
            qs = [(2 * p) * 2 + mb, (2 * p + 1) * 2 + mb]
            for q in qs:
                it += [f"v_fmac_f32 v{96+q*4+i}, v{64+q*4+i}, v{192+q*4+i}" for i in range(4)]
            d = 192 + qs[0] * 4
            for j, q in enumerate(qs):
                it += [f"v_cvt_pk_bf16_f32 v{d+2*j}, v{96+q*4}, v{97+q*4}", f"v_cvt_pk_bf16_f32 v{d+2*j+1}, v{98+q*4}, v{99+q*4}"]
            it += [f"v_permlane16_swap_b32 v{d}, v{d+2}", f"v_permlane16_swap_b32 v{d+1}, v{d+3}",
                   f"global_store_dwordx4 v{16+mb}, v[{d}:{d+3}], s[18:19] offset:{p*64} {opt('out', 'nt')}"]
            return it
        l = newlab("f")
        flag = Unc(["s_cmp_lg_u32 s24, 0", f"s_cbranch_scc1 {l}", "v_mov_b32 v25, 1", "s_mov_b64 exec, 1",
                    f"global_store_dword v27, v25, s[22:23] {SC}", "s_mov_b64 exec, -1", f"{l}:"])
        S = [(ph + i) % 4 for i in range(4)]
        un = self.sunits(S[0], [0, 1, 4, 5, 6, 7]) + self.sunits(S[1], [4, 5, 6, 7]) + self.sunits(S[0], [2, 3]) + self.sunits(S[1], [0, 1, 2, 3])
        WL = [S[2]*32768, S[2]*32768+16384, S[3]*32768, S[3]*32768+16384, 131072, 147456, S[0]*32768, S[0]*32768+16384]
        XR = [S[2]*32, S[3]*32, 144, 176, 208, S[0]*32, S[1]*32, S[2]*32]
        def sreads(ring, t, nb, kp):
            out = []
            base = WL[t]; v = (4, 8, 160)[base >> 16] + nb
            for k2 in range(2):
                for h in range(2):
                    r = 32 + ring * 8 + k2 * 4 + 2 * h
                    out.append(f"ds_read_b64_tr_b16 v[{r}:{r+1}], v{v} offset:{(base & 0xffff) + (kp * 2 + k2) * 4096 + h * 2048}")
            return out
        def smf(ring, t, nb, kp):
            out = []
            for mb in range(2):
                for k2 in range(2):
                    w = 32 + ring * 8 + k2 * 4; x = XR[t] + ((kp * 2 + k2) * 2 + mb) * 4; a = 64 + (nb * 2 + mb) * 4
                    out.append(f"v_mfma_f32_16x16x32_bf16 v[{a}:{a+3}], v[{w}:{w+3}], a[{x}:{x+3}], v[{a}:{a+3}]")
            return out
        sun = [(t, nb, kp) for t in range(8) for nb in range(4) for kp in range(2)]
        N = 96
        rdu = lambda u: self.reads(u % 4, *un[u]) if u < 32 else sreads(u % 4, *sun[u - 32])
        mfu = lambda u: self.mfmas(u % 4, *un[u], 192) if u < 32 else smf(u % 4, *sun[u - 32])
        mf, fill = [], [[] for _ in range(4 * N)]
        bars = {9: "@wv k2l", 29: "@wv W1", 45: "@wv W3", 61: "@wv W5", 77: "@wv W7", int(opt("fb", "37")): "@wv ps"}
        for u in range(N):
            if u in bars: fill[4 * u - 1] += [bars[u], "s_barrier"] + ([flag] if bars[u] == "@wv ps" else [])
            if u >= 32 and u % 8 == 0: fill[4 * u - 1].append(f"@wv X{(u - 32) // 8}")
            if u + 3 < N:
                for i, r in enumerate(rdu(u + 3)): fill[4 * u + i].append(r)
            if u + 1 < N: fill[4 * u + 3].append(f"s_waitcnt lgkmcnt({4 * max(min(N, u + 4) - (u + 2), 0)})")
            mf += mfu(u)
        def pairbase(t): return [f"s_add_u32 s98, s75, {t//2}", "s_and_b32 s98, s98, 3", "s_lshl_b32 s97, s98, 19", "s_add_u32 s97, s97, s72",
                                 "s_lshl_b32 s98, s98, 14"]
        def wl(t): return [((pairbase(t) if (j == 0 and t % 2 == 0) else []) +
                            [f"s_add_u32 m0, s78, {WL[t] + j*1024}", f"s_add_u32 s96, s97, {(t%2)*128*2048 + j*16384}"],
                            [f"buffer_load_dwordx4 v28, s[32:35], s96 offen {opt('w2')} lds"] + ([f"@tag W{t}"] if j == 3 else [])) for j in range(4)]
        def xl(t): return [([f"s_add_u32 s73, s98, {112*2048 + (t%2)*8192 + (i//4)*4096}"] if i % 4 == 0 else [],
                            [f"buffer_load_dwordx4 a[{XR[t]+i*4}:{XR[t]+i*4+3}], v2, s[36:39], s73 offen offset:{(i%4)*1024} {F_H}"] +
                            ([f"@tag X{t}"] if i == 7 else [])) for i in range(8)]
        A("s_add_u32 s75, s26, s27" if int(opt("srot", "0")) else "s_mov_b32 s75, 0")
        L = []
        for t in range(0, 8, 2): L += wl(t) + wl(t + 1) + xl(t) + xl(t + 1)
        r1, r2 = float(opt("r1", "3.6")), float(opt("r2", "3.0"))
        p = 1.0; pos = []
        for pre, ins in L:
            q = int(p); pos.append(q)
            fill[q - 1] += pre; fill[q] += ins
            p += r1 if p < 128 else r2
        assert pos[24] > 36 and pos[72] > 116 and pos[64] > 96 and pos[80] > 128 and pos[88] > 160
        for t in range(8):
            assert pos[(t // 2) * 24 + 8 + (t % 2) * 8 + 7] < 128 + 32 * t - 1
        for i, b in enumerate((29, 45, 61, 77)): assert pos[i * 24 + 7] < 4 * b - 1
        misc = (["v_mov_b32 v27, s93", "v_xor_b32 v26, 128, v27", "s_mov_b32 s3, 0xffff0000"] + self.xaddr(16, 17) +
                [f"v_add_u32 v{160+i}, 0x20000, v{4+i}" for i in range(4)] + [f"v_mov_b32 v{i}, 0" for i in range(64, 96)])
        bt = [(0, 60, misc)]
        for j in range(4):
            a = 224 + j * 8
            it = [f"v_cvt_pk_bf16_f32 v{a+i}, v{a+2*i}, v{a+2*i+1}" for i in range(4)]
            it.append([f"buffer_store_dwordx4 v[{a}:{a+3}], v2, s[40:43], s74 offen offset:{j*1024} {SC}"] + (["@tag ps"] if j == 3 else []))
            bt.append((62 + 8 * j, 62 + 8 * j + 6, it))
        pc = int(opt("pc", "224"))
        sd, gd = int(opt("sd", "32")), int(opt("gd", "36"))
        bt.append((pc - sd, pc - sd + 1, [["global_load_dword v25, v26, s[22:23] sc1", "@tag pp"]]))
        bt.append((pc - sd + 2, pc - 1, xpart(0, 0) + xpart(0, 1)))
        it = ["@wv pp", Unc(spin(26, 22, 1, 25, True))]
        for q in range(4):
            it.append([f"buffer_load_dwordx4 v[{128+q*4}:{131+q*4}], v2, s[40:43], s77 offen offset:{q*1024} sc1", f"@tag P{q}"])
        bt.append((pc, pc + 8, it))
        bt.append((pc + 9, pc + gd - 1, xpart(1, 0) + xpart(1, 1)))
        bt.append((pc + gd, 372, sum([gpart(q) for q in range(8)], [])))
        bt.append((374, 384, fin(0, 0) + fin(0, 1)))
        bt.append((390, 391, fin(1, 0) + fin(1, 1)))
        if STAMPS and not opt("tailst"):
            for t in range(9):
                fill[127 + 32 * t] += ["s_memtime s[100:101]" if opt("cyc") else "s_memrealtime s[100:101]", "s_waitcnt lgkmcnt(0)", f"v_writelane_b32 v0, s100, {17 + t}"]
        emit_stream(A, mf, fill, bt)
        if opt("padfrom"):
            A(f"s_waitcnt vmcnt(0)\nv_readlane_b32 s30, v0, {opt('padfrom')}\ns_add_u32 s30, s30, 10000")
            A(f"Lpad{ph}:\ns_memrealtime s[100:101]\ns_waitcnt lgkmcnt(0)\ns_sub_u32 s31, s100, s30\ns_cmp_lt_i32 s31, 0\ns_cbranch_scc1 Lpad{ph}")
        stamp_out(A, 15, f"a{ph}")
        A("s_endpgm")

def kernel(A):
    name = NAME + "_kernel"
    A.raw(f".globl {name}\n.p2align 8\n.type {name},@function")
    A(f"{name}:")
    A("s_cmp_ge_u32 s2, 256\ns_cbranch_scc1 L_end")
    if STAMPS: A("s_memtime s[98:99]" if opt("cyc") else "s_memrealtime s[98:99]")
    if FAST: A("s_memrealtime s[96:97]")
    A("s_load_dwordx4 s[4:7], s[0:1], 0\ns_load_dwordx2 s[8:9], s[0:1], 16")
    A("s_load_dwordx4 s[12:15], s[0:1], 32\ns_load_dwordx4 s[16:19], s[0:1], 48\ns_load_dwordx4 s[20:23], s[0:1], 64")
    if ECPF:
        l = newlab("c")
        A(f"s_getpc_b64 s[10:11]\n{l}:\ns_sub_u32 s10, s10, {l}-{name}\ns_subb_u32 s11, s11, 0")
        A("s_lshr_b32 s30, s2, 3\ns_lshl_b32 s30, s30, 12\nv_lshl_add_u32 v28, v0, 4, s30")
        A(f"v_min_u32 v28, L_end-{name}-16, v28")
        A("v_mov_b32 v29, s11\nv_add_co_u32 v28, vcc, s10, v28\nv_addc_co_u32 v29, vcc, 0, v29, vcc")
        A("global_load_dwordx4 v[120:123], v[28:29], off")
    A("v_and_b32 v1, 63, v0\nv_lshrrev_b32 v2, 6, v0\nv_readfirstlane_b32 s24, v2")
    A("s_and_b32 s25, s2, 7\ns_bfe_u32 s26, s2, 0x30003\ns_lshr_b32 s27, s2, 6\ns_and_b32 s29, s27, 1")
    A("s_and_b32 s28, s25, 3\ns_lshl_b32 s28, s28, 2\ns_add_u32 s28, s28, s27")
    A("s_lshl_b32 s30, s27, 3\ns_add_u32 s30, s30, s25\ns_lshl_b32 s30, s30, 3\ns_lshl_b32 s31, s26, 8\ns_add_u32 s30, s30, s31")
    A("v_lshrrev_b32 v21, 5, v0\nv_add_u32 v21, s30, v21\nv_and_b32 v22, 31, v0")
    A("v_lshlrev_b32 v20, 11, v21\nv_lshl_add_u32 v20, v22, 4, v20")
    A(f"v_lshlrev_b32 v31, 7, v22\ns_lshl_b32 s30, s26, 12\ns_add_u32 s30, s30, {XFL_OFF}\nv_add_u32 v31, s30, v31\nv_mov_b32 v24, 0")
    A("s_or_b32 s3, s25, s27\ns_xor_b32 s30, s24, 3\ns_or_b32 s3, s3, s30")
    A("s_waitcnt lgkmcnt(0)")
    if FAST:
        l = newlab("z")
        n = A.nvm
        A(f"s_cmp_lg_u32 s3, 0\ns_cbranch_scc1 {l}\ns_or_b32 s30, s96, 1\nv_mov_b32 v24, s30\ns_lshl_b32 s30, s26, 5\nv_mov_b32 v25, s30")
        A(f"s_mov_b64 exec, 1\nglobal_store_dword v25, v24, s[20:21] {SC}\ns_mov_b64 exec, -1\n{l}:")
        A.nvm = n
    elif NSY:
        l = newlab("z")
        A(f"s_cmp_lg_u32 s3, 0\ns_cbranch_scc1 {l}\nglobal_store_dword v31, v24, s[22:23] {SC}\n{l}:")
    for j in range(4):
        A(f"global_load_dwordx4 v[{64+4*j}:{67+4*j}], v20, s[4:5] offset:{512*j} {F_X0}")
    if FAST:
        A("s_lshl_b32 s30, s26, 2\ns_add_u32 s30, s30, s24\ns_lshl_b32 s30, s30, 6\nv_and_b32 v24, 15, v1\nv_add_u32 v24, s30, v24")
        A(f"v_lshlrev_b32 v125, 3, v24\nv_add_u32 v125, {STAT_OFF}, v125")
        A("v_lshrrev_b32 v24, 3, v1\nv_xor_b32 v25, v24, v1\nv_and_b32 v25, 7, v25\nv_lshlrev_b32 v25, 4, v25\nv_lshl_add_u32 v127, v24, 11, v25")
        A("v_and_b32 v24, 15, v1\nv_lshrrev_b32 v25, 4, v1\nv_xor_b32 v25, v25, v24\nv_and_b32 v25, 7, v25\nv_lshlrev_b32 v25, 4, v25")
        A("v_lshl_add_u32 v126, v24, 7, v25\ns_lshl_b32 s30, s24, 15\nv_add_u32 v126, s30, v126\nv_xor_b32 v124, 64, v126")
        A(f"v_lshlrev_b32 v20, 3, v21\nv_add_u32 v20, {STAT_OFF}, v20")
    if opt("tlb"):
        A("v_lshlrev_b32 v29, 20, v1")
        A("global_load_dword v124, v29, s[22:23]")
        A("v_and_b32 v30, 3, v1\nv_lshlrev_b32 v30, 20, v30")
        A("global_load_dword v125, v30, s[18:19]")
        A("v_min_u32 v30, 6, v1\nv_lshlrev_b32 v30, 20, v30")
        A("global_load_dword v126, v30, s[16:17]\nglobal_load_dword v126, v30, s[12:13]\nglobal_load_dword v126, v30, s[14:15]")
        A("v_min_u32 v30, 5, v1\nv_lshlrev_b32 v30, 20, v30\nglobal_load_dword v126, v30, s[6:7]")
        A("v_min_u32 v30, 1, v1\nv_lshlrev_b32 v30, 20, v30\nglobal_load_dword v126, v30, s[8:9]")
    if STAMPS: A("v_writelane_b32 v0, s98, 0")
    A("v_lshlrev_b32 v2, 4, v1")
    A("v_lshrrev_b32 v24, 3, v1\ns_lshl_b32 s30, s24, 3\nv_add_u32 v24, s30, v24")
    A("v_bfe_u32 v25, v1, 4, 1\ns_and_b32 s30, s24, 1\ns_lshl_b32 s30, s30, 1\nv_or_b32 v25, s30, v25")
    A("v_bfe_u32 v26, v1, 1, 2\nv_xor_b32 v26, v26, v25\nv_lshlrev_b32 v26, 5, v26")
    A("v_and_b32 v27, 1, v1\nv_lshl_add_u32 v26, v27, 4, v26")
    A(f"v_mul_u32_u24 v{K1.VO6}, 6144, v24\nv_add_u32 v{K1.VO6}, v{K1.VO6}, v26")
    A(f"v_mul_u32_u24 v{K1.VO7}, 7168, v24\nv_add_u32 v{K1.VO7}, v{K1.VO7}, v26")
    A("v_lshrrev_b32 v24, 2, v1\ns_and_b32 s30, s24, 1\ns_lshl_b32 s30, s30, 4\nv_add_u32 v24, s30, v24")
    A("v_bfe_u32 v25, v1, 1, 1\nv_lshrrev_b32 v26, 5, v1\nv_xor_b32 v25, v25, v26\nv_lshlrev_b32 v25, 5, v25")
    A("v_lshl_add_u32 v25, v27, 4, v25")
    A(f"v_mul_u32_u24 v{K1.VOH}, 7168, v24\nv_add_u32 v{K1.VOH}, v{K1.VOH}, v25")
    A(f"v_add_u32 v{K1.VX1}, 4096, v2\nv_add_u32 v3, {144*2048}, v2")
    A(f"s_mov_b32 s72, 0\ns_mov_b32 s74, 0\ns_mov_b32 s73, {32*6144}\ns_mov_b32 s75, {32*7168}\ns_mov_b32 s76, 0")
    A("s_lshl_b32 s78, s24, 10")
    A("s_lshr_b32 s79, s24, 1\ns_lshl_b32 s79, s79, 12\ns_and_b32 s30, s24, 1\ns_lshl_b32 s30, s30, 10\ns_add_u32 s79, s79, s30")
    A("s_lshl_b32 s10, s26, 2\ns_add_u32 s10, s10, s24\ns_lshl_b32 s30, s10, 17")
    srd(A, 52, 22, "s30", 131072)
    A(f"s_mul_i32 s30, s10, {2*144*2048}\ns_add_u32 s30, s30, {ACT_OFF}")
    srd(A, 56, 22, "s30", 2 * 144 * 2048)
    A(f"s_mul_i32 s30, s28, {8*KVP_STRIDE}\ns_add_u32 s30, s30, {KVP_OFF}")
    srd(A, 60, 22, "s30", 8 * KVP_STRIDE)
    srd(A, 64, 16, 0, 3584 * 2048); srd(A, 68, 8, 0, 1024 * 2048)
    A("s_lshl_b32 s81, s2, 2\ns_add_u32 s81, s81, s24\ns_lshl_b32 s81, s81, 10\ns_mov_b32 s82, s81")
    A(f"s_mov_b32 s86, {LOG2E:#x}\ns_mov_b32 s87, {NLOG2E:#x}\ns_mov_b32 s88, {EPS6:#x}")
    A("s_lshl_b32 s89, s28, 4\ns_add_u32 s89, s89, 8")
    ob = [b for b in range(3) if b != RB]
    A(f"s_lshl_b32 s95, s26, 1\ns_bfe_u32 s30, s25, {0x10000 + ob[0]:#x}")
    if int(opt("xp", "0")): A(f"s_bfe_u32 s31, s25, {0x10000 + RB:#x}\ns_xor_b32 s30, s30, s31")
    A("s_add_u32 s95, s95, s30\ns_lshl_b32 s95, s95, 3")
    A(f"s_bfe_u32 s30, s25, {0x10000 + ob[1]:#x}\ns_lshl_b32 s30, s30, 2\ns_add_u32 s95, s95, s30\ns_add_u32 s95, s95, s27")
    if opt("jx"): A(f"s_xor_b32 s95, s95, {opt('jx')}")
    A(f"s_bfe_u32 s91, s25, {0x10000 + RB:#x}")
    if RINV: A("s_xor_b32 s91, s91, 1")
    A("s_lshr_b32 s94, s95, 3\ns_lshl_b32 s94, s94, 2\ns_add_u32 s94, s94, s24\ns_lshl_b32 s94, s94, 16")
    if CMAP:
        A("s_and_b32 s30, s95, 3\ns_lshl_b32 s30, s30, 7\ns_add_u32 s94, s94, s30\ns_and_b32 s30, s95, 4\ns_lshl_b32 s30, s30, 8\ns_add_u32 s94, s94, s30")
        A("s_lshl_b32 s31, s91, 9\ns_add_u32 s94, s94, s31\ns_lshl_b32 s31, s91, 7")
    else:
        A("s_and_b32 s30, s95, 7\ns_lshl_b32 s30, s30, 8\ns_add_u32 s94, s94, s30\ns_lshl_b32 s31, s91, 7\ns_add_u32 s94, s94, s31")
    A(f"s_lshl_b32 s92, s26, 11\ns_add_u32 s92, s92, {FLAG_OFF}")
    A(f"s_lshl_b32 s93, s95, 8\ns_add_u32 s93, s93, {FLAG_OFF + 16384}\ns_add_u32 s93, s93, s31")
    l = newlab("z")
    A(f"s_cmp_lg_u32 s24, 0\ns_cbranch_scc1 {l}")
    A("v_mov_b32 v24, 0\nv_lshl_add_u32 v25, v1, 8, s92\nv_subrev_u32 v25, 256, v25\nv_mov_b32 v26, s93")
    A("v_cmp_eq_u32 vcc, 0, v1\nv_cndmask_b32 v25, v25, v26, vcc")
    A("s_or_b32 s30, s25, s27\ns_cmp_eq_u32 s30, 0\ns_cselect_b32 s30, 63, 1\ns_mov_b32 s31, 0\ns_mov_b64 exec, s[30:31]")
    A(f"global_store_dword v25, v24, s[22:23] {SC}")
    if DYN:
        A(f"s_mov_b64 exec, 1\nv_and_b32 v26, 0xffffff7f, v26\nglobal_store_dword v26, v24, s[22:23] offset:64 {SC}")
    A("s_mov_b64 exec, -1")
    A(f"{l}:")
    A("v_xor_b32 v24, v21, v22\nv_and_b32 v24, 7, v24\nv_lshlrev_b32 v24, 4, v24\nv_lshl_add_u32 v22, v22, 7, v24")
    A("v_readfirstlane_b32 s30, v21")
    A("s_lshr_b32 s31, s30, 6\ns_lshl_b32 s31, s31, 17\ns_bfe_u32 s3, s30, 0x20004\ns_lshl_b32 s3, s3, 10\ns_add_u32 s31, s31, s3")
    A("s_and_b32 s30, s30, 8\ns_lshl_b32 s30, s30, 4\ns_add_u32 s31, s31, s30\ns_lshl_b32 s30, s24, 15\ns_add_u32 s31, s31, s30")
    A("v_lshrrev_b32 v23, 5, v1\nv_lshlrev_b32 v23, 12, v23\nv_bfe_u32 v24, v1, 3, 2\nv_lshl_add_u32 v23, v24, 8, v23")
    A("v_lshrrev_b32 v24, 3, v1\nv_xor_b32 v24, v24, v1\nv_and_b32 v24, 7, v24\nv_lshl_add_u32 v23, v24, 4, v23\nv_add_u32 v23, s31, v23")
    A("s_lshr_b32 s30, s24, 1\ns_lshl_b32 s30, s30, 15\ns_and_b32 s31, s24, 1\ns_lshl_b32 s31, s31, 12\ns_add_u32 s30, s30, s31\nv_add_u32 v21, s30, v2")
    A("v_lshrrev_b32 v24, 4, v1\nv_bfe_u32 v25, v1, 2, 2\nv_and_b32 v26, 3, v1")
    A("v_lshl_add_u32 v27, v24, 3, v25")
    A("v_lshrrev_b32 v28, 1, v25\nv_and_b32 v29, 1, v24\nv_lshl_or_b32 v28, v29, 1, v28")
    for nb in range(4):
        A(f"v_xor_b32 v30, {nb}, v28\nv_lshlrev_b32 v30, 5, v30\nv_lshl_add_u32 v30, v27, 7, v30")
        A(f"v_lshl_add_u32 v{4+nb}, v26, 3, v30\nv_add_u32 v{8+nb}, 0x10000, v{4+nb}\nv_add_u32 v{12+nb}, 0x20000, v{4+nb}")
    A("s_lshr_b32 s83, s28, 3\ns_mul_i32 s83, s83, 56\ns_bfe_u32 s30, s28, 0x20001\ns_add_u32 s83, s83, s30\ns_lshl_b32 s83, s83, 11")
    A("s_lshr_b32 s10, s28, 1\ns_mul_i32 s10, s10, 896\ns_lshl_b32 s11, s28, 7")
    NQ, NF = 1024 * 6144, 1024 * 7168
    def wsrd(d, lo, off, tot):
        A(f"s_sub_u32 s31, {tot}, {off}")
        srd(A, d, lo, off, "s31")
    k2 = K2(A)
    A("s_cmp_ge_u32 s25, 4\ns_cbranch_scc1 L1_typeQ")
    for nb in range(2):
        A(f"v_xor_b32 v30, {nb}, v29\nv_lshlrev_b32 v30, 5, v30\nv_lshl_add_u32 v30, v27, 6, v30")
        A(f"v_lshl_add_u32 v30, v26, 3, v30\nv_add_u32 v{12+nb}, 0x20000, v30")
    A("s_add_u32 s30, s11, 2048"); wsrd(32, 6, "s30", NQ)
    A("s_add_u32 s30, s11, 4096"); wsrd(36, 6, "s30", NQ)
    A("s_lshl_b32 s30, s29, 8\ns_add_u32 s30, s30, 512\ns_add_u32 s30, s30, s10")
    wsrd(40, 12, "s30", NF); wsrd(44, 14, "s30", NF)
    A("s_lshl_b32 s31, s29, 13\ns_add_u32 s83, s83, s31")
    A("s_lshl_b32 s30, s29, 6\ns_add_u32 s30, s30, 640\ns_add_u32 s30, s30, s10")
    A("s_cmp_ge_u32 s24, 2\ns_cselect_b32 s10, s14, s12\ns_cselect_b32 s11, s15, s13")
    wsrd(48, 10, "s30", NF)
    K1(A, "KV").body(k2)
    A("L1_typeQ:")
    wsrd(40, 6, "s11", NQ)
    A("s_lshl_b32 s30, s29, 8\ns_add_u32 s30, s30, s10")
    wsrd(32, 12, "s30", NF); wsrd(36, 14, "s30", NF)
    A("s_lshl_b32 s31, s29, 13\ns_add_u32 s83, s83, s31")
    A("s_add_u32 s30, s30, 128")
    wsrd(44, 12, "s30", NF); wsrd(48, 14, "s30", NF)
    A(f"s_lshl_b32 s85, s28, 12\ns_add_u32 s85, s85, {112*2048}")
    K1(A, "Q").body(k2)
    k2.body()
    A("L_end:")
    A("s_endpgm")
    A.raw('.section .rodata,"a"\n.p2align 6')
    A.raw(f".amdhsa_kernel {name}")
    for l in (".amdhsa_next_free_vgpr 512", ".amdhsa_next_free_sgpr 102", ".amdhsa_accum_offset 256", ".amdhsa_group_segment_fixed_size 0",
              ".amdhsa_kernarg_size 80", ".amdhsa_user_sgpr_count 2", ".amdhsa_user_sgpr_kernarg_segment_ptr 1",
              ".amdhsa_system_sgpr_workgroup_id_x 1", ".amdhsa_float_denorm_mode_32 3", ".end_amdhsa_kernel"):
        A.raw(l)

def main(out):
    A = Asm()
    for l in open("cdna_kernels/" + NAME + ".s.ref").read().split("\n"):
        if l.startswith("; @launch") or l.startswith("; Override") or l.startswith("; grid=ceil"): continue
        if not l.startswith(";"): break
        A.raw(l)
    if "--list" in sys.argv:
        A.raw(f"; @launch kernel={NAME}_kernel grid=(256,1,1) block=(256,1,1) lds=163840")
    else:
        A.raw("; @launch grid=(256,1,1) block=(256,1,1) lds=163840")
    A.raw('.amdgcn_target "amdgcn-amd-amdhsa--gfx950"')
    A.raw(MAC)
    A.raw(".text")
    kernel(A)
    open(out, "w").write(A.finalize())
main(sys.argv[1])
```
